```python
import torch

def _softmax(x, axis=-1):
    return torch.softmax(x, dim=axis)
def _gelu(x):
    return torch.nn.functional.gelu(x, approximate="tanh")
def _silu(x):
    return torch.nn.functional.silu(x)
def _sigmoid(x):
    return torch.sigmoid(x)
def _layernorm(x, axis=-1, eps=1e-5):
    m = x.mean(dim=axis, keepdim=True)
    v = x.var(dim=axis, keepdim=True, unbiased=False)
    return (x - m) / torch.sqrt(v + eps)
def _scatter_add(tgt, idx, src, axis=0):
    return tgt.clone().index_add_(axis, idx, src)
def _segment_sum(src, seg, n):
    out = torch.zeros((n,) + src.shape[1:], dtype=src.dtype)
    return out.index_add_(0, seg, src)
def _pad(x, pw):
    flat = tuple(v for pair in reversed(pw) for v in pair)
    return torch.nn.functional.pad(x, flat)

kernel_name = 'recurrent_scan__linear_kernel_hedgehog__dense_activation_silu__prompt'

def setup_inputs():

    _w = (lambda a: (lambda t: t.to(torch.bfloat16) if t.is_floating_point() else t)(torch.as_tensor(a)))
    def _A_setup():
        B, S, D, H = 1, 2048, 640, 32
        Dh = D // H
        return {
            "x": _w((lambda *s: torch.randn(*s, dtype=torch.bfloat16) * 0.05)(B, S, D)),
            "wqkv": _w((lambda *s: torch.randn(*s, dtype=torch.bfloat16) * 0.4)(D, 3 * D)),
            "w_phi": _w((lambda *s: torch.randn(*s, dtype=torch.bfloat16) * 0.4)(H, Dh, Dh) * (Dh ** -0.5)),
            "wo": _w((lambda *s: torch.randn(*s, dtype=torch.bfloat16) * 0.2)(D, D)),
        }
    _A_in = _A_setup()

    def _B_setup():
        B, S, D, F = 1, 2048, 640, 1536
        return {
            "x": _w((lambda *s: torch.randn(*s, dtype=torch.bfloat16) * 0.05)(B, S, D)),
            "w1": _w((lambda *s: torch.randn(*s, dtype=torch.bfloat16) * 0.4)(D, F) * (D ** -0.5)),
            "w2": _w((lambda *s: torch.randn(*s, dtype=torch.bfloat16) * 0.1)(F, D) * (F ** -0.5)),
        }
    _B_in = _B_setup()

    return {
        "A_x": _A_in["x"],
        "A_wqkv": _A_in["wqkv"],
        "A_w_phi": _A_in["w_phi"],
        "A_wo": _A_in["wo"],
        "B_x": _B_in["x"],
        "B_w1": _B_in["w1"],
        "B_w2": _B_in["w2"],
    }

def reference(A_x, A_wqkv, A_w_phi, A_wo, B_x, B_w1, B_w2):
    def _A_ref(x, wqkv, w_phi, wo):
        B, S, D = x.shape
        H = 32; Dh = D // H
        qkv = (lambda x, *d: x.permute(*d))((x @ wqkv).reshape(B, S, 3, H, Dh), 2, 0, 3, 1, 4)
        q, k, v = qkv[0], qkv[1], qkv[2]
        pq = torch.einsum("bhsd,hdf->bhsf", q, w_phi)
        pk = torch.einsum("bhsd,hdf->bhsf", k, w_phi)
        phi_q = torch.concatenate([_softmax(pq, axis=-1), _softmax(-pq, axis=-1)], axis=-1)
        phi_k = torch.concatenate([_softmax(pk, axis=-1), _softmax(-pk, axis=-1)], axis=-1)
        kv = torch.einsum("bhsf,bhsd->bhfd", phi_k, v)
        z  = torch.einsum("bhsf->bhf", phi_k)
        num = torch.einsum("bhqf,bhfd->bhqd", phi_q, kv)
        den = torch.einsum("bhqf,bhf->bhq", phi_q, z)[..., None] + 1e-6
        o = num / den
        return (lambda x, *d: x.permute(*d))(o, 0, 2, 1, 3).reshape(B, S, D) @ wo

    def _B_ref(x, w1, w2):
        h = torch.einsum("bsd,df->bsf", x, w1)
        h = _silu(h)
        out = torch.einsum("bsf,fd->bsd", h, w2)
        return out

    x = A_x
    xn = _layernorm(x, axis=-1)
    s = _A_ref(xn, A_wqkv, A_w_phi, A_wo)
    g = _silu(_B_ref(xn, B_w1, B_w2))
    return x + s * g
```

```python
import re

REG_RE = re.compile(r'\b([vas])(\d+)\b|\b([vas])\[(\d+):(\d+)\]|\b(vcc|exec|m0|scc)\b')


def regs_of(op):
    out = []
    for m in REG_RE.finditer(op):
        if m.group(1):
            out.append((m.group(1), int(m.group(2))))
        elif m.group(3):
            for i in range(int(m.group(4)), int(m.group(5)) + 1):
                out.append((m.group(3), i))
        else:
            out.append((m.group(6), 0))
    return out


TRANS = ('v_exp_f32', 'v_log_f32', 'v_rcp_f32', 'v_rsq_f32', 'v_sqrt_f32', 'v_sin_f32', 'v_cos_f32')


class Inst:
    __slots__ = ('text', 'op', 'kind', 'reads', 'writes', 'tag', 'passes', 'srcc', 'srcab', 'wide', 'data', 'cost')

    def __init__(self, text, tag=None):
        self.text = text
        self.tag = tag
        s = text.strip()
        parts = s.split(None, 1)
        self.op = op = parts[0]
        rest = parts[1] if len(parts) > 1 else ''
        ops = [o.strip() for o in re.split(r',(?![^\[]*\])', rest)] if rest else []
        self.passes = 0
        self.srcc = []
        self.srcab = []
        self.wide = False
        self.data = []
        R, W = [], []
        allr = [regs_of(o) for o in ops]
        flat = lambda l: [r for x in l for r in x]
        if op.endswith(':'):
            k = 'label'
        elif op.startswith('v_mfma'):
            k = 'mfma'
            self.passes = 8 if '32x32' in op else 4
            W = allr[0]
            self.srcab = allr[1] + allr[2]
            self.srcc = allr[3]
            R = self.srcab + self.srcc
        elif op.startswith('buffer_load') or op.startswith('global_load'):
            if re.search(r'\blds\b', s):
                k = 'dma'
                R = flat(allr) + [('m0', 0)]
            else:
                k = 'vload'
                W = allr[0]
                R = flat(allr[1:])
        elif op.startswith('buffer_store') or op.startswith('global_store'):
            k = 'vstore'
            R = flat(allr)
            self.data = allr[0] if op.startswith('buffer') else allr[1]
            self.wide = 'x4' in op or 'x3' in op
        elif op.startswith('ds_read') or op.startswith('ds_bpermute') or op.startswith('ds_swizzle'):
            k = 'dsread'
            W = allr[0]
            R = flat(allr[1:])
        elif op.startswith('ds_write'):
            k = 'dswrite'
            R = flat(allr)
        elif op.startswith('s_load') or op in ('s_memtime', 's_memrealtime'):
            k = 'smem'
            W = allr[0]
            R = flat(allr[1:])
        elif op in ('s_waitcnt', 's_nop', 's_barrier', 's_endpgm', 's_sleep', 's_setprio'):
            k = 'misc'
        elif op.startswith('s_cbranch') or op == 's_branch':
            k = 'branch'
            if 'vcc' in op:
                R = [('vcc', 0)]
            elif 'scc' in op:
                R = [('scc', 0)]
            elif 'exec' in op:
                R = [('exec', 0)]
        elif op.startswith('s_cmp') or op.startswith('s_bitcmp'):
            k = 'salu'
            R = flat(allr)
            W = [('scc', 0)]
        elif op.startswith('s_'):
            k = 'salu'
            W = list(allr[0]) if allr else []
            R = flat(allr[1:])
            if 'saveexec' in op:
                W += [('exec', 0)]
                R += [('exec', 0)]
            if op.startswith('s_cselect') or op.startswith('s_addc') or op.startswith('s_subb'):
                R += [('scc', 0)]
            if not op.startswith('s_mov') and not op.startswith('s_cselect') and not op.startswith('s_mul') \
                    and not op.startswith('s_getpc'):
                W += [('scc', 0)]
        elif op.startswith('v_'):
            k = 'valu'
            base = op.replace('_e32', '').replace('_e64', '').replace('_dpp', '')
            if base in TRANS:
                k = 'trans'
            if op.startswith('v_permlane') and 'swap' in op:
                W = allr[0] + allr[1]
                R = allr[0] + allr[1]
            else:
                W = list(allr[0])
                R = flat(allr[1:])
                if base.startswith('v_fmac') or base.startswith('v_dot2c') or '_dpp' in op:
                    R += allr[0]
                if re.match(r'v_(add|sub|subrev)_co_u32', base) or base.startswith('v_addc_co') :
                    W += allr[1]
                    R = flat(allr[2:])
        else:
            raise ValueError('unknown instruction: ' + text)
        self.kind = k
        self.reads = set(R)
        self.writes = set(W)
        c = 4
        if k == 'trans':
            c = 8
        elif k == 'mfma':
            c = 8
        elif k == 'label':
            c = 0
        self.cost = c

    @property
    def is_valu(self):
        return self.kind in ('valu', 'trans')

    @property
    def is_dot(self):
        return self.op.startswith('v_dot')


class Wait:
    kind = 'wait'
    cost = 0

    def __init__(self, counter, tags=None):
        self.counter = counter
        self.tags = tags


class Reset:
    kind = 'reset'
    cost = 0


class Prog:
    def __init__(self):
        self.items = []

    def __call__(self, text, tag=None):
        for line in text.strip().split('\n'):
            line = line.split(';')[0].strip()
            if line:
                self.items.append(Inst(line, tag))
        return self

    def wait_vm(self, *tags):
        self.items.append(Wait('vm', set(tags) if tags else None))

    def wait_lgkm(self, *tags):
        self.items.append(Wait('lgkm', set(tags) if tags else None))

    def extend(self, other):
        self.items.extend(other.items)

    def raw(self, text):
        self.items.append(('raw', text))


def interleave(main, filler, budget, first=0):
    out = Prog()
    f = list(filler.items)
    fi = 0
    n = 0
    carry = 0
    for it in main.items:
        out.items.append(it)
        if getattr(it, 'kind', None) == 'mfma':
            if n >= first:
                b = budget(n) if callable(budget) else budget
                carry = min(carry, 0) + b
                while fi < len(f) and carry > 0:
                    out.items.append(f[fi])
                    carry -= f[fi].cost
                    fi += 1
            n += 1
    left = Prog()
    left.items = f[fi:]
    return out, left


def _req(prev, cur):
    need = 0
    pk, ck = prev.kind, cur.kind
    raw = prev.writes & cur.reads
    vraw = {r for r in raw if r[0] in 'va'}
    waw = {r for r in (prev.writes & cur.writes) if r[0] in 'va'}
    if prev.is_valu:
        if vraw:
            if ck == 'mfma':
                need = max(need, 2)
            if cur.op.startswith('v_permlane') or '_dpp' in cur.op:
                need = max(need, 2)
            if cur.op.startswith('v_readfirstlane') or cur.op.startswith('v_readlane'):
                need = max(need, 1)
            if pk == 'trans' and ck == 'valu':
                need = max(need, 1)
        if prev.is_dot and (vraw or waw):
            if not (cur.op == prev.op and not waw - vraw and _only_srcc_dot(prev, cur)):
                need = max(need, 3)
        sraw = {r for r in raw if r[0] in ('s', 'vcc')}
        if sraw:
            if cur.is_valu or ck == 'mfma':
                need = max(need, 2)
            if cur.op.startswith('v_readlane') or cur.op.startswith('v_writelane'):
                need = max(need, 4)
            if ck in ('vload', 'vstore', 'dma'):
                need = max(need, 5)
            if ck in ('salu', 'branch', 'smem'):
                need = max(need, 1 if ck != 'branch' else 5)
    if pk == 'mfma':
        p = prev.passes
        big = 12 if p == 8 else 8
        ov = 10 if p == 8 else 6
        if ck == 'mfma':
            if prev.writes & set(cur.srcab):
                need = max(need, big)
            c = set(cur.srcc)
            if prev.writes & c:
                if not (c == prev.writes and cur.passes == p):
                    need = max(need, ov)
            elif waw:
                need = max(need, ov)
        else:
            if vraw or waw:
                need = max(need, big)
            if cur.is_valu and (set(prev.srcc) & cur.writes):
                need = max(need, 7 if p == 8 else 3)
    if pk == 'salu' and ('m0', 0) in prev.writes and ck == 'dma':
        need = max(need, 1)
    if pk == 'vstore' and prev.wide and (set(prev.data) & cur.writes):
        need = max(need, 2 if cur.is_valu else 1)
    return need


def _only_srcc_dot(prev, cur):
    ops = [o.strip() for o in cur.text.split(None, 1)[1].split(',')]
    ab = set(regs_of(ops[1]) + regs_of(ops[2]))
    return not (prev.writes & ab)


def finalize(prog, verbose=False):
    vmq = []
    lgq = []
    out = []
    hist = []
    stats = {'nops': 0, 'waits': 0}

    def emit(inst):
        if inst.kind not in ('label',):
            need = 0
            dist = 0
            for p in reversed(hist):
                if dist >= 20:
                    break
                r = _req(p[0], inst) if p[0] is not None else 0
                if r > dist:
                    need = max(need, r - dist)
                dist += p[1]
            while need > 0:
                n = min(need, 16)
                out.append('    s_nop %d' % (n - 1))
                hist.append((None, n))
                stats['nops'] += n
                need -= n
        out.append(inst.text if inst.kind == 'label' else '    ' + inst.text)
        if inst.op == 's_nop':
            hist.append((None, int(inst.text.split()[1]) + 1))
        elif inst.kind != 'label':
            hist.append((inst, 1))
        if len(hist) > 64:
            del hist[:32]

    def do_wait(vm=None, lg=None):
        parts = []
        if vm is not None and vm < len(vmq):
            n = min(vm, 63)
            parts.append('vmcnt(%d)' % n)
            del vmq[:len(vmq) - n]
        if lg is not None and lg < len(lgq):
            if any(i.kind == 'smem' for i in lgq):
                lg = 0
            n = min(lg, 15)
            parts.append('lgkmcnt(%d)' % n)
            del lgq[:len(lgq) - n]
        if parts:
            stats['waits'] += 1
            emit(Inst('s_waitcnt ' + ' '.join(parts)))

    for it in prog.items:
        if isinstance(it, tuple):
            out.append(it[1])
            continue
        if it.kind == 'wait':
            q = vmq if it.counter == 'vm' else lgq
            idx = -1
            for i, x in enumerate(q):
                if it.tags is None or x.tag in it.tags:
                    idx = i
            if idx >= 0:
                n = len(q) - 1 - idx
                if it.counter == 'vm':
                    do_wait(vm=n)
                else:
                    do_wait(lg=n)
            continue
        if it.kind == 'reset':
            continue
        touched = it.reads | it.writes
        vm = lg = None
        for i, x in enumerate(vmq):
            if x.writes & touched:
                vm = len(vmq) - 1 - i
        for i, x in enumerate(lgq):
            if x.writes & touched:
                lg = len(lgq) - 1 - i
        if vm is not None or lg is not None:
            do_wait(vm, lg)
        if it.op == 's_waitcnt':
            m = re.search(r'vmcnt\((\d+)\)', it.text)
            if m:
                n = int(m.group(1))
                if n < len(vmq):
                    del vmq[:len(vmq) - n]
            m = re.search(r'lgkmcnt\((\d+)\)', it.text)
            if m:
                n = int(m.group(1))
                if n < len(lgq):
                    assert n == 0 or not any(i.kind == 'smem' for i in lgq)
                    del lgq[:len(lgq) - n]
        if it.kind in ('vload', 'vstore', 'dma') and len(vmq) >= 63:
            stats['vmfull'] = stats.get('vmfull', 0) + 1
            do_wait(vm=62)
        emit(it)
        if it.kind in ('vload', 'vstore', 'dma'):
            vmq.append(it)
        elif it.kind in ('dsread', 'dswrite', 'smem'):
            lgq.append(it)
    if verbose:
        print('finalize:', stats, 'lines', len(out))
    return out
```

```python
import sys, os
sys.path.insert(0, os.path.dirname(os.path.abspath(__file__)))
from asmgen import Prog, interleave, finalize

NAME = 'recurrent_scan__linear_kernel_hedgehog__dense_activation_silu__prompt'

WQ_OFF = 0
WQ_J = 4 * 41 * 1024
W2_OFF = WQ_OFF + 16 * WQ_J
W2_C = 68 * 5120
HO_OFF = W2_OFF + 8 * W2_C
HO_R = 68 * 4096
KV_OFF = HO_OFF + 32 * HO_R
FL_OFF = KV_OFF + 16 * 2 * 16 * 1792
F1_OFF = FL_OFF
F2_OFF = F1_OFF + 1024
FH_OFF = F2_OFF + 4096
FO_OFF = FH_OFF + 4096
FK_OFF = FO_OFF + 4096
TS_OFF = FK_OFF + 4096
WS_SIZE = TS_OFF + 256 * 4 * 32 * 8
OOB = 0x80000000
SOOB = 0x40000000

NSLOT = 5
L_X = 0
L_W1 = 81920
L_EU = 143360
L_WT = 155648
L_CT = 159744
L_DUMMY = 161280
TILE = 41 * 1024
L_A, L_B, L_C = 0, TILE, 2 * TILE
L_ST = 3 * TILE
TSTR = 328
L_KVS = L_C
L_EX1 = 0
L_EX2 = 61440
LDS_BYTES = 163840

LOG2E = 0x3fb8aa3b


class Regs:
    def __init__(self, kind, n):
        self.kind = kind
        self.free = [True] * n
        self.names = {}

    def alloc(self, name, n=1, align=None):
        if align is None:
            align = 1 if n == 1 else (2 if n < 4 else 4)
        for b in range(0, len(self.free) - n + 1, align):
            if all(self.free[b:b + n]):
                for i in range(b, b + n):
                    self.free[i] = False
                self.names[name] = (b, n)
                return b
        raise RuntimeError('out of %s regs for %s: %s' % (self.kind, name, sorted(self.names.items(), key=lambda x: x[1])))

    def at(self, name, b, n):
        assert all(self.free[b:b + n]), (name, b, n)
        for i in range(b, b + n):
            self.free[i] = False
        self.names[name] = (b, n)
        return b

    def release(self, *names):
        for name in names:
            b, n = self.names.pop(name)
            for i in range(b, b + n):
                self.free[i] = True


def vr(b, n=1, k='v'):
    return '%s%d' % (k, b) if n == 1 else '%s[%d:%d]' % (k, b, b + n - 1)


def ar(b, n=1):
    return vr(b, n, 'a')


def sr(b, n=1):
    return vr(b, n, 's')


class Gen:
    def __init__(self, ts=False, stop=None, opts=None):
        self.ts = ts
        self.stop = stop
        self.o = opts or {}
        self.V = Regs('v', 256)
        self.S = Regs('s', 100)
        self.P = Prog()
        self.ool = []
        self.nts = 0
        self.nlab = 0

    def v(self, name, n=1):
        return self.V.alloc(name, n)

    def s(self, name, n=1):
        return self.S.alloc(name, n, align=(1 if n == 1 else (2 if n == 2 else 4)))

    def stamp(self, P=None):
        if not self.ts:
            return
        P = P or self.P
        b = self.sTS + 2 * self.nts
        P('s_memrealtime %s' % sr(b, 2))
        self.nts += 1

    def srd_load(self, name, off):
        b = self.s(name, 4)
        self.P('s_load_dwordx2 %s, s[0:1], %d' % (sr(b, 2), off))
        return b

    def srd(self, b, size):
        self.P('s_and_b32 s%d, s%d, 0xffff' % (b + 1, b + 1))
        self.P('s_mov_b32 s%d, 0x%x' % (b + 2, size))
        self.P('s_mov_b32 s%d, 0x20000' % (b + 3))
        return b

    def poll_issue(self, P, vdst, n, vaddr, tag):
        op = {1: 'dword', 4: 'dwordx4'}[n]
        P('buffer_load_%s %s, v%d, %s, 0 offen sc1' % (op, vr(vdst, n), vaddr, sr(self.sWS, 4)), tag)

    def poll_check(self, P, vdst, n, vaddr, code):
        self.nlab += 1
        L = 'Lpoll%d' % self.nlab
        t = self.vT0
        cmp_ = []
        if n == 1:
            cmp_.append('v_cmp_ne_u32 vcc, s%d, v%d' % (self.sNONCE, vdst))
        else:
            for i in range(4):
                cmp_.append('v_xor_b32 v%d, s%d, v%d' % (vdst + i, self.sNONCE, vdst + i))
            cmp_.append('v_or3_b32 v%d, v%d, v%d, v%d' % (t, vdst, vdst + 1, vdst + 2))
            cmp_.append('v_or_b32 v%d, v%d, v%d' % (t, t, vdst + 3))
            cmp_.append('v_cmp_ne_u32 vcc, 0, v%d' % t)
        for c in cmp_:
            P(c)
        P('s_cbranch_vccnz %s' % L)
        P('%s_ret:' % L)
        op = {1: 'dword', 4: 'dwordx4'}[n]
        txt = ['%s:' % L, '    s_mov_b32 s%d, 0x20000' % self.sCNT, '%s_loop:' % L,
               '    s_nop 7',
               '    buffer_load_%s %s, v%d, %s, 0 offen sc1' % (op, vr(vdst, n), vaddr, sr(self.sWS, 4)),
               '    s_waitcnt vmcnt(0)']
        txt += ['    ' + c for c in cmp_]
        txt += ['    s_nop 7', '    s_cbranch_vccz %s_done' % L,
                '    s_sub_u32 s%d, s%d, 1' % (self.sCNT, self.sCNT),
                '    s_cmp_lg_u32 s%d, 0' % self.sCNT,
                '    s_cbranch_scc1 %s_loop' % L,
                '%s_done:' % L, '    s_nop 7', '    s_branch %s_ret' % L]
        self.ool.append('\n'.join(txt))

    def flag_store(self, P, vaddr):
        P('buffer_store_dword v%d, v%d, %s, 0 offen sc1' % (self.vNONCE, vaddr, sr(self.sWS, 4)), 'flag')

    def xswap_sum(self, P, a, t, op='v_add_f32', swap='v_permlane32_swap_b32'):
        P('v_mov_b32 v%d, v%d' % (t, a))
        P('%s v%d, v%d' % (swap, a, t))
        P('%s v%d, v%d, v%d' % (op, a, a, t))

    def build(self):
        P = self.P
        S, V = self.S, self.V
        S.at('karg', 0, 2)
        S.at('wg', 2, 1)
        V.at('tid', 0, 1)
        sWG = 2
        P('s_cmp_ge_u32 s2, 256')
        P('s_cbranch_scc1 Lend')
        sX = self.srd_load('X', 0); sWQ = self.srd_load('WQKV', 8); sW1 = self.srd_load('W1', 40)
        sWS = self.sWS = self.srd_load('WS', 72)
        sWP = self.srd_load('WPHI', 16); sDB = self.srd_load('DBG', 64); sW2 = self.srd_load('W2', 48)
        sWO = self.srd_load('WO', 24); sOUT = self.srd_load('OUT', 56)
        if self.ts:
            self.sTS = self.s('ts', 36)
        self.stamp()
        sPC = self.s('pc', 2)
        P('s_getpc_b64 %s' % sr(sPC, 2))
        vLane = self.v('lane')
        vL16 = self.v('l16')
        vJunk = self.v('junk', 4)
        t0 = self.vT0 = self.v('t0')
        t1 = self.v('t1'); t2 = self.v('t2'); t3 = self.v('t3')
        sL = self.s('l'); sW = self.s('w'); sT = self.s('st'); sT2 = self.s('st2')
        P('s_lshr_b32 s%d, s2, 3' % sL)
        P('s_lshl_b32 s%d, s%d, 12' % (sT, sL))
        P('v_lshlrev_b32 v%d, 4, v0' % t0)
        P('v_add_u32 v%d, s%d, v%d' % (t0, sT, t0))
        sCS = self.s('codesz')
        P('s_mov_b32 s%d, Lcode_end-Lcode_pc-16' % sCS)
        P('v_min_u32 v%d, s%d, v%d' % (t0, sCS, t0))
        P('global_load_dwordx4 %s, v%d, %s' % (vr(vJunk, 4), t0, sr(sPC, 2)), 'pref')
        S.release('codesz')
        P('v_and_b32 v%d, 63, v0' % vLane)
        P('v_lshrrev_b32 v%d, 6, v0' % t1)
        P('v_lshlrev_b32 v%d, 4, v%d' % (vL16, vLane))
        P('v_readfirstlane_b32 s%d, v%d' % (sW, t1))
        sR = self.s('r'); sJ = self.s('j'); sR3 = self.s('R3'); sC3 = self.s('c3')
        P('s_bfe_u32 s%d, s2, 0x20001' % sT)
        P('s_lshr_b32 s%d, s%d, 3' % (sT2, sL))
        P('s_lshl2_add_u32 s%d, s%d, s%d' % (sR, sT, sT2))
        P('s_lshr_b32 s%d, s%d, 2' % (sT2, sL))
        P('s_lshl3_add_u32 s%d, s%d, s%d' % (sR3, sT, sT2))
        P('s_and_b32 s%d, s2, 1' % sT)
        P('s_and_b32 s%d, s%d, 7' % (sT2, sL))
        P('s_lshl3_add_u32 s%d, s%d, s%d' % (sJ, sT, sT2))
        P('s_and_b32 s%d, s%d, 3' % (sT2, sL))
        P('s_lshl2_add_u32 s%d, s%d, s%d' % (sC3, sT, sT2))
        self.sW, self.sR, self.sJ, self.sR3, self.sC3, self.sT, self.sT2 = sW, sR, sJ, sR3, sC3, sT, sT2
        self.vLane, self.vL16 = vLane, vL16

        sKQ = self.s('kq'); sLn = self.s('Ln')
        P('s_and_b32 s%d, s2, 7' % sKQ)
        vEU = self.v('eu')
        P('v_lshrrev_b32 v%d, 3, v%d' % (t1, vLane))
        P('v_and_b32 v%d, 7, v%d' % (t2, vLane))
        P('s_mul_i32 s%d, s%d, %d' % (sT, sKQ, 80 * 3840))
        P('s_lshl_b32 s%d, s%d, 7' % (sT2, sL))
        P('s_add_u32 s%d, s%d, s%d' % (sT, sT, sT2))
        P('s_cmp_lt_u32 s2, 240')
        P('s_cselect_b32 s%d, s%d, 0x%x' % (sT, sT, OOB))
        P('v_mul_u32_u24 v%d, 3840, v%d' % (vEU, t1))
        P('v_lshl_add_u32 v%d, v%d, 4, v%d' % (vEU, t2, vEU))
        P('v_add_u32 v%d, s%d, v%d' % (vEU, sT, vEU))
        vX = self.v('xd', 4)
        P('v_lshrrev_b32 v%d, 1, v%d' % (t3, t1))
        P('v_xor_b32 v%d, v%d, v%d' % (t3, t3, t2))
        P('s_lshl_b32 s%d, s%d, 2' % (sT, sR))
        P('s_add_u32 s%d, s%d, s%d' % (sT, sT, sW))
        P('s_mul_i32 s%d, s%d, %d' % (sT, sT, 32 * 1280))
        P('v_mul_u32_u24 v%d, 1280, v%d' % (vX, t1))
        P('v_lshl_add_u32 v%d, v%d, 4, v%d' % (vX, t3, vX))
        P('v_add_u32 v%d, s%d, v%d' % (vX, sT, vX))
        P('v_xor_b32 v%d, 64, v%d' % (vX + 1, vX))
        P('v_add_u32 v%d, %d, v%d' % (vX + 1, 8 * 1280, vX + 1))
        P('v_add_u32 v%d, %d, v%d' % (vX + 2, 16 * 1280, vX))
        P('v_add_u32 v%d, %d, v%d' % (vX + 3, 16 * 1280, vX + 1))
        vW1 = self.v('w1d', 3)
        P('s_mul_i32 s%d, s%d, 192' % (sT, sW))
        P('s_mul_i32 s%d, s%d, 192' % (sT2, sJ))
        for i in range(3):
            P('v_add_u32 v%d, s%d, v%d' % (t1, sT, vLane))
            if i:
                P('v_add_u32 v%d, %d, v%d' % (t1, 64 * i, t1))
            P('v_mul_u32_u24 v%d, 43691, v%d' % (t2, t1))
            P('v_lshrrev_b32 v%d, 19, v%d' % (t2, t2))
            P('v_mul_u32_u24 v%d, 12, v%d' % (t3, t2))
            P('v_sub_u32 v%d, v%d, v%d' % (t3, t1, t3))
            P('v_mul_u32_u24 v%d, 3072, v%d' % (t2, t2))
            P('v_lshl_add_u32 v%d, v%d, 4, v%d' % (t2, t3, t2))
            P('v_add_u32 v%d, s%d, v%d' % (vW1 + i, sT2, t2))
        P.wait_lgkm()
        self.srd(sWQ, 640 * 3840)
        self.srd(sX, 2048 * 1280)
        self.srd(sW1, 640 * 3072)
        sM = self.s('m')
        sSO = self.s('so')
        P('s_lshl_b32 s%d, s%d, 10' % (sM, sW))
        P('s_mul_i32 s%d, s%d, %d' % (sSO, sW, 8 * 3840))
        for i in range(3):
            P('s_add_u32 m0, s%d, %d' % (sM, L_EU + 4096 * i))
            if i == 2:
                P('s_cmp_lt_u32 s%d, 2' % sW)
                P('s_cselect_b32 s%d, s%d, 0x%x' % (sSO, sSO, SOOB))
            P('buffer_load_dwordx4 v%d, %s, s%d offen lds' % (vEU, sr(sWQ, 4), sSO), 'eu')
            if i < 2:
                P('s_add_u32 s%d, s%d, %d' % (sSO, sSO, 32 * 3840))
        V.release('eu')
        sMX = self.s('mx'); sMW = self.s('mw')
        P('s_mul_i32 s%d, s%d, %d' % (sMX, sW, NSLOT * 4096))
        P('s_mul_i32 s%d, s%d, 3072' % (sMW, sW))

        def stage_dma(s):
            Q = Prog()
            slot = s % NSLOT
            Q('s_movk_i32 s%d, %d' % (sSO, s * 128))
            for u in range(4):
                Q('s_add_u32 m0, s%d, %d' % (sMX, L_X + slot * 4096 + u * 1024))
                Q('buffer_load_dwordx4 v%d, %s, s%d offen lds' % (vX + u, sr(sX, 4), sSO), 'st%d' % s)
            Q('s_mov_b32 s%d, %d' % (sSO, s * 64 * 3072))
            for i in range(3):
                Q('s_add_u32 m0, s%d, %d' % (sMW, L_W1 + slot * 12288 + i * 1024))
                Q('buffer_load_dwordx4 v%d, %s, s%d offen lds' % (vW1 + i, sr(sW1, 4), sSO), 'st%d' % s)
            return Q
        for s in range(NSLOT - 1):
            P.extend(stage_dma(s))
        self.stamp()
        self.srd(sWS, WS_SIZE)
        self.srd(sWP, 32 * 800)
        self.srd(sDB, 256)
        self.srd(sW2, 1536 * 1280)
        self.srd(sWO, 640 * 1280)
        self.srd(sOUT, 2048 * 1280)
        S.release('WQKV')
        self.sNONCE = self.s('nonce'); self.sCNT = self.s('cnt')
        self.vNONCE = self.v('nonce')
        vF = self.v('fa')
        sRT = self.s('rt', 2)
        P('s_memrealtime %s' % sr(sRT, 2))
        vWL = self.v('wl', 2)
        P('s_mul_i32 s%d, s%d, 1600' % (sT, sJ))
        P('v_lshlrev_b32 v%d, 2, v0' % t1)
        P('buffer_load_dword v%d, v%d, %s, s%d offen' % (vWL, t1, sr(sWP, 4), sT))
        P('buffer_load_dword v%d, v%d, %s, s%d offen offset:800' % (vWL + 1, t1, sr(sWP, 4), sT))
        P('s_or_b32 s%d, s%d, 1' % (sRT, sRT))
        P('v_mov_b32 v%d, s%d' % (t2, sRT))
        P('s_lshl_b32 s%d, s2, 10' % sT)
        P('v_add_u32 v%d, s%d, v0' % (t3, sT))
        P('v_lshlrev_b32 v%d, 8, v%d' % (t3, t3))
        P('buffer_store_dword v%d, v%d, %s, 0 offen sc1' % (t2, t3, sr(sDB, 4)), 'nonce')
        S.release('rt')
        vZero = self.v('zero')
        P('v_mov_b32 v%d, 0' % vZero)
        P('buffer_load_dword v%d, v%d, %s, 0 offen sc1' % (self.vNONCE, vZero, sr(sDB, 4)), 'noncel')
        vZ4 = self.v('z4', 4)
        for i in range(4):
            P('v_mov_b32 v%d, 0' % (vZ4 + i))
        P('v_lshlrev_b32 v%d, 4, v0' % t1)
        P('v_add_u32 v%d, %d, v%d' % (t1, L_WT, t1))
        P('ds_write_b128 v%d, %s' % (t1, vr(vZ4, 4)))
        V.release('z4')
        vG = self.v('g'); vR4 = self.v('r4'); vC4 = self.v('c4'); vHF = self.v('hf'); vT32 = self.v('t32')
        P('v_lshrrev_b32 v%d, 4, v%d' % (vG, vLane))
        P('v_bfe_u32 v%d, v%d, 2, 2' % (vR4, vLane))
        P('v_and_b32 v%d, 3, v%d' % (vC4, vLane))
        P('v_lshrrev_b32 v%d, 5, v%d' % (vHF, vLane))
        P('v_and_b32 v%d, 31, v%d' % (vT32, vLane))
        self.vG, self.vR4, self.vC4, self.vHF, self.vT32 = vG, vR4, vC4, vHF, vT32
        vSEL = self.v('sel', 4)
        sONE = self.s('ones')
        P('s_mov_b32 s%d, 0x3f803f80' % sONE)
        P('v_xor_b32 v%d, v%d, v%d' % (t1, vG, vR4))
        P('v_and_b32 v%d, 1, v%d' % (t1, t1))
        P('v_cmp_eq_u32 vcc, 0, v%d' % t1)
        P('v_mov_b32 v%d, s%d' % (t2, sONE))
        for i in range(4):
            P('v_cndmask_b32 v%d, 0, v%d, vcc' % (vSEL + i, t2))
        vXR = self.v('xr', 4)
        P('v_bfe_u32 v%d, v%d, 1, 3' % (t1, vLane))
        P('v_xor_b32 v%d, v%d, v%d' % (t1, t1, vHF))
        P('v_lshlrev_b32 v%d, 4, v%d' % (t1, t1))
        P('v_lshl_add_u32 v%d, v%d, 7, v%d' % (t1, vT32, t1))
        P('v_add_u32 v%d, s%d, v%d' % (vXR, sMX, t1))
        for u in range(1, 4):
            P('v_xor_b32 v%d, %d, v%d' % (vXR + u, 32 * u, vXR))
        vWR = self.v('wr')
        P('v_lshl_add_u32 v%d, v%d, 3, v%d' % (t1, vHF, vR4))
        P('v_mul_u32_u24 v%d, 192, v%d' % (t1, t1))
        P('v_and_b32 v%d, 1, v%d' % (t2, vG))
        P('v_lshl_add_u32 v%d, v%d, 5, v%d' % (t1, t2, t1))
        P('v_lshl_add_u32 v%d, v%d, 3, v%d' % (t1, vC4, t1))
        P('v_add_u32 v%d, %d, v%d' % (vWR, L_W1, t1))
        vES = self.v('es'); vES2 = self.v('es2'); vEC = self.v('ec'); vER = self.v('er')
        sSec = self.s('sec')
        P('s_mul_i32 s%d, s%d, 205' % (sSec, sL))
        P('s_lshr_b32 s%d, s%d, 11' % (sSec, sSec))
        P('s_mul_i32 s%d, s%d, 10' % (sT, sSec))
        P('s_sub_u32 s%d, s%d, s%d' % (sT, sL, sT))
        P('s_lshl_b32 s%d, s%d, 6' % (sT, sT))
        P('s_lshl4_add_u32 s%d, s%d, s%d' % (sT, sW, sT))
        P('s_mul_i32 s%d, s%d, 40' % (sT2, sSec))
        P('s_sub_u32 s%d, s%d, 40' % (sT2, sT2))
        P('s_cmp_eq_u32 s%d, 0' % sSec)
        P('s_cselect_b32 s%d, 80, s%d' % (sT2, sT2))
        P('v_and_b32 v%d, 15, v%d' % (t1, vLane))
        P('v_add_u32 v%d, s%d, v%d' % (t1, sT, t1))
        P('v_mul_u32_u24 v%d, 1639, v%d' % (t2, t1))
        P('v_lshrrev_b32 v%d, 16, v%d' % (t2, t2))
        P('v_mul_u32_u24 v%d, 40, v%d' % (t3, t2))
        P('v_sub_u32 v%d, v%d, v%d' % (t1, t1, t3))
        P('v_add_u32 v%d, s%d, v%d' % (t1, sT2, t1))
        P('v_mul_u32_u24 v%d, %d, v%d' % (t2, WQ_J, t2))
        P('v_lshrrev_b32 v%d, 5, v%d' % (t3, t1))
        P('v_mul_u32_u24 v%d, %d, v%d' % (t3, TILE, t3))
        P('v_add_u32 v%d, v%d, v%d' % (t2, t2, t3))
        P('v_and_b32 v%d, 31, v%d' % (t1, t1))
        P('v_lshl_add_u32 v%d, v%d, 4, v%d' % (t2, t1, t2))
        P('s_cmp_lt_u32 s2, 240')
        P('s_cselect_b32 s%d, %d, 0x%x' % (sT, WQ_OFF, OOB))
        P('v_add_u32 v%d, s%d, v%d' % (t2, sT, t2))
        P('s_lshr_b32 s%d, s%d, 2' % (sT, sKQ))
        P('s_lshl_b32 s%d, s%d, 9' % (sT, sT))
        P('s_and_b32 s%d, s%d, 3' % (sT2, sKQ))
        P('s_lshl2_add_u32 s%d, s%d, s%d' % (sT, sT2, sT))
        P('s_add_u32 s%d, s%d, %d' % (sT, sT, 40 * 1024))
        P('v_add_u32 v%d, s%d, v%d' % (vEC, sT, t2))
        P('v_cmp_gt_u32 vcc, 16, v%d' % vLane)
        P('v_mov_b32 v%d, 0x%x' % (t3, OOB))
        P('v_cndmask_b32 v%d, v%d, v%d, vcc' % (vEC, t3, vEC))
        P('s_mul_i32 s%d, s%d, 5120' % (sT, sKQ))
        P('v_and_b32 v%d, 1, v%d' % (t1, vG))
        P('v_lshl_add_u32 v%d, v%d, 9, v%d' % (t2, t1, t2))
        P('v_lshl_add_u32 v%d, v%d, 10, v%d' % (t2, vHF, t2))
        P('v_add_u32 v%d, s%d, v%d' % (vES, sT, t2))
        P('v_cmp_gt_u32 vcc, 32, v%d' % vLane)
        P('v_add_u32 v%d, 4096, v%d' % (vES2, vES))
        P('v_cndmask_b32 v%d, v%d, v%d, vcc' % (vES2, t3, vES2))
        P('v_lshl_add_u32 v%d, v%d, 3, v%d' % (t1, vG, vR4))
        P('v_lshlrev_b32 v%d, 7, v%d' % (t1, t1))
        P('v_lshl_add_u32 v%d, v%d, 3, v%d' % (t1, vC4, t1))
        P('s_lshl_b32 s%d, s%d, 5' % (sT, sW))
        P('s_add_u32 s%d, s%d, %d' % (sT, sT, L_EU))
        P('v_add_u32 v%d, s%d, v%d' % (vER, sT, t1))
        S.release('sec', 'kq', 'Ln')
        vWA = self.v('wa')
        P('v_mul_u32_u24 v%d, 6554, v0' % t1)
        P('v_lshrrev_b32 v%d, 16, v%d' % (t1, t1))
        P('v_mul_u32_u24 v%d, 10, v%d' % (t2, t1))
        P('v_sub_u32 v%d, v0, v%d' % (t2, t2))
        P('v_cmp_le_u32 vcc, 5, v%d' % t2)
        P('v_cndmask_b32 v%d, 0, 1, vcc' % t3)
        P('v_lshlrev_b32 v%d, 6, v%d' % (t1, t1))
        P('v_lshl_add_u32 v%d, v%d, 3, v%d' % (t1, t3, t1))
        P('v_mul_u32_u24 v%d, 5, v%d' % (t3, t3))
        P('v_sub_u32 v%d, v%d, v%d' % (t2, t2, t3))
        P('v_lshrrev_b32 v%d, 1, v%d' % (t3, t2))
        P('v_lshl_add_u32 v%d, v%d, 4, v%d' % (t1, t3, t1))
        P('v_and_b32 v%d, 1, v%d' % (t2, t2))
        P('v_lshl_add_u32 v%d, v%d, 2, v%d' % (t1, t2, t1))
        P('v_add_u32 v%d, %d, v%d' % (t1, L_WT, t1))
        P('v_cmp_gt_u32 vcc, 200, v0')
        P('v_mov_b32 v%d, %d' % (t2, L_DUMMY - 2304))
        P('v_cndmask_b32 v%d, v%d, v%d, vcc' % (vWA, t2, t1))
        P('v_mov_b32 v%d, %d' % (t2, L_DUMMY))
        P('v_cndmask_b32 v%d, v%d, v%d, vcc' % (t1, t2, t1))
        P.wait_vm('eu')
        P.wait_lgkm()
        P('s_barrier')
        vE = self.v('e', 12)
        for p in range(3):
            for run in range(2):
                P('ds_read_b64_tr_b16 %s, v%d offset:%d' % (vr(vE + 4 * p + 2 * run, 2), vER, p * 4096 + run * 512))
        for p in range(3):
            a = vES if p < 2 else vES2
            P('buffer_store_dwordx4 %s, v%d, %s, 0 offen offset:%d sc1' %
              (vr(vE + 4 * p, 4), a, sr(sWS, 4), 2048 if p == 1 else 0), 'eus')
        P('v_mov_b32 v%d, 0' % t2)
        for i in range(12):
            P('v_dot2_f32_bf16 v%d, v%d, s%d, v%d' % (t2, vE + i, sONE, t2))
        self.xswap_sum(P, t2, t3)
        self.xswap_sum(P, t2, t3, swap='v_permlane16_swap_b32')
        P('v_cvt_pk_bf16_f32 v%d, v%d, v%d' % (t3, t2, t2))
        P('v_lshlrev_b32 v%d, 16, v%d' % (t3, t3))
        P('v_sub_f32 v%d, v%d, v%d' % (t3, t2, t3))
        P('v_cvt_pk_bf16_f32 v%d, v%d, v%d' % (t2, t2, t3))
        P('buffer_store_dword v%d, v%d, %s, 0 offen sc1' % (t2, vEC, sr(sWS, 4)), 'eus')
        V.release('e', 'es', 'es2', 'ec', 'er')
        P('ds_write_b32 v%d, v%d' % (t1, vWL))
        P('ds_write_b32 v%d, v%d offset:%d' % (vWA, vWL + 1, 2048 + 256))
        V.release('wl', 'wa')
        S.release('WPHI')
        self.stamp()

        vH = self.v('accH', 48)
        vWF = self.v('wf', 24)
        vXC = self.v('xc', 8)
        vCS = self.v('cs', 12)
        vSUM = self.v('sum', 4)
        vSS = self.v('ss', 2)
        vWP = self.v('wphi', 16)
        P('v_mov_b32 v%d, 0' % vSS)
        P('v_mov_b32 v%d, 0' % (vSS + 1))
        for i in range(12):
            P('v_mov_b32 v%d, 0' % (vCS + i))

        def rd_step(Q, s, u):
            slot = s % NSLOT
            ks = 4 * s + u
            b = ks & 1
            Q('ds_read_b128 %s, v%d offset:%d' % (ar(4 * ks, 4), vXR + u, slot * 4096))
            for T in range(3):
                for run in range(2):
                    Q('ds_read_b64_tr_b16 %s, v%d offset:%d' %
                      (vr(vWF + 12 * b + 4 * T + 2 * run, 2), vWR, slot * 12288 + (16 * u + 4 * run) * 192 + T * 64))
            Q('ds_read_b128 %s, v%d offset:%d' % (vr(vXC + 4 * b, 4), vXR + u, slot * 4096))

        for s in range(10):
            P.wait_vm('st%d' % s)
            P.wait_lgkm()
            P('s_barrier')
            if s == 0:
                P('v_lshl_add_u32 v%d, v%d, 2, v%d' % (t1, vHF, vR4))
                P('v_lshlrev_b32 v%d, 6, v%d' % (t1, t1))
                P('v_and_b32 v%d, 1, v%d' % (t2, vG))
                P('v_lshl_add_u32 v%d, v%d, 5, v%d' % (t1, t2, t1))
                P('v_lshl_add_u32 v%d, v%d, 3, v%d' % (t1, vC4, t1))
                P('v_add_u32 v%d, %d, v%d' % (t1, L_WT, t1))
                for hh in range(2):
                    for win in range(2):
                        for run in range(2):
                            P('ds_read_b64_tr_b16 %s, v%d offset:%d' %
                              (vr(vWP + 8 * hh + 4 * win + 2 * run, 2), t1, hh * 2048 + (16 * win + 8 * run) * 64))
            rd_step(P, s, 0)
            if s + NSLOT - 1 < 10:
                P.extend(stage_dma(s + NSLOT - 1))
            if s == 4:
                self.nonce_check(P, sDB, vZero)
                P('s_lshl_b32 s%d, s2, 2' % sT)
                P('s_add_u32 s%d, s%d, %d' % (sT, sT, F1_OFF))
                P('v_mov_b32 v%d, s%d' % (vF, sT))
                P('v_cmp_eq_u32 vcc, 0, v0')
                P('v_mov_b32 v%d, 0x%x' % (t1, OOB))
                P('v_cndmask_b32 v%d, v%d, v%d, vcc' % (vF, t1, vF))
                self.flag_store(P, vF)
            for u in range(4):
                ks = 4 * s + u
                b = ks & 1
                if u < 3:
                    rd_step(P, s, u + 1)
                for T in range(3):
                    c = '0' if ks == 0 else vr(vH + 16 * T, 16)
                    P('v_mfma_f32_32x32x16_bf16 %s, %s, %s, %s' %
                      (vr(vH + 16 * T, 16), vr(vWF + 12 * b + 4 * T, 4), ar(4 * ks, 4), c))
                c = '0' if ks == 0 else vr(vSUM, 4)
                P('v_mfma_f32_16x16x32_bf16 %s, %s, %s, %s' % (vr(vSUM, 4), vr(vSEL, 4), ar(4 * ks, 4), c))
                self.nlab += 1
                L = 'Lcs%d' % self.nlab
                P('s_cmp_lg_u32 s%d, %d' % (sW, u))
                P('s_cbranch_scc1 %s' % L)
                for T in range(3):
                    P('v_mfma_f32_16x16x32_bf16 %s, %s, %s, %s' %
                      (vr(vCS + 4 * T, 4), vr(vSEL, 4), vr(vWF + 12 * b + 4 * T, 4), vr(vCS + 4 * T, 4)))
                P('%s:' % L)
                for i in range(4):
                    P('v_dot2_f32_bf16 v%d, v%d, v%d, v%d' %
                      (vSS + (i & 1), vXC + 4 * b + i, vXC + 4 * b + i, vSS + (i & 1)))
        self.stamp()
        V.release('xd', 'w1d', 'xr', 'wr', 'xc', 'sel', 'zero')
        S.release('mx', 'mw', 'W1', 'DBG')
        vPL = self.v('pl', 4)
        vPA = self.v('pa')
        P('v_min_u32 v%d, 59, v%d' % (vPA, vLane))
        P('v_lshlrev_b32 v%d, 4, v%d' % (vPA, vPA))
        P('v_add_u32 v%d, %d, v%d' % (vPA, F1_OFF, vPA))
        self.poll_issue(P, vPL, 4, vPA, 'f1')
        P('v_lshlrev_b32 v%d, 4, v%d' % (t1, vT32))
        P('v_add_u32 v%d, %d, v%d' % (t1, L_CT, t1))
        vCA = self.v('ca')
        P('s_lshl_b32 s%d, s%d, 2' % (sT, sW))
        P('v_add_u32 v%d, s%d, v%d' % (vCA, sT, t1))
        for T in range(3):
            a = vCS + 4 * T
            P('v_cvt_pk_bf16_f32 v%d, v%d, v%d' % (t3, a, a))
            P('v_lshlrev_b32 v%d, 16, v%d' % (t3, t3))
            P('v_sub_f32 v%d, v%d, v%d' % (t3, a, t3))
            P('v_cvt_pk_bf16_f32 v%d, v%d, v%d' % (a + 1, a, t3))
            P('ds_write_b32 v%d, v%d offset:%d' % (vCA, a + 1, T * 512))
        V.release('ca')
        vRS = self.v('rstd')
        vNM = self.v('negm', 4)
        vNH = self.v('negmh', 4)
        P('v_add_f32 v%d, v%d, v%d' % (vSS, vSS, vSS + 1))
        self.xswap_sum(P, vSS, t2)
        P('v_mul_f32 v%d, 0x3acccccd, v%d' % (t2, vSUM))
        P('v_mul_f32 v%d, 0x3acccccd, v%d' % (vSS, vSS))
        P('v_fma_f32 v%d, -v%d, v%d, v%d' % (vSS, t2, t2, vSS))
        P('v_max_f32 v%d, 0, v%d' % (vSS, vSS))
        P('v_cvt_pk_bf16_f32 v%d, v%d, v%d' % (vSS, vSS, vSS))
        P('v_lshlrev_b32 v%d, 16, v%d' % (vSS, vSS))
        P('v_add_f32 v%d, 0x3727c5ac, v%d' % (vSS, vSS))
        P('v_cvt_pk_bf16_f32 v%d, v%d, v%d' % (vSS, vSS, vSS))
        P('v_lshlrev_b32 v%d, 16, v%d' % (vSS, vSS))
        P('v_sqrt_f32 v%d, v%d' % (vSS, vSS))
        P('v_cvt_pk_bf16_f32 v%d, v%d, v%d' % (vSS, vSS, vSS))
        P('v_lshlrev_b32 v%d, 16, v%d' % (vSS, vSS))
        P('v_rcp_f32 v%d, v%d' % (vRS, vSS))
        P('v_cvt_pk_bf16_f32 v%d, -v%d, -v%d' % (vNM, t2, t2))
        P('v_lshlrev_b32 v%d, 16, v%d' % (t3, vNM))
        P('v_mul_f32 v%d, 0.5, v%d' % (t3, t3))
        P('v_cvt_pk_bf16_f32 v%d, v%d, v%d' % (vNH, t3, t3))
        for i in range(1, 4):
            P('v_mov_b32 v%d, v%d' % (vNM + i, vNM))
            P('v_mov_b32 v%d, v%d' % (vNH + i, vNH))
        V.release('ss', 'sum')
        P.wait_lgkm()
        P('s_barrier')
        for T in range(3):
            P('ds_read_b128 %s, v%d offset:%d' % (vr(vWF + 4 * T, 4), t1, T * 512))
        self.poll_check(P, vPL, 4, vPA, 1)
        self.stamp()
        sTB = self.s('tb')
        sMB = self.s('mb')
        P('s_mul_i32 s%d, s%d, %d' % (sTB, sJ, WQ_J))
        P('s_mul_i32 s%d, s%d, 10240' % (sMB, sW))

        def tile_dma(T, lds):
            Q = Prog()
            for grp in range(3):
                Q('s_add_u32 s%d, s%d, s%d' % (sSO, sTB, sMB))
                Q('s_add_u32 s%d, s%d, %d' % (sSO, sSO, WQ_OFF + T * TILE + grp * 4096))
                Q('s_add_u32 m0, s%d, %d' % (sMB, lds + grp * 4096))
                for i in range(4 if grp < 2 else 2):
                    Q('buffer_load_dwordx4 v%d, %s, s%d offen offset:%d sc1 lds' % (vL16, sr(sWS, 4), sSO, i * 1024),
                      'tile%d' % T)
            Q('s_add_u32 s%d, s%d, %d' % (sSO, sTB, WQ_OFF + T * TILE + 40960))
            Q('s_mov_b32 m0, %d' % (lds + 40960))
            Q('buffer_load_dwordx4 v%d, %s, s%d offen sc1 lds' % (vL16, sr(sWS, 4), sSO), 'tile%d' % T)
            return Q
        P.extend(tile_dma(0, L_A))
        P.extend(tile_dma(1, L_B))
        for T in range(3):
            P('v_mfma_f32_32x32x16_bf16 %s, %s, %s, %s' %
              (vr(vH + 16 * T, 16), vr(vWF + 4 * T, 4), vr(vNH, 4), vr(vH + 16 * T, 16)))
        P.extend(tile_dma(2, L_C))
        V.release('negmh', 'cs')
        sU = self.s('u'); sKS = self.s('ks'); sSel = self.s('sel', 4); sRB = self.s('rb')
        P('s_lshl_b32 s%d, s%d, 8' % (sU, sW))
        P('s_add_u32 s%d, s%d, s2' % (sU, sU))
        P('s_lshr_b32 s%d, s%d, 3' % (sKS, sU))
        P('s_cmp_lt_u32 s%d, 48' % sKS)
        for i in range(4):
            P('s_cselect_b32 s%d, s%d, s%d' % (sSel + i, sW2 + i, sWO + i))
        vUA = self.v('ua')
        P('s_and_b32 s%d, s%d, 7' % (sT, sU))
        P('s_mul_i32 s%d, s%d, 160' % (sT, sT))
        P('s_cmp_lt_u32 s%d, 544' % sU)
        P('s_cselect_b32 s%d, s%d, 0x%x' % (sT, sT, OOB))
        P('v_mul_u32_u24 v%d, 1280, v%d' % (vUA, vG))
        P('v_and_b32 v%d, 15, v%d' % (t2, vLane))
        P('v_lshl_add_u32 v%d, v%d, 4, v%d' % (vUA, t2, vUA))
        P('v_add_u32 v%d, s%d, v%d' % (vUA, sT, vUA))
        P('v_cmp_gt_u32 vcc, 10, v%d' % t2)
        P('v_mov_b32 v%d, 0x%x' % (t3, OOB))
        P('v_cndmask_b32 v%d, v%d, v%d, vcc' % (vUA, t3, vUA))
        P('s_lshl_b32 s%d, s%d, 13' % (sM, sW))
        sG5 = self.s('g5'); sCC = self.s('cc'); sRW = self.s('rw')
        for g in range(4):
            P('s_sub_u32 s%d, s%d, 48' % (sG5, sKS))
            P('s_lshl2_add_u32 s%d, s%d, %d' % (sG5, sG5, g))
            P('s_and_b32 s%d, s%d, 0xff' % (sG5, sG5))
            P('s_mul_i32 s%d, s%d, 205' % (sCC, sG5))
            P('s_lshr_b32 s%d, s%d, 10' % (sCC, sCC))
            P('s_mul_i32 s%d, s%d, 40' % (sRB, sCC))
            P('s_mul_i32 s%d, s%d, 5' % (sCC, sCC))
            P('s_sub_u32 s%d, s%d, s%d' % (sCC, sG5, sCC))
            P('s_lshr_b32 s%d, s%d, 1' % (sT, sCC))
            P('s_mul_i32 s%d, s%d, 20' % (sT, sT))
            P('s_and_b32 s%d, s%d, 1' % (sT2, sCC))
            P('s_lshl3_add_u32 s%d, s%d, s%d' % (sT, sT2, sT))
            P('s_cmp_eq_u32 s%d, 4' % sCC)
            P('s_cselect_b32 s%d, 16, s%d' % (sT, sT))
            P('s_cselect_b32 s%d, 20, 4' % sT2)
            P('s_add_u32 s%d, s%d, s%d' % (sRB, sRB, sT))
            P('s_lshl_b32 s%d, s%d, 5' % (sT, sKS))
            P('s_add_u32 s%d, s%d, %d' % (sT, sT, 16 * (g >> 1) + 4 * (g & 1)))
            P('s_cmp_lt_u32 s%d, 48' % sKS)
            P('s_cselect_b32 s%d, s%d, s%d' % (sRB, sT, sRB))
            P('s_cselect_b32 s%d, 8, s%d' % (sT2, sT2))
            for run in range(2):
                if run:
                    P('s_add_u32 s%d, s%d, s%d' % (sRB, sRB, sT2))
                P('s_mul_i32 s%d, s%d, 1280' % (sRW, sRB))
                P('s_add_u32 m0, s%d, %d' % (sM, L_ST + (2 * g + run) * 1024))
                P('buffer_load_dwordx4 v%d, %s, s%d offen lds' % (vUA, sr(sSel, 4), sRW), 'w2u')
        S.release('g5', 'cc', 'rw', 'rb', 'sel', 'W2', 'WO')
        V.release('ua')
        vHA = self.v('ha')
        sHB = self.s('hb')
        P('s_lshr_b32 s%d, s%d, 1' % (sT, sW))
        P('s_lshl1_add_u32 s%d, s%d, s%d' % (sHB, sR, sT))
        sRP = self.s('rp')
        P('s_mov_b32 s%d, s%d' % (sRP, sHB))
        P('s_mul_i32 s%d, s%d, %d' % (sHB, sHB, HO_R))
        P('s_and_b32 s%d, s%d, 1' % (sT, sW))
        P('s_lshl_b32 s%d, s%d, 11' % (sT, sT))
        P('s_add_u32 s%d, s%d, s%d' % (sHB, sHB, sT))
        P('s_add_u32 s%d, s%d, %d' % (sHB, sHB, HO_OFF))
        vTK = self.v('tk')
        P('v_and_b32 v%d, 15, v%d' % (t2, vLane))
        P('v_lshlrev_b32 v%d, 4, v%d' % (t2, t2))
        P('v_bfe_u32 v%d, v%d, 4, 1' % (t3, vLane))
        P('v_lshl_add_u32 v%d, v%d, 10, v%d' % (vTK, t3, t2))
        P('v_lshl_add_u32 v%d, v%d, 8, v%d' % (vHA, vHF, vTK))
        P('s_mul_i32 s%d, s%d, %d' % (sT, sJ, 3 * 4096))
        P('s_add_u32 s%d, s%d, s%d' % (sSO, sHB, sT))
        vC = self.v('c', 4)
        P('v_mov_b32 v%d, v%d' % (vC, vRS))
        P('v_mul_f32 v%d, 0x%x, v%d' % (vC + 2, LOG2E | 0x80000000, vRS))
        vE = self.v('e', 16)
        vPK = self.v('pk', 8)
        for T in range(3):
            a = vH + 16 * T
            for i in range(0, 16, 2):
                P('v_pk_mul_f32 %s, %s, %s op_sel_hi:[1,0]' % (vr(vE + i, 2), vr(a + i, 2), vr(vC + 2, 2)))
            for i in range(16):
                P('v_exp_f32 v%d, v%d' % (vE + i, vE + i))
            for i in range(0, 16, 2):
                P('v_pk_mul_f32 %s, %s, %s op_sel_hi:[1,0]' % (vr(a + i, 2), vr(a + i, 2), vr(vC, 2)))
            for i in range(0, 16, 2):
                P('v_pk_add_f32 %s, %s, 1.0 op_sel_hi:[1,0]' % (vr(vE + i, 2), vr(vE + i, 2)))
            for i in range(16):
                P('v_rcp_f32 v%d, v%d' % (vE + i, vE + i))
            for i in range(0, 16, 2):
                P('v_pk_mul_f32 %s, %s, %s' % (vr(a + i, 2), vr(a + i, 2), vr(vE + i, 2)))
            for i in range(8):
                P('v_cvt_pk_bf16_f32 v%d, v%d, v%d' % (vPK + i, a + 2 * i, a + 2 * i + 1))
            for ip in range(2):
                P('buffer_store_dwordx4 %s, v%d, %s, s%d offen offset:%d sc1' %
                  (vr(vPK + 4 * ip, 4), vHA, sr(sWS, 4), sSO, ip * 512), 'hst')
            if T < 2:
                P('s_add_u32 s%d, s%d, 4096' % (sSO, sSO))
        V.release('e', 'pk', 'accH', 'c', 'wf', 'ha')
        self.stamp()
        if self.stop == 'h':
            return self.finish()

        vQ = self.v('accQ', 64)
        NWF = 6
        vWF = self.v('wf', 4 * NWF)
        vRA = self.v('ra')
        P('v_add_u32 v%d, %d, v%d' % (vRA, L_C, vL16))

        def tile_main(T):
            Q = Prog()
            lds = [L_A, L_B, L_C, L_A][T]

            def rd(ks):
                if lds == L_C:
                    Q('ds_read_b128 %s, v%d offset:%d' % (vr(vWF + 4 * (ks % NWF), 4), vRA, ks * 1024))
                elif lds + ks * 1024 < 65536:
                    Q('ds_read_b128 %s, v%d offset:%d' % (vr(vWF + 4 * (ks % NWF), 4), vL16, lds + ks * 1024))
                else:
                    Q('ds_read_b128 %s, v%d offset:%d' % (vr(vWF + 4 * (ks % NWF), 4), vRB, ks * 1024))
            for ks in range(NWF - 1):
                rd(ks)
            for ks in range(41):
                if ks + NWF - 1 < 41:
                    rd(ks + NWF - 1)
                b = ar(4 * ks, 4) if ks < 40 else vr(vNM, 4)
                c = '0' if ks == 0 else vr(vQ + 16 * T, 16)
                Q('v_mfma_f32_32x32x16_bf16 %s, %s, %s, %s' % (vr(vQ + 16 * T, 16), vr(vWF + 4 * (ks % NWF), 4), b, c))
            return Q
        vRB = self.v('rb')
        P('v_add_u32 v%d, %d, v%d' % (vRB, L_B, vL16))

        def w2_unit():
            Q = Prog()
            vU = vEX
            ta = vSM; tb = vSM + 1
            Q('v_lshl_add_u32 v%d, v%d, 3, v%d' % (ta, vG, vR4))
            Q('v_lshlrev_b32 v%d, 8, v%d' % (ta, ta))
            Q('v_mul_u32_u24 v%d, 40, v%d' % (tb, vC4))
            Q('v_add_u32 v%d, v%d, v%d' % (ta, ta, tb))
            Q('s_lshl_b32 s%d, s%d, 13' % (sT, sW))
            Q('s_add_u32 s%d, s%d, %d' % (sT, sT, L_ST))
            Q('v_add_u32 v%d, s%d, v%d' % (ta, sT, ta))
            Q.wait_vm('w2u')
            for ft in range(5):
                for run in range(2):
                    Q('ds_read_b64_tr_b16 %s, v%d offset:%d' % (vr(vU + 4 * ft + 2 * run, 2), ta, run * 1024 + ft * 8))
            Q('s_and_b32 s%d, s%d, 7' % (sT, sU))
            Q('s_mul_i32 s%d, s%d, %d' % (sT2, sT, W2_C))
            Q('s_mul_i32 s%d, s%d, 5120' % (sM, sKS))
            Q('s_add_u32 s%d, s%d, s%d' % (sM, sM, sT2))
            Q('s_add_u32 s%d, s%d, %d' % (sM, sM, W2_OFF))
            Q('s_lshl_b32 s%d, s%d, 7' % (sT, sT))
            Q('s_add_u32 s%d, s%d, s%d' % (sT, sT, sKS))
            Q('s_lshl_b32 s%d, s%d, 2' % (sT, sT))
            Q('s_add_u32 s%d, s%d, %d' % (sT, sT, F2_OFF))
            Q('s_cmp_lt_u32 s%d, 544' % sU)
            Q('s_cselect_b32 s%d, s%d, 0x%x' % (sM, sM, SOOB))
            Q('s_cselect_b32 s%d, s%d, 0x%x' % (sT, sT, SOOB))
            Q('v_add_u32 v%d, 4096, v%d' % (tb, vL16))
            for ft in range(5):
                Q('buffer_store_dwordx4 %s, v%d, %s, s%d offen offset:%d sc1' %
                  (vr(vU + 4 * ft, 4), vL16 if ft < 4 else tb, sr(sWS, 4), sM, (ft & 3) * 1024), 'w2s')
            Q('v_lshlrev_b32 v%d, 24, v%d' % (vF2, vLane))
            Q('v_add_u32 v%d, s%d, v%d' % (vF2, sT, vF2))
            return Q
        vF2 = self.v('f2')

        def pack(Q, dst, src, n, pk):
            for i in range(0, n, 2):
                if pk:
                    Q('v_pk_mul_f32 %s, %s, %s op_sel_hi:[1,0]' % (vr(src + i, 2), vr(src + i, 2), vr(vRS2, 2)))
                else:
                    Q('v_mul_f32 v%d, v%d, v%d' % (src + i, vRS, src + i))
                    Q('v_mul_f32 v%d, v%d, v%d' % (src + i + 1, vRS, src + i + 1))
                Q('v_cvt_pk_bf16_f32 v%d, v%d, v%d' % (dst + i // 2, src + i, src + i + 1))
        vRS2 = self.v('rs2', 2)
        P('v_mov_b32 v%d, v%d' % (vRS2, vRS))

        def softmax(Q, pq, out, pk):
            mx, mn, sp, sn, tt = vSM, vSM + 1, vSM + 2, vSM + 3, vSM + 4
            ep, en = vEX, vEX + 10
            Q('v_max3_f32 v%d, v%d, v%d, v%d' % (mx, pq, pq + 1, pq + 2))
            Q('v_min3_f32 v%d, v%d, v%d, v%d' % (mn, pq, pq + 1, pq + 2))
            for i in (3, 5, 7):
                Q('v_max3_f32 v%d, v%d, v%d, v%d' % (mx, mx, pq + i, pq + i + 1))
                Q('v_min3_f32 v%d, v%d, v%d, v%d' % (mn, mn, pq + i, pq + i + 1))
            Q('v_max_f32 v%d, v%d, v%d' % (mx, mx, pq + 9))
            Q('v_min_f32 v%d, v%d, v%d' % (mn, mn, pq + 9))
            Q('v_mov_b32 v%d, v%d' % (sp, mx))
            Q('v_mov_b32 v%d, v%d' % (sn, mn))
            Q('v_permlane32_swap_b32 v%d, v%d' % (mx, sp))
            Q('v_permlane32_swap_b32 v%d, v%d' % (mn, sn))
            Q('v_max_f32 v%d, v%d, v%d' % (mx, mx, sp))
            Q('v_min_f32 v%d, v%d, v%d' % (mn, mn, sn))
            Q('v_mul_f32 v%d, s%d, v%d' % (mx, sL2E, mx))
            Q('v_mul_f32 v%d, s%d, v%d' % (mn, sL2E, mn))
            for i in range(10):
                Q('v_fma_f32 v%d, v%d, s%d, -v%d' % (ep + i, pq + i, sL2E, mx))
                Q('v_fma_f32 v%d, -v%d, s%d, v%d' % (en + i, pq + i, sL2E, mn))
            for i in range(10):
                Q('v_exp_f32 v%d, v%d' % (ep + i, ep + i))
                Q('v_exp_f32 v%d, v%d' % (en + i, en + i))
            Q('v_add_f32 v%d, v%d, v%d' % (sp, ep, ep + 1))
            Q('v_add_f32 v%d, v%d, v%d' % (sn, en, en + 1))
            for i in range(2, 10):
                Q('v_add_f32 v%d, v%d, v%d' % (sp, sp, ep + i))
                Q('v_add_f32 v%d, v%d, v%d' % (sn, sn, en + i))
            Q('v_mov_b32 v%d, v%d' % (mx, sp))
            Q('v_mov_b32 v%d, v%d' % (mn, sn))
            Q('v_permlane32_swap_b32 v%d, v%d' % (sp, mx))
            Q('v_permlane32_swap_b32 v%d, v%d' % (sn, mn))
            Q('v_add_f32 v%d, v%d, v%d' % (sp, sp, mx))
            Q('v_add_f32 v%d, v%d, v%d' % (sn, sn, mn))
            Q('v_rcp_f32 v%d, v%d' % (sp, sp))
            Q('v_rcp_f32 v%d, v%d' % (sn, sn))
            for i in range(10):
                Q('v_mul_f32 v%d, v%d, v%d' % (ep + i, sp, ep + i))
                Q('v_mul_f32 v%d, v%d, v%d' % (en + i, sn, en + i))
            for i in range(4):
                Q('v_cvt_pk_bf16_f32 v%d, v%d, v%d' % (out + i, ep + 2 * i, ep + 2 * i + 1))
                Q('v_cvt_pk_bf16_f32 v%d, v%d, v%d' % (out + 4 + i, en + 2 * i, en + 2 * i + 1))
            Q('v_cvt_pk_bf16_f32 v%d, v%d, v%d' % (out + 8, ep + 8, ep + 9))
            Q('v_cvt_pk_bf16_f32 v%d, v%d, v%d' % (out + 9, en + 8, en + 9))

        sL2E = self.s('l2e')
        P('s_mov_b32 s%d, 0x%x' % (sL2E, LOG2E))
        vSM = self.v('sm', 5)
        vEX = self.v('ex', 20)
        vPQ = self.v('pq', 32)
        vKB = self.v('kb', 12)
        vPH = self.v('ph', 24)
        vTA = self.v('ta')
        P('s_mul_i32 s%d, s%d, %d' % (sT, sW, 32 * TSTR))
        P('s_add_u32 s%d, s%d, %d' % (sT, sT, L_B))
        P('v_mul_u32_u24 v%d, %d, v%d' % (vTA, TSTR, vT32))
        P('v_add_u32 v%d, s%d, v%d' % (vTA, sT, vTA))

        def phi(Q, wins, pk):
            for wi, (src, n) in enumerate(wins):
                pack(Q, vKB + 4 * wi, src, n, pk)
                for i in range(n // 2, 4):
                    Q('v_mov_b32 v%d, 0' % (vKB + 4 * wi + i))
            for hh in range(2):
                for win in range(2):
                    c = '0' if win == 0 else vr(vPQ + 16 * hh, 16)
                    Q('v_mfma_f32_32x32x16_bf16 %s, %s, %s, %s' %
                      (vr(vPQ + 16 * hh, 16), vr(vWP + 8 * hh + 4 * win, 4), vr(vKB + 4 * (hh + win), 4), c))
            for hh in range(2):
                softmax(Q, vPQ + 16 * hh, vPH + 12 * hh, pk)

        P.wait_vm('tile0')
        P('s_barrier')
        self.stamp()
        P.extend(tile_main(0))
        P.wait_vm('tile1', 'hst')
        P.wait_lgkm()
        P('s_barrier')
        F = Prog()
        F('s_lshl4_add_u32 s%d, s%d, s%d' % (sT, sRP, sJ))
        F('s_lshl_b32 s%d, s%d, 1' % (sT, sT))
        F('s_and_b32 s%d, s%d, 1' % (sT2, sW))
        F('s_add_u32 s%d, s%d, s%d' % (sT, sT, sT2))
        F('s_lshl_b32 s%d, s%d, 2' % (sT, sT))
        sFH = self.s('fh')
        F('s_mov_b32 s%d, s%d' % (sFH, sT))
        F('s_add_u32 s%d, s%d, %d' % (sT, sT, FH_OFF))
        F('v_lshlrev_b32 v%d, 24, v%d' % (vF, vLane))
        F('v_add_u32 v%d, s%d, v%d' % (vF, sT, vF))
        self.flag_store(F, vF)
        F.extend(tile_dma(3, L_A))
        F.extend(w2_unit())
        m, left = interleave(tile_main(1), F, 16)
        P.extend(m); P.extend(left)
        P.wait_vm('tile2')
        P.wait_lgkm()
        P('s_barrier')
        self.stamp()
        F = Prog()
        F.wait_vm('w2s')
        self.flag_store(F, vF2)
        phi(F, [(vQ, 8), (vQ + 8, 8), (vQ + 16, 4)], False)
        F('v_lshl_add_u32 v%d, v%d, 3, v%d' % (vSM + 4, vHF, vTA))
        for hh in range(2):
            for i in range(5):
                F('ds_write_b64 v%d, %s offset:%d' % (vSM + 4, vr(vPH + 12 * hh + 2 * i, 2), hh * 80 + 16 * i))
        m, left = interleave(tile_main(2), F, 20)
        P.extend(m); P.extend(left)
        V.release('f2')
        S.release('u', 'ks')
        P.wait_vm('tile3')
        P.wait_lgkm()
        P('s_barrier')
        self.stamp()
        F = Prog()
        vVA = self.v('va', 4)
        deltas = {16: vVA, 32: vVA + 1, -8: vVA + 2, 8: vVA + 3}
        for dl, rg in deltas.items():
            F('v_mul_i32_i24 v%d, %d, v%d' % (rg, dl, vHF))
            F('v_add_u32 v%d, v%d, v%d' % (rg, rg, vTA))
        vw = [(10, 0, 16), (12, 8, 16), (14, 32, 32), (16, 80, -8), (18, 88, 8)]
        for n, (q, off, dl) in enumerate(vw):
            src = vQ + 16 * (q >> 3) + 4 * ((q & 7) >> 1)
            pack(F, vKB + 2 * n, src, 4, False)
            F('ds_write_b64 v%d, %s offset:%d' % (deltas[dl], vr(vKB + 2 * n, 2), 160 + off))
        F('v_mov_b32 v%d, 0x3f80' % (vKB + 10))
        F('v_mov_b32 v%d, 0' % (vKB + 11))
        for hh in range(2):
            F('ds_write_b64 v%d, %s offset:%d' % (deltas[8], vr(vKB + 10, 2), 160 + 64 * hh + 40))
        m, left = interleave(tile_main(3), F, 16)
        P.extend(m); P.extend(left)
        V.release('va', 'wf', 'ra', 'rb', 'negm')
        S.release('tb', 'mb')
        P.wait_lgkm()
        P('s_barrier')
        self.stamp()
        vKA = self.v('ka'); vKV = self.v('kvb')
        aKF = 0
        vKD = vPQ
        vKF = vEX
        P('v_lshl_add_u32 v%d, v%d, 3, v%d' % (t1, vHF, vR4))
        P('v_mul_u32_u24 v%d, %d, v%d' % (t1, TSTR, t1))
        P('v_and_b32 v%d, 1, v%d' % (t2, vG))
        P('v_lshl_add_u32 v%d, v%d, 5, v%d' % (t1, t2, t1))
        P('v_lshl_add_u32 v%d, v%d, 3, v%d' % (t1, vC4, t1))
        P('s_lshr_b32 s%d, s%d, 1' % (sT, sW))
        P('s_mul_i32 s%d, s%d, 80' % (sT2, sT))
        P('s_bitcmp1_b32 s%d, 0' % sW)
        P('s_cselect_b32 s%d, 64, 0' % sM)
        P('s_add_u32 s%d, s%d, s%d' % (sT2, sT2, sM))
        P('s_add_u32 s%d, s%d, %d' % (sT2, sT2, L_B))
        P('v_add_u32 v%d, s%d, v%d' % (vKA, sT2, t1))
        P('s_lshl_b32 s%d, s%d, 6' % (sT2, sT))
        P('s_add_u32 s%d, s%d, %d' % (sT2, sT2, L_B + 160))
        P('v_add_u32 v%d, s%d, v%d' % (vKV, sT2, t1))
        for ks in range(8):
            for run in range(2):
                off = (16 * ks + 4 * run) * TSTR
                P('ds_read_b64_tr_b16 %s, v%d offset:%d' % (ar(aKF + 8 * ks + 2 * run, 2), vKA, off))
            for run in range(2):
                off = (16 * ks + 4 * run) * TSTR
                P('ds_read_b64_tr_b16 %s, v%d offset:%d' % (ar(aKF + 8 * ks + 4 + 2 * run, 2), vKV, off))
        for ks in range(8):
            c = '0' if ks == 0 else vr(vKD, 16)
            P('v_mfma_f32_32x32x16_bf16 %s, %s, %s, %s' %
              (vr(vKD, 16), ar(aKF + 8 * ks, 4), ar(aKF + 8 * ks + 4, 4), c))
        vKI = self.v('ki')
        P('v_cmp_eq_u32 vcc, 24, v%d' % vT32)
        P('v_cndmask_b32 v%d, v%d, 21, vcc' % (t1, vT32))
        P('v_mad_u32_u24 v%d, v%d, 22, v%d' % (t2, vHF, t1))
        P('v_cmp_gt_u32 vcc, 22, v%d' % t1)
        P('v_cmp_ne_u32 s[%d:%d], 21, v%d' % (sPC, sPC + 1, vT32))
        P('s_and_b64 vcc, vcc, s[%d:%d]' % (sPC, sPC + 1))
        P('v_mov_b32 v%d, 0x%x' % (t3, OOB >> 4))
        P('v_cndmask_b32 v%d, v%d, v%d, vcc' % (vKI, t3, t2))
        sKB = self.s('kb')
        P('s_lshl1_add_u32 s%d, s%d, s%d' % (sKB, sJ, sT))
        P('s_lshl4_add_u32 s%d, s%d, s%d' % (sT2, sKB, sR))
        P('s_mul_i32 s%d, s%d, 1792' % (sM, sT2))
        P('s_add_u32 s%d, s%d, %d' % (sM, sM, KV_OFF))
        P('s_bitcmp1_b32 s%d, 0' % sW)
        P('s_cselect_b32 s%d, 0x%x, s%d' % (sSO, SOOB, sM))
        P('s_cselect_b32 s%d, s%d, 0x%x' % (sM, sM, SOOB))
        P('v_lshlrev_b32 v%d, 4, v%d' % (t1, vKI))
        P('v_lshlrev_b32 v%d, 3, v%d' % (t2, vKI))
        for i in range(8):
            P('v_cvt_pk_bf16_f32 v%d, v%d, v%d' % (vKF + i, vKD + 2 * i, vKD + 2 * i + 1))
        P('buffer_store_dwordx4 %s, v%d, %s, s%d offen sc1' % (vr(vKF, 4), t1, sr(sWS, 4), sSO), 'kvs')
        P('buffer_store_dwordx4 %s, v%d, %s, s%d offen offset:704 sc1' % (vr(vKF + 4, 4), t1, sr(sWS, 4), sSO), 'kvs')
        P('buffer_store_dwordx2 %s, v%d, %s, s%d offen offset:1408 sc1' % (vr(vKF, 2), t2, sr(sWS, 4), sM), 'kvs')
        P('s_and_b32 s%d, s%d, 1' % (sM, sW))
        P('s_lshl1_add_u32 s%d, s%d, s%d' % (sT2, sT2, sM))
        P('s_lshl_b32 s%d, s%d, 2' % (sT2, sT2))
        P('s_add_u32 s%d, s%d, %d' % (sT2, sT2, FK_OFF))
        P('v_lshlrev_b32 v%d, 24, v%d' % (vF, vLane))
        P('v_add_u32 v%d, s%d, v%d' % (vF, sT2, vF))
        V.release('ka', 'kvb')
        P('s_mul_i32 s%d, s%d, 12' % (sT2, sW))
        P('s_lshl_b32 s%d, s%d, 7' % (sM, sC3))
        P('s_add_u32 s%d, s%d, s%d' % (sT2, sT2, sM))
        P('v_min_u32 v%d, 24, v%d' % (t1, vLane))
        P('v_add_u32 v%d, s%d, v%d' % (t2, sT2, t1))
        P('s_mul_i32 s%d, s%d, 5' % (sT2, sW))
        P('s_add_u32 s%d, s%d, s%d' % (sT2, sT2, sM))
        P('s_add_u32 s%d, s%d, %d' % (sT2, sT2, 48 - 12))
        P('v_add_u32 v%d, s%d, v%d' % (t3, sT2, t1))
        P('v_cmp_gt_u32 vcc, 12, v%d' % t1)
        P('v_cndmask_b32 v%d, v%d, v%d, vcc' % (t2, t3, t2))
        sFC = self.s('fc')
        P('s_lshl_b32 s%d, s%d, 5' % (sFC, sR3))
        P('s_lshl3_add_u32 s%d, s%d, s%d' % (sFC, sW, sFC))
        P('s_add_u32 s%d, s%d, %d' % (sT2, sFC, (FH_OFF - F2_OFF) // 4 - 17))
        P('v_add_u32 v%d, s%d, v%d' % (t3, sT2, t1))
        P('v_cmp_gt_u32 vcc, 17, v%d' % t1)
        P('v_cndmask_b32 v%d, v%d, v%d, vcc' % (t2, t3, t2))
        P('v_lshlrev_b32 v%d, 2, v%d' % (t2, t2))
        P('v_add_u32 v%d, %d, v%d' % (vPA, F2_OFF, t2))
        self.poll_issue(P, vPL, 1, vPA, 'p3a')
        F = Prog()
        phi(F, [(vQ + 40, 8), (vQ + 48, 8), (vQ + 56, 4)], True)
        cut = 60
        P.items.extend(F.items[:cut])
        P.wait_vm('kvs')
        self.flag_store(P, vF)
        P.items.extend(F.items[cut:])
        for hh in range(2):
            P('v_mov_b32 v%d, 0' % (vPH + 12 * hh + 10))
            P('v_mov_b32 v%d, 0' % (vPH + 12 * hh + 11))
        V.release('accQ', 'sm', 'ex', 'pq', 'kb', 'ta', 'rs2', 'rstd', 'wphi')
        self.stamp()
        if self.stop == 'kv':
            return self.finish()

        DEPTH = 4
        bufs = [('a', 160), ('a', 196), ('v', self.v('b2', 36)), ('v', self.v('b3', 36))]
        sWB = self.s('wb'); sAB = self.s('ab')
        v4k = self.v('v4k')
        P('v_add_u32 v%d, 4096, v%d' % (v4k, vL16))
        P('s_mul_i32 s%d, s%d, %d' % (sWB, sC3, W2_C))
        P('s_mul_i32 s%d, s%d, %d' % (sAB, sR3, HO_R))
        sW12 = self.s('w12'); sW5 = self.s('w5')
        P('s_mul_i32 s%d, s%d, 12' % (sW12, sW))
        P('s_mul_i32 s%d, s%d, 5' % (sW5, sW))
        P('s_add_u32 s%d, s%d, 48' % (sW5, sW5))

        def ld_w(Q, st):
            k, b = bufs[st % DEPTH]
            if st < 12:
                Q('s_add_u32 s%d, s%d, %d' % (sSO, sW12, st))
            else:
                Q('s_add_u32 s%d, s%d, %d' % (sSO, sW5, st - 12))
            Q('s_mul_i32 s%d, s%d, 5120' % (sSO, sSO))
            Q('s_add_u32 s%d, s%d, s%d' % (sSO, sSO, sWB))
            Q('s_add_u32 s%d, s%d, %d' % (sSO, sSO, W2_OFF))
            for ft in range(5):
                Q('buffer_load_dwordx4 %s, v%d, %s, s%d offen offset:%d sc1' %
                  (vr(b + 4 * ft, 4, k), vL16 if ft < 4 else v4k, sr(sWS, 4), sSO, (ft & 3) * 1024))

        def ld_a(Q, st):
            k, b = bufs[st % DEPTH]
            if st < 12:
                Q('s_add_u32 s%d, s%d, %d' % (sSO, sW12, st))
            else:
                Q('s_add_u32 s%d, s%d, %d' % (sSO, sW5, st - 12))
            Q('s_lshl_b32 s%d, s%d, 12' % (sSO, sSO))
            Q('s_add_u32 s%d, s%d, s%d' % (sSO, sSO, sAB))
            Q('s_add_u32 s%d, s%d, %d' % (sSO, sSO, HO_OFF))
            for tb in range(4):
                Q('buffer_load_dwordx4 %s, v%d, %s, s%d offen offset:%d sc1' %
                  (vr(b + 20 + 4 * tb, 4, k), vL16, sr(sWS, 4), sSO, tb * 1024))

        def mm(Q, st):
            k, b = bufs[st % DEPTH]
            base = 0 if st < 12 else 80
            for tb in range(4):
                for ft in range(5):
                    d = ar(base + 20 * tb + 4 * ft, 4)
                    c = '0' if st in (0, 12) else d
                    Q('v_mfma_f32_16x16x32_bf16 %s, %s, %s, %s' % (d, vr(b + 4 * ft, 4, k), vr(b + 20 + 4 * tb, 4, k), c))

        self.poll_check(P, vPL, 1, vPA, 2)
        self.stamp()
        for st in range(DEPTH):
            ld_w(P, st); ld_a(P, st)
        P('s_lshl_b32 s%d, s%d, 5' % (sT2, sKB))
        P('s_and_b32 s%d, s%d, 1' % (sM, sW))
        P('s_lshl4_add_u32 s%d, s%d, s%d' % (sT2, sM, sT2))
        P('v_and_b32 v%d, 15, v%d' % (t1, vLane))
        P('v_add_u32 v%d, s%d, v%d' % (t1, sT2, t1))
        P('v_lshlrev_b32 v%d, 2, v%d' % (t1, t1))
        P('v_add_u32 v%d, %d, v%d' % (vPA, FK_OFF, t1))
        self.poll_issue(P, vPL, 1, vPA, 'fk')
        mm(P, 0)
        ld_w(P, 4); ld_a(P, 4)
        self.poll_check(P, vPL, 1, vPA, 3)
        self.stamp()
        vKP = self.v('kp', 80)
        vK16 = self.v('k16'); vK8 = self.v('k8')
        P('v_lshlrev_b32 v%d, 4, v%d' % (vK16, vKI))
        P('v_lshlrev_b32 v%d, 3, v%d' % (vK8, vKI))
        P('s_lshl_b32 s%d, s%d, 4' % (sT2, sKB))
        P('s_lshl3_add_u32 s%d, s%d, s%d' % (sT2, sM, sT2))
        P('s_mul_i32 s%d, s%d, 1792' % (sT2, sT2))
        P('s_add_u32 s%d, s%d, %d' % (sT2, sT2, KV_OFF))
        for p in range(8):
            b = vKP + 10 * p
            P('buffer_load_dwordx4 %s, v%d, %s, s%d offen sc1' % (vr(b, 4), vK16, sr(sWS, 4), sT2))
            P('buffer_load_dwordx4 %s, v%d, %s, s%d offen offset:704 sc1' % (vr(b + 4, 4), vK16, sr(sWS, 4), sT2))
            P('buffer_load_dwordx2 %s, v%d, %s, s%d offen offset:1408 sc1' % (vr(b + 8, 2), vK8, sr(sWS, 4), sT2))
            if p < 7:
                P('s_add_u32 s%d, s%d, 1792' % (sT2, sT2))
        V.release('k16', 'k8', 'ki')
        mm(P, 1)
        ld_w(P, 5); ld_a(P, 5)
        mm(P, 2)
        vSU = self.v('su', 20)
        sLO = self.s('lo'); sHI = self.s('hi')
        P('s_mov_b32 s%d, 0x3f80' % sLO)
        P('s_mov_b32 s%d, 0x3f800000' % sHI)
        for p in range(8):
            for i in range(10):
                for h, sc in ((0, sLO), (1, sHI)):
                    c = '0' if p == 0 else 'v%d' % (vSU + 2 * i + h)
                    P('v_dot2_f32_bf16 v%d, v%d, s%d, %s' % (vSU + 2 * i + h, vKP + 10 * p + i, sc, c))
        S.release('lo', 'hi')
        ld_w(P, 6); ld_a(P, 6)
        P('s_mul_i32 s%d, s%d, 5120' % (sT2, sW))
        P('s_add_u32 s%d, s%d, %d' % (sT2, sT2, L_KVS))
        P('v_add_u32 v%d, s%d, v%d' % (t1, sT2, vL16))
        for i in range(5):
            P('ds_write_b128 v%d, %s offset:%d' % (t1, vr(vSU + 4 * i, 4), i * 1024))
        P.wait_lgkm()
        P('s_barrier')
        P('v_add_u32 v%d, %d, v%d' % (t1, L_KVS, vL16))
        for ww in range(4):
            for i in range(5):
                P('ds_read_b128 %s, v%d offset:%d' % (vr(vKP + 20 * ww + 4 * i, 4), t1, ww * 5120 + i * 1024))
        mm(P, 3)
        ld_w(P, 7); ld_a(P, 7)
        kt = [vKP + 20, vKP + 60]
        od = [vKP, vKP + 40]
        vKT = vSU
        for hh in range(2):
            a, b = vKP + 40 * hh, vKP + 40 * hh + 20
            for i in range(0, 20, 2):
                P('v_pk_add_f32 %s, %s, %s' % (vr(a + i, 2), vr(a + i, 2), vr(b + i, 2)))
            for i in range(10):
                P('v_cvt_pk_bf16_f32 v%d, v%d, v%d' % (kt[hh] + i, a + 2 * i, a + 2 * i + 1))
            P('v_mov_b32 v%d, 0' % (kt[hh] + 10))
            P('v_mov_b32 v%d, 0' % (kt[hh] + 11))
        for hh in range(2):
            for ks in range(3):
                c = '0' if ks == 0 else vr(od[hh], 16)
                P('v_mfma_f32_32x32x16_bf16 %s, %s, %s, %s' %
                  (vr(od[hh], 16), vr(kt[hh] + 4 * ks, 4), vr(vPH + 12 * hh + 4 * ks, 4), c))
        vOA = self.v('oa', 3)
        P('s_mul_i32 s%d, s%d, 5' % (sT2, sJ))
        for n, add in enumerate((0, 2, 4)):
            P('v_add_u32 v%d, s%d, v%d' % (t1, sT2, vHF))
            if add:
                P('v_add_u32 v%d, %d, v%d' % (t1, add, t1))
            P('v_lshrrev_b32 v%d, 2, v%d' % (t2, t1))
            P('v_and_b32 v%d, 3, v%d' % (t1, t1))
            P('v_lshl_add_u32 v%d, v%d, 12, v%d' % (t2, t2, vTK))
            P('v_lshl_add_u32 v%d, v%d, 8, v%d' % (vOA + n, t1, t2))
            if add == 4:
                P('v_lshl_add_u32 v%d, v%d, 31, v%d' % (vOA + n, vHF, vOA + n))
        P('s_add_u32 s%d, s%d, %d' % (sM, sHB, 48 * 4096))
        P('v_cmp_eq_u32 vcc, 0, v%d' % vHF)
        vDN = self.v('dn', 4)
        for hh in range(2):
            d = od[hh]
            P('v_cndmask_b32 v%d, v%d, v%d, vcc' % (vDN + 2 * hh, d + 8, d + 12))
            P('v_add_f32 v%d, 0x358637bd, v%d' % (vDN + 2 * hh, vDN + 2 * hh))
            P('v_rcp_f32 v%d, v%d' % (vDN + 2 * hh, vDN + 2 * hh))
        for hh in range(2):
            d = od[hh]
            for i in range(0, 12, 2):
                P('v_pk_mul_f32 %s, %s, %s op_sel_hi:[1,0]' % (vr(d + i, 2), vr(d + i, 2), vr(vDN + 2 * hh, 2)))
            for i in range(4):
                P('v_cvt_pk_bf16_f32 v%d, v%d, v%d' % (vKT + 4 * hh + i, d + 2 * i, d + 2 * i + 1))
            for i in range(2):
                P('v_cvt_pk_bf16_f32 v%d, v%d, v%d' % (vKT + 8 + 2 * hh + i, d + 8 + 2 * i, d + 9 + 2 * i))
        for n in range(3):
            P('buffer_store_dwordx4 %s, v%d, %s, s%d offen sc1' % (vr(vKT + 4 * n, 4), vOA + n, sr(sWS, 4), sM), 'ost')
        P('s_add_u32 s%d, s%d, %d' % (sT2, sFH, FO_OFF))
        P('v_lshlrev_b32 v%d, 24, v%d' % (vF, vLane))
        P('v_add_u32 v%d, s%d, v%d' % (vF, sT2, vF))
        V.release('kp', 'oa', 'dn', 'ph', 'tk')
        self.stamp()
        mm(P, 4)
        ld_w(P, 8); ld_a(P, 8)
        mm(P, 5)
        P.wait_vm('ost')
        self.flag_store(P, vF)
        V.release('su')
        ld_w(P, 9); ld_a(P, 9)
        mm(P, 6)
        ld_w(P, 10); ld_a(P, 10)
        mm(P, 7)
        ld_w(P, 11); ld_a(P, 11)
        P('s_add_u32 s%d, s%d, %d' % (sT2, sFC, FO_OFF // 4))
        P('v_and_b32 v%d, 7, v%d' % (t1, vLane))
        P('v_add_u32 v%d, s%d, v%d' % (t1, sT2, t1))
        P('v_lshlrev_b32 v%d, 2, v%d' % (vPA, t1))
        mm(P, 8)
        ld_w(P, 12)
        mm(P, 9)
        self.poll_issue(P, vPL, 1, vPA, 'fo')
        ld_w(P, 13)
        vXO = self.v('xo'); vXR = self.v('xres', 12)
        P('s_lshl_b32 s%d, s%d, 2' % (sT2, sR3))
        P('s_add_u32 s%d, s%d, s%d' % (sT2, sT2, sW))
        P('s_mul_i32 s%d, s%d, %d' % (sT2, sT2, 16 * 1280))
        P('s_mul_i32 s%d, s%d, 160' % (sM, sC3))
        P('s_add_u32 s%d, s%d, s%d' % (sT2, sT2, sM))
        P('v_and_b32 v%d, 15, v%d' % (t1, vLane))
        P('v_mul_u32_u24 v%d, 1280, v%d' % (t1, t1))
        P('v_mad_u32_u24 v%d, v%d, 40, v%d' % (t1, vG, t1))
        P('v_add_u32 v%d, s%d, v%d' % (vXO, sT2, t1))
        mm(P, 10)
        self.poll_check(P, vPL, 1, vPA, 4)
        self.stamp()
        ld_a(P, 12); ld_a(P, 13)
        ld_w(P, 14); ld_a(P, 14)
        mm(P, 11)
        ld_w(P, 15); ld_a(P, 15)
        P('buffer_load_dwordx4 %s, v%d, %s, 0 offen' % (vr(vXR, 4), vXO, sr(sX, 4)))
        P('buffer_load_dwordx4 %s, v%d, %s, 0 offen offset:16' % (vr(vXR + 4, 4), vXO, sr(sX, 4)))
        P('buffer_load_dwordx2 %s, v%d, %s, 0 offen offset:32' % (vr(vXR + 8, 2), vXO, sr(sX, 4)))

        vEA = self.v('ea', 4)

        def exch_write(Q, lds, abase):
            for tb in range(4):
                Q('s_sub_u32 s%d, s%d, %d' % (sT2, sW, tb + 1))
                Q('s_and_b32 s%d, s%d, 3' % (sT2, sT2))
                Q('s_mul_i32 s%d, s%d, 5120' % (sM, sT2))
                Q('s_add_u32 s%d, s%d, %d' % (sM, sM, lds + tb * 15360))
                Q('s_cmp_eq_u32 s%d, 3' % sT2)
                Q('s_cselect_b32 s%d, %d, s%d' % (sM, 143360, sM))
                Q('s_mul_i32 s%d, s%d, 5120' % (sT2, sW))
                Q('s_cselect_b32 s%d, s%d, 0' % (sT2, sT2))
                Q('s_add_u32 s%d, s%d, s%d' % (sM, sM, sT2))
                Q('v_add_u32 v%d, s%d, v%d' % (vEA + tb, sM, vL16))
                for ft in range(5):
                    Q('ds_write_b128 v%d, %s offset:%d' % (vEA + tb, ar(abase + 20 * tb + 4 * ft, 4), ft * 1024))

        def exch_read(Q, lds, dst):
            Q('s_mul_i32 s%d, s%d, 15360' % (sM, sW))
            Q('s_add_u32 s%d, s%d, %d' % (sM, sM, lds))
            Q('v_add_u32 v%d, s%d, v%d' % (vEA, sM, vL16))
            Q('s_mul_i32 s%d, s%d, 5120' % (sM, sW))
            Q('s_add_u32 s%d, s%d, %d' % (sM, sM, 143360))
            Q('v_add_u32 v%d, s%d, v%d' % (vEA + 1, sM, vL16))
            for ft in range(5):
                Q('ds_read_b128 %s, v%d offset:%d' % (vr(dst + 4 * ft, 4), vEA + 1, ft * 1024))
            for sl in range(3):
                for ft in range(5):
                    Q('ds_read_b128 %s, v%d offset:%d' %
                      (vr(dst + 20 * (sl + 1) + 4 * ft, 4), vEA, sl * 5120 + ft * 1024))

        def exch_sum(Q, dst):
            for i in range(0, 20, 2):
                Q('v_pk_add_f32 %s, %s, %s' % (vr(dst + i, 2), vr(dst + i, 2), vr(dst + 20 + i, 2)))
                Q('v_pk_add_f32 %s, %s, %s' % (vr(dst + 40 + i, 2), vr(dst + 40 + i, 2), vr(dst + 60 + i, 2)))
            for i in range(0, 20, 2):
                Q('v_pk_add_f32 %s, %s, %s' % (vr(dst + i, 2), vr(dst + i, 2), vr(dst + 40 + i, 2)))

        vRD = self.v('rd', 80)
        vGT = self.v('gt', 20)
        exch_write(P, L_EX1, 0)
        mm(P, 12)
        ld_w(P, 16); ld_a(P, 16)
        P.wait_lgkm()
        P('s_barrier')
        exch_read(P, L_EX1, vRD)
        mm(P, 13)
        exch_sum(P, vRD)
        P('s_mov_b32 s%d, 0x%x' % (sT2, LOG2E | 0x80000000))
        for i in range(20):
            P('v_mul_f32 v%d, s%d, v%d' % (vGT + i, sT2, vRD + i))
        for i in range(20):
            P('v_exp_f32 v%d, v%d' % (vGT + i, vGT + i))
        for i in range(0, 20, 2):
            P('v_pk_add_f32 %s, %s, 1.0 op_sel_hi:[1,0]' % (vr(vGT + i, 2), vr(vGT + i, 2)))
        for i in range(20):
            P('v_rcp_f32 v%d, v%d' % (vGT + i, vGT + i))
        for i in range(0, 20, 2):
            P('v_pk_mul_f32 %s, %s, %s' % (vr(vGT + i, 2), vr(vGT + i, 2), vr(vRD + i, 2)))
        mm(P, 14)
        mm(P, 15)
        mm(P, 16)
        self.stamp()
        exch_write(P, L_EX2, 80)
        vXF = self.v('xf', 20)
        for i in range(10):
            P('v_lshlrev_b32 v%d, 16, v%d' % (vXF + 2 * i, vXR + i))
            P('v_and_b32 v%d, 0xffff0000, v%d' % (vXF + 2 * i + 1, vXR + i))
        P.wait_lgkm()
        P('s_barrier')
        exch_read(P, L_EX2, vRD)
        exch_sum(P, vRD)
        for i in range(0, 20, 2):
            P('v_pk_fma_f32 %s, %s, %s, %s' % (vr(vXF + i, 2), vr(vRD + i, 2), vr(vGT + i, 2), vr(vXF + i, 2)))
        for i in range(10):
            P('v_cvt_pk_bf16_f32 v%d, v%d, v%d' % (vXR + i, vXF + 2 * i, vXF + 2 * i + 1))
        P('buffer_store_dwordx4 %s, v%d, %s, 0 offen' % (vr(vXR, 4), vXO, sr(sOUT, 4)))
        P('buffer_store_dwordx4 %s, v%d, %s, 0 offen offset:16' % (vr(vXR + 4, 4), vXO, sr(sOUT, 4)))
        P('buffer_store_dwordx2 %s, v%d, %s, 0 offen offset:32' % (vr(vXR + 8, 2), vXO, sr(sOUT, 4)))
        return self.finish()

    def nonce_check(self, P, sDB, vZero):
        L = 'Lnonce'
        P('v_readfirstlane_b32 s%d, v%d' % (self.sNONCE, self.vNONCE))
        P('s_cmp_eq_u32 s%d, 0' % self.sNONCE)
        P('s_cbranch_scc1 %s' % L)
        P('%s_ret:' % L)
        txt = ['%s:' % L, '    s_mov_b32 s%d, 0x20000' % self.sCNT, '%s_loop:' % L, '    s_nop 7',
               '    buffer_load_dword v%d, v%d, %s, 0 offen sc1' % (self.vNONCE, vZero, sr(sDB, 4)),
               '    s_waitcnt vmcnt(0)',
               '    v_readfirstlane_b32 s%d, v%d' % (self.sNONCE, self.vNONCE),
               '    s_nop 3',
               '    s_cmp_lg_u32 s%d, 0' % self.sNONCE,
               '    s_cbranch_scc1 %s_done' % L,
               '    s_sub_u32 s%d, s%d, 1' % (self.sCNT, self.sCNT),
               '    s_cmp_lg_u32 s%d, 0' % self.sCNT,
               '    s_cbranch_scc1 %s_loop' % L,
               '%s_done:' % L, '    s_nop 7', '    s_branch %s_ret' % L]
        self.ool.append('\n'.join(txt))

    def finish(self):
        P = self.P
        if self.ts:
            P.wait_vm()
            self.stamp()
            P.wait_lgkm()
            t = self.vT0
            P('s_lshl2_add_u32 s%d, s2, s%d' % (self.sT, self.sW))
            P('s_lshl_b32 s%d, s%d, 8' % (self.sT, self.sT))
            P('s_add_u32 s%d, s%d, %d' % (self.sT, self.sT, TS_OFF))
            P('v_lshlrev_b32 v%d, 24, v%d' % (t, self.vLane))
            P('v_add_u32 v%d, s%d, v%d' % (t, self.sT, t))
            for i in range(self.nts):
                P('v_mov_b32 v2, s%d' % (self.sTS + 2 * i))
                P('v_mov_b32 v3, s%d' % (self.sTS + 2 * i + 1))
                P('buffer_store_dwordx2 v[2:3], v%d, %s, 0 offen offset:%d' % (t, sr(self.sWS, 4), 8 * i))
                P('s_nop 1')
        P('Lend:')
        P('s_endpgm')
        lines = finalize(P, verbose=True)
        o = []
        for ln in lines:
            o.append(ln)
            if 's_getpc_b64' in ln:
                o.append('Lcode_pc:')
        return o


HEADER = '''; Fused LayerNorm + hedgehog linear attention + SiLU FFN gate, one launch, 256 persistent workgroups.
; @launch grid=(256,1,1) block=(256,1,1) lds=%d
.amdgcn_target "amdgcn-amd-amdhsa--gfx950"
.text
.globl %s_kernel
.p2align 8
.type %s_kernel,@function
%s_kernel:
'''
FOOTER = '''
Lcode_end:
    s_endpgm
.section .rodata,"a"
.p2align 6
.amdhsa_kernel %s_kernel
  .amdhsa_next_free_vgpr 512
  .amdhsa_next_free_sgpr 102
  .amdhsa_accum_offset 256
  .amdhsa_group_segment_fixed_size 0
  .amdhsa_kernarg_size 80
  .amdhsa_user_sgpr_count 2
  .amdhsa_user_sgpr_kernarg_segment_ptr 1
  .amdhsa_system_sgpr_workgroup_id_x 1
  .amdhsa_float_denorm_mode_32 3
.end_amdhsa_kernel
'''


def generate(ts=False, stop=None, opts=None):
    g = Gen(ts=ts, stop=stop, opts=opts)
    lines = g.build()
    txt = HEADER % (LDS_BYTES, NAME, NAME, NAME) + '\n'.join(lines) + '\n' + '\n'.join(g.ool) + FOOTER % NAME
    return txt


if __name__ == '__main__':
    import argparse
    ap = argparse.ArgumentParser()
    ap.add_argument('-o', default='cdna_kernels/%s.s' % NAME)
    ap.add_argument('--ts', action='store_true')
    ap.add_argument('--stop', default=None)
    a = ap.parse_args()
    open(a.o, 'w').write(generate(ts=a.ts, stop=a.stop))
    print('wrote', a.o)
```

```python
import sys, os
sys.path.insert(0, os.path.dirname(os.path.abspath(__file__)))
from asmgen import Prog, interleave, finalize

NAME = 'recurrent_scan__linear_kernel_hedgehog__dense_activation_silu__prompt'

WQ_OFF = 0
WQ_J = 4 * 41 * 1024
W2_OFF = WQ_OFF + 16 * WQ_J
W2_C = 68 * 5120
HO_OFF = W2_OFF + 8 * W2_C
HO_R = 68 * 4096
KV_OFF = HO_OFF + 32 * HO_R
FL_OFF = KV_OFF + 16 * 2 * 16 * 1792
F1_OFF = FL_OFF
F2_OFF = F1_OFF + 1024
FH_OFF = F2_OFF + 4096
FO_OFF = FH_OFF + 4096
FK_OFF = FO_OFF + 4096
ST_OFF = FK_OFF + 4096
TS_OFF = ST_OFF + 16384
WS_SIZE = TS_OFF + 256 * 4 * 32 * 8
OOB = 0x80000000
SOOB = 0x40000000

NSLOT = 5
L_X = 0
L_W1 = 81920
L_EU = 143360
L_WT = 155648
L_CT = 159744
L_DUMMY = 161280
TILE = 41 * 1024
L_A, L_B, L_C = 0, TILE, 2 * TILE
L_ST = 3 * TILE
TSTR = 328
L_KVS = L_C
L_EX1 = 0
L_EX2 = 61440
LDS_BYTES = 163840

LOG2E = 0x3fb8aa3b


class Regs:
    def __init__(self, kind, n):
        self.kind = kind
        self.free = [True] * n
        self.names = {}

    def alloc(self, name, n=1, align=None):
        if align is None:
            align = 1 if n == 1 else (2 if n < 4 else 4)
        for b in range(0, len(self.free) - n + 1, align):
            if all(self.free[b:b + n]):
                for i in range(b, b + n):
                    self.free[i] = False
                self.names[name] = (b, n)
                return b
        raise RuntimeError('out of %s regs for %s: %s' % (self.kind, name, sorted(self.names.items(), key=lambda x: x[1])))

    def at(self, name, b, n):
        assert all(self.free[b:b + n]), (name, b, n)
        for i in range(b, b + n):
            self.free[i] = False
        self.names[name] = (b, n)
        return b

    def release(self, *names):
        for name in names:
            b, n = self.names.pop(name)
            for i in range(b, b + n):
                self.free[i] = True


def vr(b, n=1, k='v'):
    return '%s%d' % (k, b) if n == 1 else '%s[%d:%d]' % (k, b, b + n - 1)


def ar(b, n=1):
    return vr(b, n, 'a')


def sr(b, n=1):
    return vr(b, n, 's')


class Gen:
    def __init__(self, ts=False, stop=None, opts=None):
        self.ts = ts
        self.stop = stop
        self.o = opts or {}
        self.V = Regs('v', 256)
        self.S = Regs('s', 100)
        self.P = Prog()
        self.ool = []
        self.nts = 0
        self.nlab = 0

    def v(self, name, n=1):
        return self.V.alloc(name, n)

    def s(self, name, n=1):
        return self.S.alloc(name, n, align=(1 if n == 1 else (2 if n == 2 else 4)))

    def stamp(self, P=None):
        if not self.ts:
            return
        P = P or self.P
        b = self.sTS + 2 * self.nts
        P('%s %s' % ('s_memtime' if self.ts == 2 else 's_memrealtime', sr(b, 2)))
        self.nts += 1

    def srd_load(self, name, off):
        b = self.s(name, 4)
        self.P('s_load_dwordx2 %s, s[0:1], %d' % (sr(b, 2), off))
        return b

    def srd(self, b, size):
        self.P('s_and_b32 s%d, s%d, 0xffff' % (b + 1, b + 1))
        self.P('s_mov_b32 s%d, 0x%x' % (b + 2, size))
        self.P('s_mov_b32 s%d, 0x20000' % (b + 3))
        return b

    def poll_issue(self, P, vdst, n, vaddr, tag):
        op = {1: 'dword', 4: 'dwordx4'}[n]
        P('buffer_load_%s %s, v%d, %s, 0 offen sc1' % (op, vr(vdst, n), vaddr, sr(self.sWS, 4)), tag)

    def poll_check(self, P, vdst, n, vaddr, code):
        self.nlab += 1
        L = 'Lpoll%d' % self.nlab
        t = self.vT0
        cmp_ = []
        if n == 1:
            cmp_.append('v_cmp_ne_u32 vcc, s%d, v%d' % (self.sNONCE, vdst))
        else:
            for i in range(4):
                cmp_.append('v_xor_b32 v%d, s%d, v%d' % (vdst + i, self.sNONCE, vdst + i))
            cmp_.append('v_or3_b32 v%d, v%d, v%d, v%d' % (t, vdst, vdst + 1, vdst + 2))
            cmp_.append('v_or_b32 v%d, v%d, v%d' % (t, t, vdst + 3))
            cmp_.append('v_cmp_ne_u32 vcc, 0, v%d' % t)
        for c in cmp_:
            P(c)
        P('s_cbranch_vccnz %s' % L)
        P('%s_ret:' % L)
        op = {1: 'dword', 4: 'dwordx4'}[n]
        txt = ['%s:' % L, '    s_mov_b32 s%d, 0x20000' % self.sCNT, '%s_loop:' % L,
               '    s_nop 7',
               '    buffer_load_%s %s, v%d, %s, 0 offen sc1' % (op, vr(vdst, n), vaddr, sr(self.sWS, 4)),
               '    s_waitcnt vmcnt(0)']
        txt += ['    ' + c for c in cmp_]
        txt += ['    s_nop 7', '    s_cbranch_vccz %s_done' % L,
                '    s_sub_u32 s%d, s%d, 1' % (self.sCNT, self.sCNT),
                '    s_cmp_lg_u32 s%d, 0' % self.sCNT,
                '    s_cbranch_scc1 %s_loop' % L,
                '%s_done:' % L, '    s_nop 7', '    s_branch %s_ret' % L]
        self.ool.append('\n'.join(txt))

    def flag_store(self, P, vaddr):
        P('buffer_store_dword v%d, v%d, %s, 0 offen sc1' % (self.vNONCE, vaddr, sr(self.sWS, 4)), 'flag')

    def xswap_sum(self, P, a, t, op='v_add_f32', swap='v_permlane32_swap_b32'):
        P('v_mov_b32 v%d, v%d' % (t, a))
        P('%s v%d, v%d' % (swap, a, t))
        P('%s v%d, v%d, v%d' % (op, a, a, t))

    def build(self):
        P = self.P
        S, V = self.S, self.V
        S.at('karg', 0, 2)
        S.at('wg', 2, 1)
        V.at('tid', 0, 1)
        sWG = 2
        P('s_cmp_ge_u32 s2, 256')
        P('s_cbranch_scc1 Lend')
        sX = self.srd_load('X', 0); sWQ = self.srd_load('WQKV', 8); sW1 = self.srd_load('W1', 40)
        sWS = self.sWS = self.srd_load('WS', 72)
        sWP = self.srd_load('WPHI', 16); sDB = self.srd_load('DBG', 64); sW2 = self.srd_load('W2', 48)
        sWO = self.srd_load('WO', 24); sOUT = self.srd_load('OUT', 56)
        if self.ts:
            self.sTS = self.s('ts', 36)
        self.stamp()
        sPC = self.s('pc', 2)
        P('s_getpc_b64 %s' % sr(sPC, 2))
        vLane = self.v('lane')
        vL16 = self.v('l16')
        vJunk = self.v('junk', 4)
        t0 = self.vT0 = self.v('t0')
        t1 = self.v('t1'); t2 = self.v('t2'); t3 = self.v('t3')
        sL = self.s('l'); sW = self.s('w'); sT = self.s('st'); sT2 = self.s('st2')
        P('s_lshr_b32 s%d, s2, 3' % sL)
        P('s_lshl_b32 s%d, s%d, 12' % (sT, sL))
        P('v_lshlrev_b32 v%d, 4, v0' % t0)
        P('v_add_u32 v%d, s%d, v%d' % (t0, sT, t0))
        sCS = self.s('codesz')
        P('s_mov_b32 s%d, Lcode_end-Lcode_pc-16' % sCS)
        P('v_min_u32 v%d, s%d, v%d' % (t0, sCS, t0))
        P('global_load_dwordx4 %s, v%d, %s' % (vr(vJunk, 4), t0, sr(sPC, 2)), 'pref')
        S.release('codesz')
        P('v_and_b32 v%d, 63, v0' % vLane)
        P('v_lshrrev_b32 v%d, 6, v0' % t1)
        P('v_lshlrev_b32 v%d, 4, v%d' % (vL16, vLane))
        P('v_readfirstlane_b32 s%d, v%d' % (sW, t1))
        sR = self.s('r'); sJ = self.s('j'); sR3 = self.s('R3'); sC3 = self.s('c3')
        P('s_bfe_u32 s%d, s2, 0x20001' % sT)
        P('s_lshr_b32 s%d, s%d, 3' % (sT2, sL))
        P('s_lshl2_add_u32 s%d, s%d, s%d' % (sR, sT, sT2))
        P('s_lshr_b32 s%d, s%d, 2' % (sT2, sL))
        P('s_lshl3_add_u32 s%d, s%d, s%d' % (sR3, sT, sT2))
        P('s_and_b32 s%d, s2, 1' % sT)
        P('s_and_b32 s%d, s%d, 7' % (sT2, sL))
        P('s_lshl3_add_u32 s%d, s%d, s%d' % (sJ, sT, sT2))
        P('s_and_b32 s%d, s%d, 3' % (sT2, sL))
        P('s_lshl2_add_u32 s%d, s%d, s%d' % (sC3, sT, sT2))
        self.sW, self.sR, self.sJ, self.sR3, self.sC3, self.sT, self.sT2 = sW, sR, sJ, sR3, sC3, sT, sT2
        self.vLane, self.vL16 = vLane, vL16

        sKQ = self.s('kq'); sLn = self.s('Ln')
        P('s_and_b32 s%d, s2, 7' % sKQ)
        vEU = self.v('eu')
        P('v_lshrrev_b32 v%d, 3, v%d' % (t1, vLane))
        P('v_and_b32 v%d, 7, v%d' % (t2, vLane))
        P('s_mul_i32 s%d, s%d, %d' % (sT, sKQ, 80 * 3840))
        P('s_lshl_b32 s%d, s%d, 7' % (sT2, sL))
        P('s_add_u32 s%d, s%d, s%d' % (sT, sT, sT2))
        P('s_cmp_lt_u32 s2, 240')
        P('s_cselect_b32 s%d, s%d, 0x%x' % (sT, sT, OOB))
        P('v_mul_u32_u24 v%d, 3840, v%d' % (vEU, t1))
        P('v_lshl_add_u32 v%d, v%d, 4, v%d' % (vEU, t2, vEU))
        P('v_add_u32 v%d, s%d, v%d' % (vEU, sT, vEU))
        vX = self.v('xd', 4)
        P('v_lshrrev_b32 v%d, 1, v%d' % (t3, t1))
        P('v_xor_b32 v%d, v%d, v%d' % (t3, t3, t2))
        P('s_lshl_b32 s%d, s%d, 2' % (sT, sR))
        P('s_add_u32 s%d, s%d, s%d' % (sT, sT, sW))
        P('s_mul_i32 s%d, s%d, %d' % (sT, sT, 32 * 1280))
        P('v_mul_u32_u24 v%d, 1280, v%d' % (vX, t1))
        P('v_lshl_add_u32 v%d, v%d, 4, v%d' % (vX, t3, vX))
        P('v_add_u32 v%d, s%d, v%d' % (vX, sT, vX))
        P('v_xor_b32 v%d, 64, v%d' % (vX + 1, vX))
        P('v_add_u32 v%d, %d, v%d' % (vX + 1, 8 * 1280, vX + 1))
        P('v_add_u32 v%d, %d, v%d' % (vX + 2, 16 * 1280, vX))
        P('v_add_u32 v%d, %d, v%d' % (vX + 3, 16 * 1280, vX + 1))
        vW1 = self.v('w1d', 3)
        P('s_mul_i32 s%d, s%d, 192' % (sT, sW))
        P('s_mul_i32 s%d, s%d, 192' % (sT2, sJ))
        for i in range(3):
            P('v_add_u32 v%d, s%d, v%d' % (t1, sT, vLane))
            if i:
                P('v_add_u32 v%d, %d, v%d' % (t1, 64 * i, t1))
            P('v_mul_u32_u24 v%d, 43691, v%d' % (t2, t1))
            P('v_lshrrev_b32 v%d, 19, v%d' % (t2, t2))
            P('v_mul_u32_u24 v%d, 12, v%d' % (t3, t2))
            P('v_sub_u32 v%d, v%d, v%d' % (t3, t1, t3))
            P('v_mul_u32_u24 v%d, 3072, v%d' % (t2, t2))
            P('v_lshl_add_u32 v%d, v%d, 4, v%d' % (t2, t3, t2))
            P('v_add_u32 v%d, s%d, v%d' % (vW1 + i, sT2, t2))
        P.wait_lgkm()
        self.srd(sWQ, 640 * 3840)
        self.srd(sX, 2048 * 1280)
        self.srd(sW1, 640 * 3072)
        sM = self.s('m')
        sSO = self.s('so')
        P('s_lshl_b32 s%d, s%d, 10' % (sM, sW))
        P('s_mul_i32 s%d, s%d, %d' % (sSO, sW, 8 * 3840))
        for i in range(3):
            P('s_add_u32 m0, s%d, %d' % (sM, L_EU + 4096 * i))
            if i == 2:
                P('s_cmp_lt_u32 s%d, 2' % sW)
                P('s_cselect_b32 s%d, s%d, 0x%x' % (sSO, sSO, SOOB))
            P('buffer_load_dwordx4 v%d, %s, s%d offen lds' % (vEU, sr(sWQ, 4), sSO), 'eu')
            if i < 2:
                P('s_add_u32 s%d, s%d, %d' % (sSO, sSO, 32 * 3840))
        V.release('eu')
        sMX = self.s('mx'); sMW = self.s('mw')
        P('s_mul_i32 s%d, s%d, %d' % (sMX, sW, NSLOT * 4096))
        P('s_mul_i32 s%d, s%d, 3072' % (sMW, sW))

        def stage_dma(s):
            Q = Prog()
            slot = s % NSLOT
            Q('s_movk_i32 s%d, %d' % (sSO, s * 128))
            for u in range(4):
                Q('s_add_u32 m0, s%d, %d' % (sMX, L_X + slot * 4096 + u * 1024))
                Q('buffer_load_dwordx4 v%d, %s, s%d offen lds' % (vX + u, sr(sX, 4), sSO), 'st%d' % s)
            Q('s_mov_b32 s%d, %d' % (sSO, s * 64 * 3072))
            for i in range(3):
                Q('s_add_u32 m0, s%d, %d' % (sMW, L_W1 + slot * 12288 + i * 1024))
                Q('buffer_load_dwordx4 v%d, %s, s%d offen lds' % (vW1 + i, sr(sW1, 4), sSO), 'st%d' % s)
            return Q
        for s in range(NSLOT - 1):
            P.extend(stage_dma(s))
        self.stamp()
        self.srd(sWS, WS_SIZE)
        self.srd(sWP, 32 * 800)
        self.srd(sDB, 256)
        self.srd(sW2, 1536 * 1280)
        self.srd(sWO, 640 * 1280)
        self.srd(sOUT, 2048 * 1280)
        S.release('WQKV')
        self.sNONCE = self.s('nonce'); self.sCNT = self.s('cnt')
        self.vNONCE = self.v('nonce')
        vF = self.v('fa')
        sRT = self.s('rt', 2)
        P('s_memrealtime %s' % sr(sRT, 2))
        vWL = self.v('wl', 2)
        P('s_mul_i32 s%d, s%d, 1600' % (sT, sJ))
        P('v_lshlrev_b32 v%d, 2, v0' % t1)
        P('buffer_load_dword v%d, v%d, %s, s%d offen' % (vWL, t1, sr(sWP, 4), sT))
        P('buffer_load_dword v%d, v%d, %s, s%d offen offset:800' % (vWL + 1, t1, sr(sWP, 4), sT))
        P('s_or_b32 s%d, s%d, 1' % (sRT, sRT))
        P('v_mov_b32 v%d, s%d' % (t2, sRT))
        P('s_lshl_b32 s%d, s2, 10' % sT)
        P('v_add_u32 v%d, s%d, v0' % (t3, sT))
        P('v_lshlrev_b32 v%d, 8, v%d' % (t3, t3))
        P('buffer_store_dword v%d, v%d, %s, 0 offen sc1' % (t2, t3, sr(sDB, 4)), 'nonce')
        S.release('rt')
        vZero = self.v('zero')
        P('v_mov_b32 v%d, 0' % vZero)
        P('buffer_load_dword v%d, v%d, %s, 0 offen sc1' % (self.vNONCE, vZero, sr(sDB, 4)), 'noncel')
        vZ4 = self.v('z4', 4)
        for i in range(4):
            P('v_mov_b32 v%d, 0' % (vZ4 + i))
        P('v_lshlrev_b32 v%d, 4, v0' % t1)
        P('v_add_u32 v%d, %d, v%d' % (t1, L_WT, t1))
        P('ds_write_b128 v%d, %s' % (t1, vr(vZ4, 4)))
        V.release('z4')
        vG = self.v('g'); vR4 = self.v('r4'); vC4 = self.v('c4'); vHF = self.v('hf'); vT32 = self.v('t32')
        P('v_lshrrev_b32 v%d, 4, v%d' % (vG, vLane))
        P('v_bfe_u32 v%d, v%d, 2, 2' % (vR4, vLane))
        P('v_and_b32 v%d, 3, v%d' % (vC4, vLane))
        P('v_lshrrev_b32 v%d, 5, v%d' % (vHF, vLane))
        P('v_and_b32 v%d, 31, v%d' % (vT32, vLane))
        self.vG, self.vR4, self.vC4, self.vHF, self.vT32 = vG, vR4, vC4, vHF, vT32
        vSEL = self.v('sel', 4)
        sONE = self.s('ones')
        P('s_mov_b32 s%d, 0x3f803f80' % sONE)
        P('v_xor_b32 v%d, v%d, v%d' % (t1, vG, vR4))
        P('v_and_b32 v%d, 1, v%d' % (t1, t1))
        P('v_cmp_eq_u32 vcc, 0, v%d' % t1)
        P('v_mov_b32 v%d, s%d' % (t2, sONE))
        for i in range(4):
            P('v_cndmask_b32 v%d, 0, v%d, vcc' % (vSEL + i, t2))
        vXR = self.v('xr', 4)
        P('v_bfe_u32 v%d, v%d, 1, 3' % (t1, vLane))
        P('v_xor_b32 v%d, v%d, v%d' % (t1, t1, vHF))
        P('v_lshlrev_b32 v%d, 4, v%d' % (t1, t1))
        P('v_lshl_add_u32 v%d, v%d, 7, v%d' % (t1, vT32, t1))
        P('v_add_u32 v%d, s%d, v%d' % (vXR, sMX, t1))
        for u in range(1, 4):
            P('v_xor_b32 v%d, %d, v%d' % (vXR + u, 32 * u, vXR))
        vWR = self.v('wr')
        P('v_lshl_add_u32 v%d, v%d, 3, v%d' % (t1, vHF, vR4))
        P('v_mul_u32_u24 v%d, 192, v%d' % (t1, t1))
        P('v_and_b32 v%d, 1, v%d' % (t2, vG))
        P('v_lshl_add_u32 v%d, v%d, 5, v%d' % (t1, t2, t1))
        P('v_lshl_add_u32 v%d, v%d, 3, v%d' % (t1, vC4, t1))
        P('v_add_u32 v%d, %d, v%d' % (vWR, L_W1, t1))
        vES = self.v('es'); vES2 = self.v('es2'); vEC = self.v('ec'); vER = self.v('er')
        sSec = self.s('sec')
        P('s_mul_i32 s%d, s%d, 205' % (sSec, sL))
        P('s_lshr_b32 s%d, s%d, 11' % (sSec, sSec))
        P('s_mul_i32 s%d, s%d, 10' % (sT, sSec))
        P('s_sub_u32 s%d, s%d, s%d' % (sT, sL, sT))
        P('s_lshl_b32 s%d, s%d, 6' % (sT, sT))
        P('s_lshl4_add_u32 s%d, s%d, s%d' % (sT, sW, sT))
        P('s_mul_i32 s%d, s%d, 40' % (sT2, sSec))
        P('s_sub_u32 s%d, s%d, 40' % (sT2, sT2))
        P('s_cmp_eq_u32 s%d, 0' % sSec)
        P('s_cselect_b32 s%d, 80, s%d' % (sT2, sT2))
        P('v_and_b32 v%d, 15, v%d' % (t1, vLane))
        P('v_add_u32 v%d, s%d, v%d' % (t1, sT, t1))
        P('v_mul_u32_u24 v%d, 1639, v%d' % (t2, t1))
        P('v_lshrrev_b32 v%d, 16, v%d' % (t2, t2))
        P('v_mul_u32_u24 v%d, 40, v%d' % (t3, t2))
        P('v_sub_u32 v%d, v%d, v%d' % (t1, t1, t3))
        P('v_add_u32 v%d, s%d, v%d' % (t1, sT2, t1))
        P('v_mul_u32_u24 v%d, %d, v%d' % (t2, WQ_J, t2))
        P('v_lshrrev_b32 v%d, 5, v%d' % (t3, t1))
        P('v_mul_u32_u24 v%d, %d, v%d' % (t3, TILE, t3))
        P('v_add_u32 v%d, v%d, v%d' % (t2, t2, t3))
        P('v_and_b32 v%d, 31, v%d' % (t1, t1))
        P('v_lshl_add_u32 v%d, v%d, 4, v%d' % (t2, t1, t2))
        P('s_cmp_lt_u32 s2, 240')
        P('s_cselect_b32 s%d, %d, 0x%x' % (sT, WQ_OFF, OOB))
        P('v_add_u32 v%d, s%d, v%d' % (t2, sT, t2))
        P('s_lshr_b32 s%d, s%d, 2' % (sT, sKQ))
        P('s_lshl_b32 s%d, s%d, 9' % (sT, sT))
        P('s_and_b32 s%d, s%d, 3' % (sT2, sKQ))
        P('s_lshl2_add_u32 s%d, s%d, s%d' % (sT, sT2, sT))
        P('s_add_u32 s%d, s%d, %d' % (sT, sT, 40 * 1024))
        P('v_add_u32 v%d, s%d, v%d' % (vEC, sT, t2))
        P('v_cmp_gt_u32 vcc, 16, v%d' % vLane)
        P('v_mov_b32 v%d, 0x%x' % (t3, OOB))
        P('v_cndmask_b32 v%d, v%d, v%d, vcc' % (vEC, t3, vEC))
        P('s_mul_i32 s%d, s%d, 5120' % (sT, sKQ))
        P('v_and_b32 v%d, 1, v%d' % (t1, vG))
        P('v_lshl_add_u32 v%d, v%d, 9, v%d' % (t2, t1, t2))
        P('v_lshl_add_u32 v%d, v%d, 10, v%d' % (t2, vHF, t2))
        P('v_add_u32 v%d, s%d, v%d' % (vES, sT, t2))
        P('v_cmp_gt_u32 vcc, 32, v%d' % vLane)
        P('v_add_u32 v%d, 4096, v%d' % (vES2, vES))
        P('v_cndmask_b32 v%d, v%d, v%d, vcc' % (vES2, t3, vES2))
        P('v_lshl_add_u32 v%d, v%d, 3, v%d' % (t1, vG, vR4))
        P('v_lshlrev_b32 v%d, 7, v%d' % (t1, t1))
        P('v_lshl_add_u32 v%d, v%d, 3, v%d' % (t1, vC4, t1))
        P('s_lshl_b32 s%d, s%d, 5' % (sT, sW))
        P('s_add_u32 s%d, s%d, %d' % (sT, sT, L_EU))
        P('v_add_u32 v%d, s%d, v%d' % (vER, sT, t1))
        S.release('sec', 'kq', 'Ln')
        vWA = self.v('wa')
        P('v_mul_u32_u24 v%d, 6554, v0' % t1)
        P('v_lshrrev_b32 v%d, 16, v%d' % (t1, t1))
        P('v_mul_u32_u24 v%d, 10, v%d' % (t2, t1))
        P('v_sub_u32 v%d, v0, v%d' % (t2, t2))
        P('v_cmp_le_u32 vcc, 5, v%d' % t2)
        P('v_cndmask_b32 v%d, 0, 1, vcc' % t3)
        P('v_lshlrev_b32 v%d, 6, v%d' % (t1, t1))
        P('v_lshl_add_u32 v%d, v%d, 3, v%d' % (t1, t3, t1))
        P('v_mul_u32_u24 v%d, 5, v%d' % (t3, t3))
        P('v_sub_u32 v%d, v%d, v%d' % (t2, t2, t3))
        P('v_lshrrev_b32 v%d, 1, v%d' % (t3, t2))
        P('v_lshl_add_u32 v%d, v%d, 4, v%d' % (t1, t3, t1))
        P('v_and_b32 v%d, 1, v%d' % (t2, t2))
        P('v_lshl_add_u32 v%d, v%d, 2, v%d' % (t1, t2, t1))
        P('v_add_u32 v%d, %d, v%d' % (t1, L_WT, t1))
        P('v_cmp_gt_u32 vcc, 200, v0')
        P('v_mov_b32 v%d, %d' % (t2, L_DUMMY - 2304))
        P('v_cndmask_b32 v%d, v%d, v%d, vcc' % (vWA, t2, t1))
        P('v_mov_b32 v%d, %d' % (t2, L_DUMMY))
        P('v_cndmask_b32 v%d, v%d, v%d, vcc' % (t1, t2, t1))
        P.wait_vm('eu')
        P.wait_lgkm()
        P('s_barrier')
        vE = self.v('e', 12)
        for p in range(3):
            for run in range(2):
                P('ds_read_b64_tr_b16 %s, v%d offset:%d' % (vr(vE + 4 * p + 2 * run, 2), vER, p * 4096 + run * 512))
        for p in range(3):
            a = vES if p < 2 else vES2
            P('buffer_store_dwordx4 %s, v%d, %s, 0 offen offset:%d sc1' %
              (vr(vE + 4 * p, 4), a, sr(sWS, 4), 2048 if p == 1 else 0), 'eus')
        P('v_mov_b32 v%d, 0' % t2)
        for i in range(12):
            P('v_dot2_f32_bf16 v%d, v%d, s%d, v%d' % (t2, vE + i, sONE, t2))
        self.xswap_sum(P, t2, t3)
        self.xswap_sum(P, t2, t3, swap='v_permlane16_swap_b32')
        P('v_cvt_pk_bf16_f32 v%d, v%d, v%d' % (t3, t2, t2))
        P('v_lshlrev_b32 v%d, 16, v%d' % (t3, t3))
        P('v_sub_f32 v%d, v%d, v%d' % (t3, t2, t3))
        P('v_cvt_pk_bf16_f32 v%d, v%d, v%d' % (t2, t2, t3))
        P('buffer_store_dword v%d, v%d, %s, 0 offen sc1' % (t2, vEC, sr(sWS, 4)), 'eus')
        V.release('e', 'es', 'es2', 'ec', 'er')
        P('ds_write_b32 v%d, v%d' % (t1, vWL))
        P('ds_write_b32 v%d, v%d offset:%d' % (vWA, vWL + 1, 2048 + 256))
        V.release('wl', 'wa')
        S.release('WPHI')
        self.stamp()

        vH = self.v('accH', 48)
        vWF = self.v('wf', 24)
        vXC = self.v('xc', 8)
        vCS = self.v('cs', 12)
        vSUM = self.v('sum', 4)
        vSS = self.v('ss', 2)
        vWP = self.v('wphi', 16)
        P('v_mov_b32 v%d, 0' % vSS)
        P('v_mov_b32 v%d, 0' % (vSS + 1))
        for i in range(12):
            P('v_mov_b32 v%d, 0' % (vCS + i))

        def rd_step(Q, s, u):
            slot = s % NSLOT
            ks = 4 * s + u
            b = ks & 1
            Q('ds_read_b128 %s, v%d offset:%d' % (ar(4 * ks, 4), vXR + u, slot * 4096))
            for T in range(3):
                for run in range(2):
                    Q('ds_read_b64_tr_b16 %s, v%d offset:%d' %
                      (vr(vWF + 12 * b + 4 * T + 2 * run, 2), vWR, slot * 12288 + (16 * u + 4 * run) * 192 + T * 64))
            Q('ds_read_b128 %s, v%d offset:%d' % (vr(vXC + 4 * b, 4), vXR + u, slot * 4096))

        for s in range(10):
            P.wait_vm('st%d' % s)
            P.wait_lgkm()
            P('s_barrier')
            if s == 0:
                P('v_lshl_add_u32 v%d, v%d, 2, v%d' % (t1, vHF, vR4))
                P('v_lshlrev_b32 v%d, 6, v%d' % (t1, t1))
                P('v_and_b32 v%d, 1, v%d' % (t2, vG))
                P('v_lshl_add_u32 v%d, v%d, 5, v%d' % (t1, t2, t1))
                P('v_lshl_add_u32 v%d, v%d, 3, v%d' % (t1, vC4, t1))
                P('v_add_u32 v%d, %d, v%d' % (t1, L_WT, t1))
                for hh in range(2):
                    for win in range(2):
                        for run in range(2):
                            P('ds_read_b64_tr_b16 %s, v%d offset:%d' %
                              (vr(vWP + 8 * hh + 4 * win + 2 * run, 2), t1, hh * 2048 + (16 * win + 8 * run) * 64))
            rd_step(P, s, 0)
            if s + NSLOT - 1 < 10:
                P.extend(stage_dma(s + NSLOT - 1))
            if s == 4:
                self.nonce_check(P, sDB, vZero)
                P('s_lshl_b32 s%d, s2, 2' % sT)
                P('s_add_u32 s%d, s%d, %d' % (sT, sT, F1_OFF))
                P('v_mov_b32 v%d, s%d' % (vF, sT))
                P('v_cmp_eq_u32 vcc, 0, v0')
                P('v_mov_b32 v%d, 0x%x' % (t1, OOB))
                P('v_cndmask_b32 v%d, v%d, v%d, vcc' % (vF, t1, vF))
                self.flag_store(P, vF)
            for u in range(4):
                ks = 4 * s + u
                b = ks & 1
                if u < 3:
                    rd_step(P, s, u + 1)
                for T in range(3):
                    c = '0' if ks == 0 else vr(vH + 16 * T, 16)
                    P('v_mfma_f32_32x32x16_bf16 %s, %s, %s, %s' %
                      (vr(vH + 16 * T, 16), vr(vWF + 12 * b + 4 * T, 4), ar(4 * ks, 4), c))
                c = '0' if ks == 0 else vr(vSUM, 4)
                P('v_mfma_f32_16x16x32_bf16 %s, %s, %s, %s' % (vr(vSUM, 4), vr(vSEL, 4), ar(4 * ks, 4), c))
                self.nlab += 1
                L = 'Lcs%d' % self.nlab
                P('s_cmp_lg_u32 s%d, %d' % (sW, u))
                P('s_cbranch_scc1 %s' % L)
                for T in range(3):
                    P('v_mfma_f32_16x16x32_bf16 %s, %s, %s, %s' %
                      (vr(vCS + 4 * T, 4), vr(vSEL, 4), vr(vWF + 12 * b + 4 * T, 4), vr(vCS + 4 * T, 4)))
                P('%s:' % L)
                for i in range(4):
                    P('v_dot2_f32_bf16 v%d, v%d, v%d, v%d' %
                      (vSS + (i & 1), vXC + 4 * b + i, vXC + 4 * b + i, vSS + (i & 1)))
        self.stamp()
        V.release('xd', 'w1d', 'xr', 'wr', 'xc', 'sel', 'zero')
        S.release('mx', 'mw', 'W1')
        self.sDB = sDB
        if self.ts != 3:
            S.release('DBG')
        vPL = self.v('pl', 4)
        vPA = self.v('pa')
        P('v_min_u32 v%d, 59, v%d' % (vPA, vLane))
        P('v_lshlrev_b32 v%d, 4, v%d' % (vPA, vPA))
        P('v_add_u32 v%d, %d, v%d' % (vPA, F1_OFF, vPA))
        self.poll_issue(P, vPL, 4, vPA, 'f1')
        P('v_lshlrev_b32 v%d, 4, v%d' % (t1, vT32))
        P('v_add_u32 v%d, %d, v%d' % (t1, L_CT, t1))
        vCA = self.v('ca')
        P('s_lshl_b32 s%d, s%d, 2' % (sT, sW))
        P('v_add_u32 v%d, s%d, v%d' % (vCA, sT, t1))
        for T in range(3):
            a = vCS + 4 * T
            P('v_cvt_pk_bf16_f32 v%d, v%d, v%d' % (t3, a, a))
            P('v_lshlrev_b32 v%d, 16, v%d' % (t3, t3))
            P('v_sub_f32 v%d, v%d, v%d' % (t3, a, t3))
            P('v_cvt_pk_bf16_f32 v%d, v%d, v%d' % (a + 1, a, t3))
            P('ds_write_b32 v%d, v%d offset:%d' % (vCA, a + 1, T * 512))
        V.release('ca')
        vRS = self.v('rstd')
        vNM = self.v('negm', 4)
        vNH = self.v('negmh', 4)
        P('v_add_f32 v%d, v%d, v%d' % (vSS, vSS, vSS + 1))
        self.xswap_sum(P, vSS, t2)
        P('v_mul_f32 v%d, 0x3acccccd, v%d' % (t2, vSUM))
        P('v_mul_f32 v%d, 0x3acccccd, v%d' % (vSS, vSS))
        P('v_fma_f32 v%d, -v%d, v%d, v%d' % (vSS, t2, t2, vSS))
        P('v_max_f32 v%d, 0, v%d' % (vSS, vSS))
        P('v_cvt_pk_bf16_f32 v%d, v%d, v%d' % (vSS, vSS, vSS))
        P('v_lshlrev_b32 v%d, 16, v%d' % (vSS, vSS))
        P('v_add_f32 v%d, 0x3727c5ac, v%d' % (vSS, vSS))
        P('v_cvt_pk_bf16_f32 v%d, v%d, v%d' % (vSS, vSS, vSS))
        P('v_lshlrev_b32 v%d, 16, v%d' % (vSS, vSS))
        P('v_sqrt_f32 v%d, v%d' % (vSS, vSS))
        P('v_cvt_pk_bf16_f32 v%d, v%d, v%d' % (vSS, vSS, vSS))
        P('v_lshlrev_b32 v%d, 16, v%d' % (vSS, vSS))
        P('v_rcp_f32 v%d, v%d' % (vRS, vSS))
        P('v_cvt_pk_bf16_f32 v%d, -v%d, -v%d' % (vNM, t2, t2))
        P('v_lshlrev_b32 v%d, 16, v%d' % (t3, vNM))
        P('v_mul_f32 v%d, 0.5, v%d' % (t3, t3))
        P('v_cvt_pk_bf16_f32 v%d, v%d, v%d' % (vNH, t3, t3))
        for i in range(1, 4):
            P('v_mov_b32 v%d, v%d' % (vNM + i, vNM))
            P('v_mov_b32 v%d, v%d' % (vNH + i, vNH))
        V.release('ss', 'sum')
        P.wait_lgkm()
        P('s_barrier')
        for T in range(3):
            P('ds_read_b128 %s, v%d offset:%d' % (vr(vWF + 4 * T, 4), t1, T * 512))
        self.poll_check(P, vPL, 4, vPA, 1)
        self.stamp()
        sTB = self.s('tb')
        sMB = self.s('mb')
        P('s_mul_i32 s%d, s%d, %d' % (sTB, sJ, WQ_J))
        P('s_mul_i32 s%d, s%d, 10240' % (sMB, sW))

        def tile_dma(T, lds):
            Q = Prog()
            for grp in range(3):
                Q('s_add_u32 s%d, s%d, s%d' % (sSO, sTB, sMB))
                Q('s_add_u32 s%d, s%d, %d' % (sSO, sSO, WQ_OFF + T * TILE + grp * 4096))
                Q('s_add_u32 m0, s%d, %d' % (sMB, lds + grp * 4096))
                for i in range(4 if grp < 2 else 2):
                    Q('buffer_load_dwordx4 v%d, %s, s%d offen offset:%d sc1 lds' % (vL16, sr(sWS, 4), sSO, i * 1024),
                      'tile%d' % T)
            Q('s_add_u32 s%d, s%d, %d' % (sSO, sTB, WQ_OFF + T * TILE + 40960))
            Q('s_mov_b32 m0, %d' % (lds + 40960))
            Q('buffer_load_dwordx4 v%d, %s, s%d offen sc1 lds' % (vL16, sr(sWS, 4), sSO), 'tile%d' % T)
            return Q
        P.extend(tile_dma(0, L_A))
        P.extend(tile_dma(1, L_B))
        for T in range(3):
            P('v_mfma_f32_32x32x16_bf16 %s, %s, %s, %s' %
              (vr(vH + 16 * T, 16), vr(vWF + 4 * T, 4), vr(vNH, 4), vr(vH + 16 * T, 16)))
        P.extend(tile_dma(2, L_C))
        V.release('negmh', 'cs')
        sU = self.s('u'); sKS = self.s('ks'); sSel = self.s('sel', 4); sRB = self.s('rb')
        P('s_lshl_b32 s%d, s%d, 8' % (sU, sW))
        P('s_add_u32 s%d, s%d, s2' % (sU, sU))
        P('s_lshr_b32 s%d, s%d, 3' % (sKS, sU))
        P('s_cmp_lt_u32 s%d, 48' % sKS)
        for i in range(4):
            P('s_cselect_b32 s%d, s%d, s%d' % (sSel + i, sW2 + i, sWO + i))
        vUA = self.v('ua')
        P('s_and_b32 s%d, s%d, 7' % (sT, sU))
        P('s_mul_i32 s%d, s%d, 160' % (sT, sT))
        P('s_cmp_lt_u32 s%d, 544' % sU)
        P('s_cselect_b32 s%d, s%d, 0x%x' % (sT, sT, OOB))
        P('v_mul_u32_u24 v%d, 1280, v%d' % (vUA, vG))
        P('v_and_b32 v%d, 15, v%d' % (t2, vLane))
        P('v_lshl_add_u32 v%d, v%d, 4, v%d' % (vUA, t2, vUA))
        P('v_add_u32 v%d, s%d, v%d' % (vUA, sT, vUA))
        P('v_cmp_gt_u32 vcc, 10, v%d' % t2)
        P('v_mov_b32 v%d, 0x%x' % (t3, OOB))
        P('v_cndmask_b32 v%d, v%d, v%d, vcc' % (vUA, t3, vUA))
        P('s_lshl_b32 s%d, s%d, 13' % (sM, sW))
        sG5 = self.s('g5'); sCC = self.s('cc'); sRW = self.s('rw')
        for g in range(4):
            P('s_sub_u32 s%d, s%d, 48' % (sG5, sKS))
            P('s_lshl2_add_u32 s%d, s%d, %d' % (sG5, sG5, g))
            P('s_and_b32 s%d, s%d, 0xff' % (sG5, sG5))
            P('s_mul_i32 s%d, s%d, 205' % (sCC, sG5))
            P('s_lshr_b32 s%d, s%d, 10' % (sCC, sCC))
            P('s_mul_i32 s%d, s%d, 40' % (sRB, sCC))
            P('s_mul_i32 s%d, s%d, 5' % (sCC, sCC))
            P('s_sub_u32 s%d, s%d, s%d' % (sCC, sG5, sCC))
            P('s_lshr_b32 s%d, s%d, 1' % (sT, sCC))
            P('s_mul_i32 s%d, s%d, 20' % (sT, sT))
            P('s_and_b32 s%d, s%d, 1' % (sT2, sCC))
            P('s_lshl3_add_u32 s%d, s%d, s%d' % (sT, sT2, sT))
            P('s_cmp_eq_u32 s%d, 4' % sCC)
            P('s_cselect_b32 s%d, 16, s%d' % (sT, sT))
            P('s_cselect_b32 s%d, 20, 4' % sT2)
            P('s_add_u32 s%d, s%d, s%d' % (sRB, sRB, sT))
            P('s_lshl_b32 s%d, s%d, 5' % (sT, sKS))
            P('s_add_u32 s%d, s%d, %d' % (sT, sT, 16 * (g >> 1) + 4 * (g & 1)))
            P('s_cmp_lt_u32 s%d, 48' % sKS)
            P('s_cselect_b32 s%d, s%d, s%d' % (sRB, sT, sRB))
            P('s_cselect_b32 s%d, 8, s%d' % (sT2, sT2))
            for run in range(2):
                if run:
                    P('s_add_u32 s%d, s%d, s%d' % (sRB, sRB, sT2))
                P('s_mul_i32 s%d, s%d, 1280' % (sRW, sRB))
                P('s_add_u32 m0, s%d, %d' % (sM, L_ST + (2 * g + run) * 1024))
                P('buffer_load_dwordx4 v%d, %s, s%d offen lds' % (vUA, sr(sSel, 4), sRW), 'w2u')
        S.release('g5', 'cc', 'rw', 'rb', 'sel', 'W2', 'WO')
        V.release('ua')
        vHA = self.v('ha')
        sHB = self.s('hb')
        P('s_lshr_b32 s%d, s%d, 1' % (sT, sW))
        P('s_lshl1_add_u32 s%d, s%d, s%d' % (sHB, sR, sT))
        sRP = self.s('rp')
        P('s_mov_b32 s%d, s%d' % (sRP, sHB))
        P('s_mul_i32 s%d, s%d, %d' % (sHB, sHB, HO_R))
        P('s_and_b32 s%d, s%d, 1' % (sT, sW))
        P('s_lshl_b32 s%d, s%d, 11' % (sT, sT))
        P('s_add_u32 s%d, s%d, s%d' % (sHB, sHB, sT))
        P('s_add_u32 s%d, s%d, %d' % (sHB, sHB, HO_OFF))
        vTK = self.v('tk')
        P('v_and_b32 v%d, 15, v%d' % (t2, vLane))
        P('v_lshlrev_b32 v%d, 4, v%d' % (t2, t2))
        P('v_bfe_u32 v%d, v%d, 4, 1' % (t3, vLane))
        P('v_lshl_add_u32 v%d, v%d, 10, v%d' % (vTK, t3, t2))
        P('v_lshl_add_u32 v%d, v%d, 8, v%d' % (vHA, vHF, vTK))
        P('s_mul_i32 s%d, s%d, %d' % (sT, sJ, 3 * 4096))
        P('s_add_u32 s%d, s%d, s%d' % (sSO, sHB, sT))
        vC = self.v('c', 4)
        P('v_mov_b32 v%d, v%d' % (vC, vRS))
        P('v_mul_f32 v%d, 0x%x, v%d' % (vC + 2, LOG2E | 0x80000000, vRS))
        vE = self.v('e', 16)
        vPK = self.v('pk', 8)
        for T in range(3):
            a = vH + 16 * T
            for i in range(0, 16, 2):
                P('v_pk_mul_f32 %s, %s, %s op_sel_hi:[1,0]' % (vr(vE + i, 2), vr(a + i, 2), vr(vC + 2, 2)))
            for i in range(16):
                P('v_exp_f32 v%d, v%d' % (vE + i, vE + i))
            for i in range(0, 16, 2):
                P('v_pk_mul_f32 %s, %s, %s op_sel_hi:[1,0]' % (vr(a + i, 2), vr(a + i, 2), vr(vC, 2)))
            for i in range(0, 16, 2):
                P('v_pk_add_f32 %s, %s, 1.0 op_sel_hi:[1,0]' % (vr(vE + i, 2), vr(vE + i, 2)))
            for i in range(16):
                P('v_rcp_f32 v%d, v%d' % (vE + i, vE + i))
            for i in range(0, 16, 2):
                P('v_pk_mul_f32 %s, %s, %s' % (vr(a + i, 2), vr(a + i, 2), vr(vE + i, 2)))
            for i in range(8):
                P('v_cvt_pk_bf16_f32 v%d, v%d, v%d' % (vPK + i, a + 2 * i, a + 2 * i + 1))
            for ip in range(2):
                P('buffer_store_dwordx4 %s, v%d, %s, s%d offen offset:%d sc1' %
                  (vr(vPK + 4 * ip, 4), vHA, sr(sWS, 4), sSO, ip * 512), 'hst')
            if T < 2:
                P('s_add_u32 s%d, s%d, 4096' % (sSO, sSO))
        V.release('e', 'pk', 'accH', 'c', 'wf', 'ha')
        self.stamp()
        if self.stop == 'h':
            return self.finish()

        vQ = self.v('accQ', 64)
        NWF = 6
        vWF = self.v('wf', 4 * NWF)
        vRA = self.v('ra')
        P('v_add_u32 v%d, %d, v%d' % (vRA, L_C, vL16))

        def tile_main(T):
            Q = Prog()
            lds = [L_A, L_B, L_C, L_A][T]

            def rd(ks):
                if lds == L_C:
                    Q('ds_read_b128 %s, v%d offset:%d' % (vr(vWF + 4 * (ks % NWF), 4), vRA, ks * 1024))
                elif lds + ks * 1024 < 65536:
                    Q('ds_read_b128 %s, v%d offset:%d' % (vr(vWF + 4 * (ks % NWF), 4), vL16, lds + ks * 1024))
                else:
                    Q('ds_read_b128 %s, v%d offset:%d' % (vr(vWF + 4 * (ks % NWF), 4), vRB, ks * 1024))
            for ks in range(NWF - 1):
                rd(ks)
            for ks in range(41):
                if ks + NWF - 1 < 41:
                    rd(ks + NWF - 1)
                b = ar(4 * ks, 4) if ks < 40 else vr(vNM, 4)
                c = '0' if ks == 0 else vr(vQ + 16 * T, 16)
                Q('v_mfma_f32_32x32x16_bf16 %s, %s, %s, %s' % (vr(vQ + 16 * T, 16), vr(vWF + 4 * (ks % NWF), 4), b, c))
            return Q
        vRB = self.v('rb')
        P('v_add_u32 v%d, %d, v%d' % (vRB, L_B, vL16))

        def w2_unit():
            Q = Prog()
            vU = vEX
            ta = vSM; tb = vSM + 1
            Q('v_lshl_add_u32 v%d, v%d, 3, v%d' % (ta, vG, vR4))
            Q('v_lshlrev_b32 v%d, 8, v%d' % (ta, ta))
            Q('v_mul_u32_u24 v%d, 40, v%d' % (tb, vC4))
            Q('v_add_u32 v%d, v%d, v%d' % (ta, ta, tb))
            Q('s_lshl_b32 s%d, s%d, 13' % (sT, sW))
            Q('s_add_u32 s%d, s%d, %d' % (sT, sT, L_ST))
            Q('v_add_u32 v%d, s%d, v%d' % (ta, sT, ta))
            Q.wait_vm('w2u')
            for ft in range(5):
                for run in range(2):
                    Q('ds_read_b64_tr_b16 %s, v%d offset:%d' % (vr(vU + 4 * ft + 2 * run, 2), ta, run * 1024 + ft * 8))
            Q('s_and_b32 s%d, s%d, 7' % (sT, sU))
            Q('s_mul_i32 s%d, s%d, %d' % (sT2, sT, W2_C))
            Q('s_mul_i32 s%d, s%d, 5120' % (sM, sKS))
            Q('s_add_u32 s%d, s%d, s%d' % (sM, sM, sT2))
            Q('s_add_u32 s%d, s%d, %d' % (sM, sM, W2_OFF))
            Q('s_lshl_b32 s%d, s%d, 7' % (sT, sT))
            Q('s_add_u32 s%d, s%d, s%d' % (sT, sT, sKS))
            Q('s_lshl_b32 s%d, s%d, 2' % (sT, sT))
            Q('s_add_u32 s%d, s%d, %d' % (sT, sT, F2_OFF))
            Q('s_cmp_lt_u32 s%d, 544' % sU)
            Q('s_cselect_b32 s%d, s%d, 0x%x' % (sM, sM, SOOB))
            Q('s_cselect_b32 s%d, s%d, 0x%x' % (sT, sT, SOOB))
            Q('v_add_u32 v%d, 4096, v%d' % (tb, vL16))
            for ft in range(5):
                Q('buffer_store_dwordx4 %s, v%d, %s, s%d offen offset:%d sc1' %
                  (vr(vU + 4 * ft, 4), vL16 if ft < 4 else tb, sr(sWS, 4), sM, (ft & 3) * 1024), 'w2s')
            Q('v_lshlrev_b32 v%d, 24, v%d' % (vF2, vLane))
            Q('v_add_u32 v%d, s%d, v%d' % (vF2, sT, vF2))
            return Q
        vF2 = self.v('f2')

        def pack(Q, dst, src, n, pk):
            for i in range(0, n, 2):
                if pk:
                    Q('v_pk_mul_f32 %s, %s, %s op_sel_hi:[1,0]' % (vr(src + i, 2), vr(src + i, 2), vr(vRS2, 2)))
                else:
                    Q('v_mul_f32 v%d, v%d, v%d' % (src + i, vRS, src + i))
                    Q('v_mul_f32 v%d, v%d, v%d' % (src + i + 1, vRS, src + i + 1))
                Q('v_cvt_pk_bf16_f32 v%d, v%d, v%d' % (dst + i // 2, src + i, src + i + 1))
        vRS2 = self.v('rs2', 2)
        P('v_mov_b32 v%d, v%d' % (vRS2, vRS))

        def softmax(Q, pq, out, pk):
            mx, mn, sp, sn, tt = vSM, vSM + 1, vSM + 2, vSM + 3, vSM + 4
            ep, en = vEX, vEX + 10
            Q('v_max3_f32 v%d, v%d, v%d, v%d' % (mx, pq, pq + 1, pq + 2))
            Q('v_min3_f32 v%d, v%d, v%d, v%d' % (mn, pq, pq + 1, pq + 2))
            for i in (3, 5, 7):
                Q('v_max3_f32 v%d, v%d, v%d, v%d' % (mx, mx, pq + i, pq + i + 1))
                Q('v_min3_f32 v%d, v%d, v%d, v%d' % (mn, mn, pq + i, pq + i + 1))
            Q('v_max_f32 v%d, v%d, v%d' % (mx, mx, pq + 9))
            Q('v_min_f32 v%d, v%d, v%d' % (mn, mn, pq + 9))
            Q('v_mov_b32 v%d, v%d' % (sp, mx))
            Q('v_mov_b32 v%d, v%d' % (sn, mn))
            Q('v_permlane32_swap_b32 v%d, v%d' % (mx, sp))
            Q('v_permlane32_swap_b32 v%d, v%d' % (mn, sn))
            Q('v_max_f32 v%d, v%d, v%d' % (mx, mx, sp))
            Q('v_min_f32 v%d, v%d, v%d' % (mn, mn, sn))
            Q('v_mul_f32 v%d, s%d, v%d' % (mx, sL2E, mx))
            Q('v_mul_f32 v%d, s%d, v%d' % (mn, sL2E, mn))
            for i in range(10):
                Q('v_fma_f32 v%d, v%d, s%d, -v%d' % (ep + i, pq + i, sL2E, mx))
                Q('v_fma_f32 v%d, -v%d, s%d, v%d' % (en + i, pq + i, sL2E, mn))
            for i in range(10):
                Q('v_exp_f32 v%d, v%d' % (ep + i, ep + i))
                Q('v_exp_f32 v%d, v%d' % (en + i, en + i))
            Q('v_add_f32 v%d, v%d, v%d' % (sp, ep, ep + 1))
            Q('v_add_f32 v%d, v%d, v%d' % (sn, en, en + 1))
            for i in range(2, 10):
                Q('v_add_f32 v%d, v%d, v%d' % (sp, sp, ep + i))
                Q('v_add_f32 v%d, v%d, v%d' % (sn, sn, en + i))
            Q('v_mov_b32 v%d, v%d' % (mx, sp))
            Q('v_mov_b32 v%d, v%d' % (mn, sn))
            Q('v_permlane32_swap_b32 v%d, v%d' % (sp, mx))
            Q('v_permlane32_swap_b32 v%d, v%d' % (sn, mn))
            Q('v_add_f32 v%d, v%d, v%d' % (sp, sp, mx))
            Q('v_add_f32 v%d, v%d, v%d' % (sn, sn, mn))
            Q('v_rcp_f32 v%d, v%d' % (sp, sp))
            Q('v_rcp_f32 v%d, v%d' % (sn, sn))
            for i in range(10):
                Q('v_mul_f32 v%d, v%d, v%d' % (ep + i, sp, ep + i))
                Q('v_mul_f32 v%d, v%d, v%d' % (en + i, sn, en + i))
            for i in range(4):
                Q('v_cvt_pk_bf16_f32 v%d, v%d, v%d' % (out + i, ep + 2 * i, ep + 2 * i + 1))
                Q('v_cvt_pk_bf16_f32 v%d, v%d, v%d' % (out + 4 + i, en + 2 * i, en + 2 * i + 1))
            Q('v_cvt_pk_bf16_f32 v%d, v%d, v%d' % (out + 8, ep + 8, ep + 9))
            Q('v_cvt_pk_bf16_f32 v%d, v%d, v%d' % (out + 9, en + 8, en + 9))

        sL2E = self.s('l2e')
        P('s_mov_b32 s%d, 0x%x' % (sL2E, LOG2E))
        vSM = self.v('sm', 5)
        vEX = self.v('ex', 20)
        vPQ = self.v('pq', 32)
        vKB = self.v('kb', 12)
        vPH = self.v('ph', 24)
        vTA = self.v('ta')
        P('s_mul_i32 s%d, s%d, %d' % (sT, sW, 32 * TSTR))
        P('s_add_u32 s%d, s%d, %d' % (sT, sT, L_B))
        P('v_mul_u32_u24 v%d, %d, v%d' % (vTA, TSTR, vT32))
        P('v_add_u32 v%d, s%d, v%d' % (vTA, sT, vTA))

        def phi(Q, wins, pk):
            for wi, (src, n) in enumerate(wins):
                pack(Q, vKB + 4 * wi, src, n, pk)
                for i in range(n // 2, 4):
                    Q('v_mov_b32 v%d, 0' % (vKB + 4 * wi + i))
            for hh in range(2):
                for win in range(2):
                    c = '0' if win == 0 else vr(vPQ + 16 * hh, 16)
                    Q('v_mfma_f32_32x32x16_bf16 %s, %s, %s, %s' %
                      (vr(vPQ + 16 * hh, 16), vr(vWP + 8 * hh + 4 * win, 4), vr(vKB + 4 * (hh + win), 4), c))
            for hh in range(2):
                softmax(Q, vPQ + 16 * hh, vPH + 12 * hh, pk)

        P.wait_vm('tile0')
        P('s_barrier')
        self.stamp()
        P.extend(tile_main(0))
        P.wait_vm('tile1', 'hst')
        P.wait_lgkm()
        P('s_barrier')
        F = Prog()
        F('s_lshl4_add_u32 s%d, s%d, s%d' % (sT, sRP, sJ))
        F('s_lshl_b32 s%d, s%d, 1' % (sT, sT))
        F('s_and_b32 s%d, s%d, 1' % (sT2, sW))
        F('s_add_u32 s%d, s%d, s%d' % (sT, sT, sT2))
        F('s_lshl_b32 s%d, s%d, 2' % (sT, sT))
        sFH = self.s('fh')
        F('s_mov_b32 s%d, s%d' % (sFH, sT))
        F('s_add_u32 s%d, s%d, %d' % (sT, sT, FH_OFF))
        F('v_lshlrev_b32 v%d, 24, v%d' % (vF, vLane))
        F('v_add_u32 v%d, s%d, v%d' % (vF, sT, vF))
        self.flag_store(F, vF)
        F.extend(tile_dma(3, L_A))
        F.extend(w2_unit())
        m, left = interleave(tile_main(1), F, 16)
        P.extend(m); P.extend(left)
        P.wait_vm('tile2')
        P.wait_lgkm()
        P('s_barrier')
        self.stamp()
        F = Prog()
        F.wait_vm('w2s')
        self.flag_store(F, vF2)
        phi(F, [(vQ, 8), (vQ + 8, 8), (vQ + 16, 4)], False)
        F('v_lshl_add_u32 v%d, v%d, 3, v%d' % (vSM + 4, vHF, vTA))
        for hh in range(2):
            for i in range(5):
                F('ds_write_b64 v%d, %s offset:%d' % (vSM + 4, vr(vPH + 12 * hh + 2 * i, 2), hh * 80 + 16 * i))
        m, left = interleave(tile_main(2), F, 20)
        P.extend(m); P.extend(left)
        V.release('f2')
        S.release('u', 'ks')
        P.wait_vm('tile3')
        P.wait_lgkm()
        P('s_barrier')
        self.stamp()
        F = Prog()
        vVA = self.v('va', 4)
        deltas = {16: vVA, 32: vVA + 1, -8: vVA + 2, 8: vVA + 3}
        for dl, rg in deltas.items():
            F('v_mul_i32_i24 v%d, %d, v%d' % (rg, dl, vHF))
            F('v_add_u32 v%d, v%d, v%d' % (rg, rg, vTA))
        vw = [(10, 0, 16), (12, 8, 16), (14, 32, 32), (16, 80, -8), (18, 88, 8)]
        for n, (q, off, dl) in enumerate(vw):
            src = vQ + 16 * (q >> 3) + 4 * ((q & 7) >> 1)
            pack(F, vKB + 2 * n, src, 4, False)
            F('ds_write_b64 v%d, %s offset:%d' % (deltas[dl], vr(vKB + 2 * n, 2), 160 + off))
        F('v_mov_b32 v%d, 0x3f80' % (vKB + 10))
        F('v_mov_b32 v%d, 0' % (vKB + 11))
        for hh in range(2):
            F('ds_write_b64 v%d, %s offset:%d' % (deltas[8], vr(vKB + 10, 2), 160 + 64 * hh + 40))
        m, left = interleave(tile_main(3), F, 16)
        P.extend(m); P.extend(left)
        V.release('va', 'wf', 'ra', 'rb', 'negm')
        S.release('tb', 'mb')
        P.wait_lgkm()
        P('s_barrier')
        self.stamp()
        vKA = self.v('ka'); vKV = self.v('kvb')
        aKF = 0
        vKD = vPQ
        vKF = vEX
        P('v_lshl_add_u32 v%d, v%d, 3, v%d' % (t1, vHF, vR4))
        P('v_mul_u32_u24 v%d, %d, v%d' % (t1, TSTR, t1))
        P('v_and_b32 v%d, 1, v%d' % (t2, vG))
        P('v_lshl_add_u32 v%d, v%d, 5, v%d' % (t1, t2, t1))
        P('v_lshl_add_u32 v%d, v%d, 3, v%d' % (t1, vC4, t1))
        P('s_lshr_b32 s%d, s%d, 1' % (sT, sW))
        P('s_mul_i32 s%d, s%d, 80' % (sT2, sT))
        P('s_bitcmp1_b32 s%d, 0' % sW)
        P('s_cselect_b32 s%d, 64, 0' % sM)
        P('s_add_u32 s%d, s%d, s%d' % (sT2, sT2, sM))
        P('s_add_u32 s%d, s%d, %d' % (sT2, sT2, L_B))
        P('v_add_u32 v%d, s%d, v%d' % (vKA, sT2, t1))
        P('s_lshl_b32 s%d, s%d, 6' % (sT2, sT))
        P('s_add_u32 s%d, s%d, %d' % (sT2, sT2, L_B + 160))
        P('v_add_u32 v%d, s%d, v%d' % (vKV, sT2, t1))
        for ks in range(8):
            for run in range(2):
                off = (16 * ks + 4 * run) * TSTR
                P('ds_read_b64_tr_b16 %s, v%d offset:%d' % (ar(aKF + 8 * ks + 2 * run, 2), vKA, off))
            for run in range(2):
                off = (16 * ks + 4 * run) * TSTR
                P('ds_read_b64_tr_b16 %s, v%d offset:%d' % (ar(aKF + 8 * ks + 4 + 2 * run, 2), vKV, off))
        for ks in range(8):
            c = '0' if ks == 0 else vr(vKD, 16)
            P('v_mfma_f32_32x32x16_bf16 %s, %s, %s, %s' %
              (vr(vKD, 16), ar(aKF + 8 * ks, 4), ar(aKF + 8 * ks + 4, 4), c))
        vKI = self.v('ki')
        P('v_cmp_eq_u32 vcc, 24, v%d' % vT32)
        P('v_cndmask_b32 v%d, v%d, 21, vcc' % (t1, vT32))
        P('v_mad_u32_u24 v%d, v%d, 22, v%d' % (t2, vHF, t1))
        P('v_cmp_gt_u32 vcc, 22, v%d' % t1)
        P('v_cmp_ne_u32 s[%d:%d], 21, v%d' % (sPC, sPC + 1, vT32))
        P('s_and_b64 vcc, vcc, s[%d:%d]' % (sPC, sPC + 1))
        P('v_mov_b32 v%d, 0x%x' % (t3, OOB >> 4))
        P('v_cndmask_b32 v%d, v%d, v%d, vcc' % (vKI, t3, t2))
        sKB = self.s('kb')
        P('s_lshl1_add_u32 s%d, s%d, s%d' % (sKB, sJ, sT))
        P('s_lshl4_add_u32 s%d, s%d, s%d' % (sT2, sKB, sR))
        P('s_mul_i32 s%d, s%d, 1792' % (sM, sT2))
        P('s_add_u32 s%d, s%d, %d' % (sM, sM, KV_OFF))
        P('s_bitcmp1_b32 s%d, 0' % sW)
        P('s_cselect_b32 s%d, 0x%x, s%d' % (sSO, SOOB, sM))
        P('s_cselect_b32 s%d, s%d, 0x%x' % (sM, sM, SOOB))
        P('v_lshlrev_b32 v%d, 4, v%d' % (t1, vKI))
        P('v_lshlrev_b32 v%d, 3, v%d' % (t2, vKI))
        for i in range(8):
            P('v_cvt_pk_bf16_f32 v%d, v%d, v%d' % (vKF + i, vKD + 2 * i, vKD + 2 * i + 1))
        P('buffer_store_dwordx4 %s, v%d, %s, s%d offen sc1' % (vr(vKF, 4), t1, sr(sWS, 4), sSO), 'kvs')
        P('buffer_store_dwordx4 %s, v%d, %s, s%d offen offset:704 sc1' % (vr(vKF + 4, 4), t1, sr(sWS, 4), sSO), 'kvs')
        P('buffer_store_dwordx2 %s, v%d, %s, s%d offen offset:1408 sc1' % (vr(vKF, 2), t2, sr(sWS, 4), sM), 'kvs')
        P('s_and_b32 s%d, s%d, 1' % (sM, sW))
        P('s_lshl1_add_u32 s%d, s%d, s%d' % (sT2, sT2, sM))
        P('s_lshl_b32 s%d, s%d, 2' % (sT2, sT2))
        P('s_add_u32 s%d, s%d, %d' % (sT2, sT2, FK_OFF))
        P('v_lshlrev_b32 v%d, 24, v%d' % (vF, vLane))
        P('v_add_u32 v%d, s%d, v%d' % (vF, sT2, vF))
        V.release('ka', 'kvb')
        P('s_mul_i32 s%d, s%d, 12' % (sT2, sW))
        P('s_lshl_b32 s%d, s%d, 7' % (sM, sC3))
        P('s_add_u32 s%d, s%d, s%d' % (sT2, sT2, sM))
        P('v_min_u32 v%d, 24, v%d' % (t1, vLane))
        P('v_add_u32 v%d, s%d, v%d' % (t2, sT2, t1))
        P('s_mul_i32 s%d, s%d, 5' % (sT2, sW))
        P('s_add_u32 s%d, s%d, s%d' % (sT2, sT2, sM))
        P('s_add_u32 s%d, s%d, %d' % (sT2, sT2, 48 - 12))
        P('v_add_u32 v%d, s%d, v%d' % (t3, sT2, t1))
        P('v_cmp_gt_u32 vcc, 12, v%d' % t1)
        P('v_cndmask_b32 v%d, v%d, v%d, vcc' % (t2, t3, t2))
        sFC = self.s('fc')
        P('s_lshl_b32 s%d, s%d, 5' % (sFC, sR3))
        P('s_lshl3_add_u32 s%d, s%d, s%d' % (sFC, sW, sFC))
        P('s_add_u32 s%d, s%d, %d' % (sT2, sFC, (FH_OFF - F2_OFF) // 4 - 17))
        P('v_add_u32 v%d, s%d, v%d' % (t3, sT2, t1))
        P('v_cmp_gt_u32 vcc, 17, v%d' % t1)
        P('v_cndmask_b32 v%d, v%d, v%d, vcc' % (t2, t3, t2))
        P('v_lshlrev_b32 v%d, 2, v%d' % (t2, t2))
        P('v_add_u32 v%d, %d, v%d' % (vPA, F2_OFF, t2))
        self.poll_issue(P, vPL, 1, vPA, 'p3a')
        F = Prog()
        phi(F, [(vQ + 40, 8), (vQ + 48, 8), (vQ + 56, 4)], True)
        cut = 60
        P.items.extend(F.items[:cut])
        P.wait_vm('kvs')
        self.flag_store(P, vF)
        P.items.extend(F.items[cut:])
        for hh in range(2):
            P('v_mov_b32 v%d, 0' % (vPH + 12 * hh + 10))
            P('v_mov_b32 v%d, 0' % (vPH + 12 * hh + 11))
        V.release('accQ', 'sm', 'ex', 'pq', 'kb', 'ta', 'rs2', 'rstd', 'wphi')
        self.stamp()
        if self.stop == 'kv':
            return self.finish()

        DEPTH = 4
        bufs = [('a', 160), ('a', 196), ('v', self.v('b2', 36)), ('v', self.v('b3', 36))]
        sWB = self.s('wb'); sAB = self.s('ab')
        v4k = self.v('v4k')
        P('v_add_u32 v%d, 4096, v%d' % (v4k, vL16))
        P('s_mul_i32 s%d, s%d, %d' % (sWB, sC3, W2_C))
        P('s_mul_i32 s%d, s%d, %d' % (sAB, sR3, HO_R))
        sW12 = self.s('w12'); sW5 = self.s('w5')
        P('s_mul_i32 s%d, s%d, 12' % (sW12, sW))
        P('s_mul_i32 s%d, s%d, 5' % (sW5, sW))
        P('s_add_u32 s%d, s%d, 48' % (sW5, sW5))

        def ld_w(Q, st):
            k, b = bufs[st % DEPTH]
            if st < 12:
                Q('s_add_u32 s%d, s%d, %d' % (sSO, sW12, st))
            else:
                Q('s_add_u32 s%d, s%d, %d' % (sSO, sW5, st - 12))
            Q('s_mul_i32 s%d, s%d, 5120' % (sSO, sSO))
            Q('s_add_u32 s%d, s%d, s%d' % (sSO, sSO, sWB))
            Q('s_add_u32 s%d, s%d, %d' % (sSO, sSO, W2_OFF))
            for ft in range(5):
                Q('buffer_load_dwordx4 %s, v%d, %s, s%d offen offset:%d sc1' %
                  (vr(b + 4 * ft, 4, k), vL16 if ft < 4 else v4k, sr(sWS, 4), sSO, (ft & 3) * 1024))

        def ld_a(Q, st):
            k, b = bufs[st % DEPTH]
            if st < 12:
                Q('s_add_u32 s%d, s%d, %d' % (sSO, sW12, st))
            else:
                Q('s_add_u32 s%d, s%d, %d' % (sSO, sW5, st - 12))
            Q('s_lshl_b32 s%d, s%d, 12' % (sSO, sSO))
            Q('s_add_u32 s%d, s%d, s%d' % (sSO, sSO, sAB))
            Q('s_add_u32 s%d, s%d, %d' % (sSO, sSO, HO_OFF))
            for tb in range(4):
                Q('buffer_load_dwordx4 %s, v%d, %s, s%d offen offset:%d sc1' %
                  (vr(b + 20 + 4 * tb, 4, k), vL16, sr(sWS, 4), sSO, tb * 1024))

        def mm(Q, st):
            k, b = bufs[st % DEPTH]
            base = 0 if st < 12 else 80
            for tb in range(4):
                for ft in range(5):
                    d = ar(base + 20 * tb + 4 * ft, 4)
                    c = '0' if st in (0, 12) else d
                    Q('v_mfma_f32_16x16x32_bf16 %s, %s, %s, %s' % (d, vr(b + 4 * ft, 4, k), vr(b + 20 + 4 * tb, 4, k), c))

        self.poll_check(P, vPL, 1, vPA, 2)
        self.stamp()
        for st in range(DEPTH):
            ld_w(P, st); ld_a(P, st)
        P('s_lshl_b32 s%d, s%d, 5' % (sT2, sKB))
        P('s_and_b32 s%d, s%d, 1' % (sM, sW))
        P('s_lshl4_add_u32 s%d, s%d, s%d' % (sT2, sM, sT2))
        P('v_and_b32 v%d, 15, v%d' % (t1, vLane))
        P('v_add_u32 v%d, s%d, v%d' % (t1, sT2, t1))
        P('v_lshlrev_b32 v%d, 2, v%d' % (t1, t1))
        P('v_add_u32 v%d, %d, v%d' % (vPA, FK_OFF, t1))
        self.poll_issue(P, vPL, 1, vPA, 'fk')
        mm(P, 0)
        ld_w(P, 4); ld_a(P, 4)
        self.poll_check(P, vPL, 1, vPA, 3)
        self.stamp()
        vKP = self.v('kp', 80)
        vK16 = self.v('k16'); vK8 = self.v('k8')
        P('v_lshlrev_b32 v%d, 4, v%d' % (vK16, vKI))
        P('v_lshlrev_b32 v%d, 3, v%d' % (vK8, vKI))
        P('s_lshl_b32 s%d, s%d, 4' % (sT2, sKB))
        P('s_lshl3_add_u32 s%d, s%d, s%d' % (sT2, sM, sT2))
        P('s_mul_i32 s%d, s%d, 1792' % (sT2, sT2))
        P('s_add_u32 s%d, s%d, %d' % (sT2, sT2, KV_OFF))
        for p in range(8):
            b = vKP + 10 * p
            P('buffer_load_dwordx4 %s, v%d, %s, s%d offen sc1' % (vr(b, 4), vK16, sr(sWS, 4), sT2))
            P('buffer_load_dwordx4 %s, v%d, %s, s%d offen offset:704 sc1' % (vr(b + 4, 4), vK16, sr(sWS, 4), sT2))
            P('buffer_load_dwordx2 %s, v%d, %s, s%d offen offset:1408 sc1' % (vr(b + 8, 2), vK8, sr(sWS, 4), sT2))
            if p < 7:
                P('s_add_u32 s%d, s%d, 1792' % (sT2, sT2))
        V.release('k16', 'k8', 'ki')
        mm(P, 1)
        ld_w(P, 5); ld_a(P, 5)
        mm(P, 2)
        vSU = self.v('su', 20)
        sLO = self.s('lo'); sHI = self.s('hi')
        P('s_mov_b32 s%d, 0x3f80' % sLO)
        P('s_mov_b32 s%d, 0x3f800000' % sHI)
        for p in range(8):
            for i in range(10):
                for h, sc in ((0, sLO), (1, sHI)):
                    c = '0' if p == 0 else 'v%d' % (vSU + 2 * i + h)
                    P('v_dot2_f32_bf16 v%d, v%d, s%d, %s' % (vSU + 2 * i + h, vKP + 10 * p + i, sc, c))
        S.release('lo', 'hi')
        ld_w(P, 6); ld_a(P, 6)
        P('s_mul_i32 s%d, s%d, 5120' % (sT2, sW))
        P('s_add_u32 s%d, s%d, %d' % (sT2, sT2, L_KVS))
        P('v_add_u32 v%d, s%d, v%d' % (t1, sT2, vL16))
        for i in range(5):
            P('ds_write_b128 v%d, %s offset:%d' % (t1, vr(vSU + 4 * i, 4), i * 1024))
        P.wait_lgkm()
        P('s_barrier')
        P('v_add_u32 v%d, %d, v%d' % (t1, L_KVS, vL16))
        for ww in range(4):
            for i in range(5):
                P('ds_read_b128 %s, v%d offset:%d' % (vr(vKP + 20 * ww + 4 * i, 4), t1, ww * 5120 + i * 1024))
        mm(P, 3)
        ld_w(P, 7); ld_a(P, 7)
        kt = [vKP + 20, vKP + 60]
        od = [vKP, vKP + 40]
        vKT = vSU
        for hh in range(2):
            a, b = vKP + 40 * hh, vKP + 40 * hh + 20
            for i in range(0, 20, 2):
                P('v_pk_add_f32 %s, %s, %s' % (vr(a + i, 2), vr(a + i, 2), vr(b + i, 2)))
            for i in range(10):
                P('v_cvt_pk_bf16_f32 v%d, v%d, v%d' % (kt[hh] + i, a + 2 * i, a + 2 * i + 1))
            P('v_mov_b32 v%d, 0' % (kt[hh] + 10))
            P('v_mov_b32 v%d, 0' % (kt[hh] + 11))
        for hh in range(2):
            for ks in range(3):
                c = '0' if ks == 0 else vr(od[hh], 16)
                P('v_mfma_f32_32x32x16_bf16 %s, %s, %s, %s' %
                  (vr(od[hh], 16), vr(kt[hh] + 4 * ks, 4), vr(vPH + 12 * hh + 4 * ks, 4), c))
        vOA = self.v('oa', 3)
        P('s_mul_i32 s%d, s%d, 5' % (sT2, sJ))
        for n, add in enumerate((0, 2, 4)):
            P('v_add_u32 v%d, s%d, v%d' % (t1, sT2, vHF))
            if add:
                P('v_add_u32 v%d, %d, v%d' % (t1, add, t1))
            P('v_lshrrev_b32 v%d, 2, v%d' % (t2, t1))
            P('v_and_b32 v%d, 3, v%d' % (t1, t1))
            P('v_lshl_add_u32 v%d, v%d, 12, v%d' % (t2, t2, vTK))
            P('v_lshl_add_u32 v%d, v%d, 8, v%d' % (vOA + n, t1, t2))
            if add == 4:
                P('v_lshl_add_u32 v%d, v%d, 31, v%d' % (vOA + n, vHF, vOA + n))
        P('s_add_u32 s%d, s%d, %d' % (sM, sHB, 48 * 4096))
        P('v_cmp_eq_u32 vcc, 0, v%d' % vHF)
        vDN = self.v('dn', 4)
        for hh in range(2):
            d = od[hh]
            P('v_cndmask_b32 v%d, v%d, v%d, vcc' % (vDN + 2 * hh, d + 8, d + 12))
            P('v_add_f32 v%d, 0x358637bd, v%d' % (vDN + 2 * hh, vDN + 2 * hh))
            P('v_rcp_f32 v%d, v%d' % (vDN + 2 * hh, vDN + 2 * hh))
        for hh in range(2):
            d = od[hh]
            for i in range(0, 12, 2):
                P('v_pk_mul_f32 %s, %s, %s op_sel_hi:[1,0]' % (vr(d + i, 2), vr(d + i, 2), vr(vDN + 2 * hh, 2)))
            for i in range(4):
                P('v_cvt_pk_bf16_f32 v%d, v%d, v%d' % (vKT + 4 * hh + i, d + 2 * i, d + 2 * i + 1))
            for i in range(2):
                P('v_cvt_pk_bf16_f32 v%d, v%d, v%d' % (vKT + 8 + 2 * hh + i, d + 8 + 2 * i, d + 9 + 2 * i))
        for n in range(3):
            P('buffer_store_dwordx4 %s, v%d, %s, s%d offen sc1' % (vr(vKT + 4 * n, 4), vOA + n, sr(sWS, 4), sM), 'ost')
        P('s_add_u32 s%d, s%d, %d' % (sT2, sFH, FO_OFF))
        P('v_lshlrev_b32 v%d, 24, v%d' % (vF, vLane))
        P('v_add_u32 v%d, s%d, v%d' % (vF, sT2, vF))
        V.release('kp', 'oa', 'dn', 'ph', 'tk')
        self.stamp()
        mm(P, 4)
        ld_w(P, 8); ld_a(P, 8)
        mm(P, 5)
        P.wait_vm('ost')
        self.flag_store(P, vF)
        V.release('su')
        ld_w(P, 9); ld_a(P, 9)
        mm(P, 6)
        ld_w(P, 10); ld_a(P, 10)
        mm(P, 7)
        ld_w(P, 11); ld_a(P, 11)
        P('s_add_u32 s%d, s%d, %d' % (sT2, sFC, FO_OFF // 4))
        P('v_and_b32 v%d, 7, v%d' % (t1, vLane))
        P('v_add_u32 v%d, s%d, v%d' % (t1, sT2, t1))
        P('v_lshlrev_b32 v%d, 2, v%d' % (vPA, t1))
        mm(P, 8)
        ld_w(P, 12)
        mm(P, 9)
        self.poll_issue(P, vPL, 1, vPA, 'fo')
        ld_w(P, 13)
        vXO = self.v('xo'); vXR = self.v('xres', 12)
        P('s_lshl_b32 s%d, s%d, 2' % (sT2, sR3))
        P('s_add_u32 s%d, s%d, s%d' % (sT2, sT2, sW))
        P('s_mul_i32 s%d, s%d, %d' % (sT2, sT2, 16 * 1280))
        P('s_mul_i32 s%d, s%d, 160' % (sM, sC3))
        P('s_add_u32 s%d, s%d, s%d' % (sT2, sT2, sM))
        P('v_and_b32 v%d, 15, v%d' % (t1, vLane))
        P('v_mul_u32_u24 v%d, 1280, v%d' % (t1, t1))
        P('v_mad_u32_u24 v%d, v%d, 40, v%d' % (t1, vG, t1))
        P('v_add_u32 v%d, s%d, v%d' % (vXO, sT2, t1))
        mm(P, 10)
        self.poll_check(P, vPL, 1, vPA, 4)
        self.stamp()
        ld_a(P, 12); ld_a(P, 13)
        ld_w(P, 14); ld_a(P, 14)
        mm(P, 11)
        ld_w(P, 15); ld_a(P, 15)
        P('buffer_load_dwordx4 %s, v%d, %s, 0 offen' % (vr(vXR, 4), vXO, sr(sX, 4)))
        P('buffer_load_dwordx4 %s, v%d, %s, 0 offen offset:16' % (vr(vXR + 4, 4), vXO, sr(sX, 4)))
        P('buffer_load_dwordx2 %s, v%d, %s, 0 offen offset:32' % (vr(vXR + 8, 2), vXO, sr(sX, 4)))

        vEA = self.v('ea', 4)

        def exch_write(Q, lds, abase):
            for tb in range(4):
                Q('s_sub_u32 s%d, s%d, %d' % (sT2, sW, tb + 1))
                Q('s_and_b32 s%d, s%d, 3' % (sT2, sT2))
                Q('s_mul_i32 s%d, s%d, 5120' % (sM, sT2))
                Q('s_add_u32 s%d, s%d, %d' % (sM, sM, lds + tb * 15360))
                Q('s_cmp_eq_u32 s%d, 3' % sT2)
                Q('s_cselect_b32 s%d, %d, s%d' % (sM, 143360, sM))
                Q('s_mul_i32 s%d, s%d, 5120' % (sT2, sW))
                Q('s_cselect_b32 s%d, s%d, 0' % (sT2, sT2))
                Q('s_add_u32 s%d, s%d, s%d' % (sM, sM, sT2))
                Q('v_add_u32 v%d, s%d, v%d' % (vEA + tb, sM, vL16))
                for ft in range(5):
                    Q('ds_write_b128 v%d, %s offset:%d' % (vEA + tb, ar(abase + 20 * tb + 4 * ft, 4), ft * 1024))

        def exch_read(Q, lds, dst):
            Q('s_mul_i32 s%d, s%d, 15360' % (sM, sW))
            Q('s_add_u32 s%d, s%d, %d' % (sM, sM, lds))
            Q('v_add_u32 v%d, s%d, v%d' % (vEA, sM, vL16))
            Q('s_mul_i32 s%d, s%d, 5120' % (sM, sW))
            Q('s_add_u32 s%d, s%d, %d' % (sM, sM, 143360))
            Q('v_add_u32 v%d, s%d, v%d' % (vEA + 1, sM, vL16))
            for ft in range(5):
                Q('ds_read_b128 %s, v%d offset:%d' % (vr(dst + 4 * ft, 4), vEA + 1, ft * 1024))
            for sl in range(3):
                for ft in range(5):
                    Q('ds_read_b128 %s, v%d offset:%d' %
                      (vr(dst + 20 * (sl + 1) + 4 * ft, 4), vEA, sl * 5120 + ft * 1024))

        def exch_sum(Q, dst):
            for i in range(0, 20, 2):
                Q('v_pk_add_f32 %s, %s, %s' % (vr(dst + i, 2), vr(dst + i, 2), vr(dst + 20 + i, 2)))
                Q('v_pk_add_f32 %s, %s, %s' % (vr(dst + 40 + i, 2), vr(dst + 40 + i, 2), vr(dst + 60 + i, 2)))
            for i in range(0, 20, 2):
                Q('v_pk_add_f32 %s, %s, %s' % (vr(dst + i, 2), vr(dst + i, 2), vr(dst + 40 + i, 2)))

        vRD = self.v('rd', 80)
        vGT = self.v('gt', 20)
        exch_write(P, L_EX1, 0)
        mm(P, 12)
        ld_w(P, 16); ld_a(P, 16)
        P.wait_lgkm()
        P('s_barrier')
        exch_read(P, L_EX1, vRD)
        mm(P, 13)
        exch_sum(P, vRD)
        P('s_mov_b32 s%d, 0x%x' % (sT2, LOG2E | 0x80000000))
        for i in range(20):
            P('v_mul_f32 v%d, s%d, v%d' % (vGT + i, sT2, vRD + i))
        for i in range(20):
            P('v_exp_f32 v%d, v%d' % (vGT + i, vGT + i))
        for i in range(0, 20, 2):
            P('v_pk_add_f32 %s, %s, 1.0 op_sel_hi:[1,0]' % (vr(vGT + i, 2), vr(vGT + i, 2)))
        for i in range(20):
            P('v_rcp_f32 v%d, v%d' % (vGT + i, vGT + i))
        for i in range(0, 20, 2):
            P('v_pk_mul_f32 %s, %s, %s' % (vr(vGT + i, 2), vr(vGT + i, 2), vr(vRD + i, 2)))
        mm(P, 14)
        mm(P, 15)
        mm(P, 16)
        self.stamp()
        exch_write(P, L_EX2, 80)
        vXF = self.v('xf', 20)
        for i in range(10):
            P('v_lshlrev_b32 v%d, 16, v%d' % (vXF + 2 * i, vXR + i))
            P('v_and_b32 v%d, 0xffff0000, v%d' % (vXF + 2 * i + 1, vXR + i))
        P.wait_lgkm()
        P('s_barrier')
        exch_read(P, L_EX2, vRD)
        exch_sum(P, vRD)
        for i in range(0, 20, 2):
            P('v_pk_fma_f32 %s, %s, %s, %s' % (vr(vXF + i, 2), vr(vRD + i, 2), vr(vGT + i, 2), vr(vXF + i, 2)))
        for i in range(10):
            P('v_cvt_pk_bf16_f32 v%d, v%d, v%d' % (vXR + i, vXF + 2 * i, vXF + 2 * i + 1))
        P('buffer_store_dwordx4 %s, v%d, %s, 0 offen' % (vr(vXR, 4), vXO, sr(sOUT, 4)))
        P('buffer_store_dwordx4 %s, v%d, %s, 0 offen offset:16' % (vr(vXR + 4, 4), vXO, sr(sOUT, 4)))
        P('buffer_store_dwordx2 %s, v%d, %s, 0 offen offset:32' % (vr(vXR + 8, 2), vXO, sr(sOUT, 4)))
        return self.finish()

    def nonce_check(self, P, sDB, vZero):
        L = 'Lnonce'
        P('v_readfirstlane_b32 s%d, v%d' % (self.sNONCE, self.vNONCE))
        P('s_cmp_eq_u32 s%d, 0' % self.sNONCE)
        P('s_cbranch_scc1 %s' % L)
        P('%s_ret:' % L)
        txt = ['%s:' % L, '    s_mov_b32 s%d, 0x20000' % self.sCNT, '%s_loop:' % L, '    s_nop 7',
               '    buffer_load_dword v%d, v%d, %s, 0 offen sc1' % (self.vNONCE, vZero, sr(sDB, 4)),
               '    s_waitcnt vmcnt(0)',
               '    v_readfirstlane_b32 s%d, v%d' % (self.sNONCE, self.vNONCE),
               '    s_nop 3',
               '    s_cmp_lg_u32 s%d, 0' % self.sNONCE,
               '    s_cbranch_scc1 %s_done' % L,
               '    s_sub_u32 s%d, s%d, 1' % (self.sCNT, self.sCNT),
               '    s_cmp_lg_u32 s%d, 0' % self.sCNT,
               '    s_cbranch_scc1 %s_loop' % L,
               '%s_done:' % L, '    s_nop 7', '    s_branch %s_ret' % L]
        self.ool.append('\n'.join(txt))

    def finish(self):
        P = self.P
        if self.ts:
            P.wait_vm()
            self.stamp()
            P.wait_lgkm()
            t = self.vT0
            if self.ts == 3:
                P('s_sub_u32 s%d, s2, 100' % self.sT)
                P('s_lshl_b32 s%d, s%d, 10' % (self.sT, self.sT))
                P('v_add_u32 v%d, s%d, v0' % (t, self.sT))
                P('v_min_u32 v%d, 0x10000, v%d' % (t, t))
                P('v_lshlrev_b32 v%d, 8, v%d' % (t, t))
                for n, i in enumerate(range(1, min(self.nts, 15))):
                    P('s_sub_u32 s%d, s%d, s%d' % (self.sT, self.sTS + 2 * i, self.sTS))
                    P('v_mov_b32 v4, s%d' % self.sT)
                    P('buffer_store_dword v4, v%d, %s, 0 offen offset:%d' % (t, sr(self.sDB, 4), 4 + 4 * n))
                P('s_sub_u32 s%d, s%d, s%d' % (self.sT, self.sTS, self.sNONCE))
                P('v_mov_b32 v4, s%d' % self.sT)
                P('buffer_store_dword v4, v%d, %s, 0 offen offset:60' % (t, sr(self.sDB, 4)))
            P('s_lshl2_add_u32 s%d, s2, s%d' % (self.sT, self.sW))
            P('s_lshl_b32 s%d, s%d, 8' % (self.sT, self.sT))
            P('s_add_u32 s%d, s%d, %d' % (self.sT, self.sT, TS_OFF))
            P('v_lshlrev_b32 v%d, 24, v%d' % (t, self.vLane))
            P('v_add_u32 v%d, s%d, v%d' % (t, self.sT, t))
            for i in range(self.nts):
                P('v_mov_b32 v4, s%d' % (self.sTS + 2 * i))
                P('v_mov_b32 v5, s%d' % (self.sTS + 2 * i + 1))
                P('buffer_store_dwordx2 v[4:5], v%d, %s, 0 offen offset:%d' % (t, sr(self.sWS, 4), 8 * i))
                P('s_nop 1')
        P('Lend:')
        P('s_endpgm')
        lines = finalize(P, verbose=True)
        o = []
        for ln in lines:
            o.append(ln)
            if 's_getpc_b64' in ln:
                o.append('Lcode_pc:')
        return o


HEADER = '''; Fused LayerNorm + hedgehog linear attention + SiLU FFN gate, one launch, 256 persistent workgroups.
; @launch grid=(256,1,1) block=(256,1,1) lds=%d
.amdgcn_target "amdgcn-amd-amdhsa--gfx950"
.text
.globl %s_kernel
.p2align 8
.type %s_kernel,@function
%s_kernel:
'''
FOOTER = '''
Lcode_end:
    s_endpgm
.section .rodata,"a"
.p2align 6
.amdhsa_kernel %s_kernel
  .amdhsa_next_free_vgpr 512
  .amdhsa_next_free_sgpr 102
  .amdhsa_accum_offset 256
  .amdhsa_group_segment_fixed_size 0
  .amdhsa_kernarg_size 80
  .amdhsa_user_sgpr_count 2
  .amdhsa_user_sgpr_kernarg_segment_ptr 1
  .amdhsa_system_sgpr_workgroup_id_x 1
  .amdhsa_float_denorm_mode_32 3
.end_amdhsa_kernel
'''


def generate(ts=False, stop=None, opts=None):
    g = Gen(ts=ts, stop=stop, opts=opts)
    lines = g.build()
    txt = HEADER % (LDS_BYTES, NAME, NAME, NAME) + '\n'.join(lines) + '\n' + '\n'.join(g.ool) + FOOTER % NAME
    return txt


if __name__ == '__main__':
    import argparse
    ap = argparse.ArgumentParser()
    ap.add_argument('-o', default='cdna_kernels/%s.s' % NAME)
    ap.add_argument('--ts', type=int, default=0)
    ap.add_argument('--stop', default=None)
    a = ap.parse_args()
    open(a.o, 'w').write(generate(ts=a.ts, stop=a.stop))
    print('wrote', a.o)
```

```python
import re

REG_RE = re.compile(r'\b([vas])(\d+)\b|\b([vas])\[(\d+):(\d+)\]|\b(vcc|exec|m0|scc)\b')


def regs_of(op):
    out = []
    for m in REG_RE.finditer(op):
        if m.group(1):
            out.append((m.group(1), int(m.group(2))))
        elif m.group(3):
            for i in range(int(m.group(4)), int(m.group(5)) + 1):
                out.append((m.group(3), i))
        else:
            out.append((m.group(6), 0))
    return out


TRANS = ('v_exp_f32', 'v_log_f32', 'v_rcp_f32', 'v_rsq_f32', 'v_sqrt_f32', 'v_sin_f32', 'v_cos_f32')


class Inst:
    __slots__ = ('text', 'op', 'kind', 'reads', 'writes', 'tag', 'passes', 'srcc', 'srcab', 'wide', 'data', 'cost', 'gap')

    def __init__(self, text, tag=None):
        self.text = text
        self.tag = tag
        self.gap = None
        s = text.strip()
        parts = s.split(None, 1)
        self.op = op = parts[0]
        rest = parts[1] if len(parts) > 1 else ''
        ops = [o.strip() for o in re.split(r',(?![^\[]*\])', rest)] if rest else []
        self.passes = 0
        self.srcc = []
        self.srcab = []
        self.wide = False
        self.data = []
        R, W = [], []
        allr = [regs_of(o) for o in ops]
        flat = lambda l: [r for x in l for r in x]
        if op.endswith(':'):
            k = 'label'
        elif op.startswith('v_mfma'):
            k = 'mfma'
            self.passes = 8 if '32x32' in op else 4
            W = allr[0]
            self.srcab = allr[1] + allr[2]
            self.srcc = allr[3]
            R = self.srcab + self.srcc
        elif op.startswith('buffer_load') or op.startswith('global_load'):
            if re.search(r'\blds\b', s):
                k = 'dma'
                R = flat(allr) + [('m0', 0)]
            else:
                k = 'vload'
                W = allr[0]
                R = flat(allr[1:])
        elif op.startswith('buffer_store') or op.startswith('global_store'):
            k = 'vstore'
            R = flat(allr)
            self.data = allr[0] if op.startswith('buffer') else allr[1]
            self.wide = 'x4' in op or 'x3' in op
        elif op.startswith('ds_read') or op.startswith('ds_bpermute') or op.startswith('ds_swizzle'):
            k = 'dsread'
            W = allr[0]
            R = flat(allr[1:])
        elif op.startswith('ds_write'):
            k = 'dswrite'
            R = flat(allr)
        elif op.startswith('s_load') or op in ('s_memtime', 's_memrealtime'):
            k = 'smem'
            W = allr[0]
            R = flat(allr[1:])
        elif op in ('s_waitcnt', 's_nop', 's_barrier', 's_endpgm', 's_sleep', 's_setprio'):
            k = 'misc'
        elif op.startswith('s_cbranch') or op == 's_branch':
            k = 'branch'
            if 'vcc' in op:
                R = [('vcc', 0)]
            elif 'scc' in op:
                R = [('scc', 0)]
            elif 'exec' in op:
                R = [('exec', 0)]
        elif op.startswith('s_cmp') or op.startswith('s_bitcmp'):
            k = 'salu'
            R = flat(allr)
            W = [('scc', 0)]
        elif op.startswith('s_'):
            k = 'salu'
            W = list(allr[0]) if allr else []
            R = flat(allr[1:])
            if 'saveexec' in op:
                W += [('exec', 0)]
                R += [('exec', 0)]
            if op.startswith('s_cselect') or op.startswith('s_addc') or op.startswith('s_subb'):
                R += [('scc', 0)]
            if not op.startswith('s_mov') and not op.startswith('s_cselect') and not op.startswith('s_mul') \
                    and not op.startswith('s_getpc'):
                W += [('scc', 0)]
        elif op.startswith('v_'):
            k = 'valu'
            base = op.replace('_e32', '').replace('_e64', '').replace('_dpp', '')
            if base in TRANS:
                k = 'trans'
            if op.startswith('v_permlane') and 'swap' in op:
                W = allr[0] + allr[1]
                R = allr[0] + allr[1]
            else:
                W = list(allr[0])
                R = flat(allr[1:])
                if base.startswith('v_fmac') or base.startswith('v_dot2c') or '_dpp' in op:
                    R += allr[0]
                if re.match(r'v_(add|sub|subrev)_co_u32', base) or base.startswith('v_addc_co') :
                    W += allr[1]
                    R = flat(allr[2:])
        else:
            raise ValueError('unknown instruction: ' + text)
        self.kind = k
        self.reads = set(R)
        self.writes = set(W)
        c = 4
        if k == 'trans':
            c = 8
        elif k == 'mfma':
            c = 8
        elif k == 'label':
            c = 0
        self.cost = c

    @property
    def is_valu(self):
        return self.kind in ('valu', 'trans')

    @property
    def is_dot(self):
        return self.op.startswith('v_dot')


class Wait:
    kind = 'wait'
    cost = 0

    def __init__(self, counter, tags=None):
        self.counter = counter
        self.tags = tags


class Reset:
    kind = 'reset'
    cost = 0


class Mark:
    kind = 'mark'
    cost = 0

    def __init__(self, name):
        self.name = name


class Need:
    kind = 'need'
    cost = 0

    def __init__(self, name):
        self.name = name


class Prog:
    def __init__(self):
        self.items = []

    def mark(self, name):
        self.items.append(Mark(name))

    def need(self, name):
        self.items.append(Need(name))

    def __call__(self, text, tag=None):
        for line in text.strip().split('\n'):
            line = line.split(';')[0].strip()
            if line:
                self.items.append(Inst(line, tag))
        return self

    def wait_vm(self, *tags):
        self.items.append(Wait('vm', set(tags) if tags else None))

    def wait_lgkm(self, *tags):
        self.items.append(Wait('lgkm', set(tags) if tags else None))

    def extend(self, other):
        self.items.extend(other.items)

    def raw(self, text):
        self.items.append(('raw', text))


def interleave(main, filler, budget, first=0):
    out = Prog()
    f = list(filler.items)
    fi = 0
    n = 0
    carry = 0
    for it in main.items:
        out.items.append(it)
        if getattr(it, 'kind', None) == 'mfma':
            if n >= first:
                b = budget(n) if callable(budget) else budget
                carry = min(carry, 0) + b
                while fi < len(f) and carry > 0:
                    out.items.append(f[fi])
                    carry -= f[fi].cost
                    fi += 1
            n += 1
    left = Prog()
    left.items = f[fi:]
    return out, left


CHECK = False


def compact(rs):
    o = []
    for k, i in rs:
        if o and o[-1][0] == k and o[-1][2] == i - 1:
            o[-1][2] = i
        else:
            o.append([k, i, i])
    return ' '.join('%s%d-%d' % tuple(x) if x[1] != x[2] else '%s%d' % (x[0], x[1]) for x in o)


class Model:
    def __init__(self, vgap=70, vlat=1200, dslat=110):
        self.t = 0
        self.pipe = 0
        self.ta = 0
        self.ready = {}
        self.tagdone = {}
        self.marks = {}
        self.vgap, self.vlat, self.dslat = vgap, vlat, dslat

    def rdy(self, it):
        if it.kind == 'wait':
            if it.counter == 'vm' and it.tags:
                return max([self.tagdone.get(x, 0) for x in it.tags] + [0])
            return 0
        r = 0
        for x in it.reads | it.writes:
            v = self.ready.get(x)
            if v is not None:
                if it.kind == 'mfma' and v[1] == 'mfma' and x in it.writes:
                    continue
                r = max(r, v[0])
        return r

    def issue(self, it):
        k = it.kind
        if k == 'mark':
            self.marks[it.name] = self.t
            return
        if k == 'need':
            return
        self.t = max(self.t, self.rdy(it))
        if k == 'wait':
            return
        if k == 'mfma':
            st = max(self.t, self.pipe)
            self.pipe = st + 4 * it.passes
            self.t = st + 8
            for x in it.writes:
                self.ready[x] = (self.pipe + 16, 'mfma')
            return
        if k in ('vload', 'dma', 'vstore'):
            g = getattr(it, 'gap', None) or self.vgap
            st = max(self.t, self.ta - 4 * self.vgap)
            self.ta = max(self.ta, st) + g
            self.t = st + 4
            done = self.ta + self.vlat
            for x in it.writes:
                self.ready[x] = (done, 'vm')
            if it.tag:
                self.tagdone[it.tag] = done
            return
        if k == 'dsread':
            for x in it.writes:
                self.ready[x] = (self.t + self.dslat, 'ds')
        elif k == 'smem':
            for x in it.writes:
                self.ready[x] = (self.t + 300, 'sm')
        else:
            lat = 12 if k == 'trans' else 4
            for x in it.writes:
                self.ready[x] = (self.t + lat, 'v')
        self.t += it.cost
        if it.op.startswith('v_pk_') or it.op.startswith('v_dot'):
            self.pipe = max(self.pipe, self.t - 4) + 4


def schedule(md, main, loads=None, fill=None, slack=1):
    out = Prog()
    S = [list(main.items), list(loads.items) if loads else [], list(fill.items) if fill else []]
    I = [0, 0, 0]

    def head(s):
        while I[s] < len(S[s]):
            it = S[s][I[s]]
            if it.kind == 'need':
                if it.name in md.marks:
                    I[s] += 1
                    continue
                return None
            if it.kind == 'mark':
                md.issue(it)
                I[s] += 1
                continue
            return it
        return None

    def take(s):
        it = S[s][I[s]]
        I[s] += 1
        md.issue(it)
        out.items.append(it)
        if it.kind == 'salu' and (it.op.startswith('s_cmp') or it.op.startswith('s_bitcmp')):
            while I[s] < len(S[s]) and ('scc', 0) in getattr(S[s][I[s]], 'reads', ()):
                it = S[s][I[s]]
                I[s] += 1
                md.issue(it)
                out.items.append(it)
        if it.kind == 'branch':
            it = S[s][I[s]]
            assert it.kind == 'label'
            I[s] += 1
            out.items.append(it)

    def regs(s):
        R, W = set(), set()
        for it in S[s]:
            R |= getattr(it, 'reads', set())
            W |= getattr(it, 'writes', set())
        return R, W
    if CHECK:
        rw = [regs(s) for s in range(3)]
        for a in range(3):
            for b in range(3):
                if a != b:
                    x = rw[a][1] & (rw[b][0] | (rw[b][1] if a < b else set()))
                    x = sorted(r for r in x if r[0] != 'scc')
                    if x:
                        print('  shared: stream %d writes, stream %d touches:' % (a, b), compact(x))

    def next_vm(s):
        for it in S[s][I[s]:I[s] + 8]:
            if it.kind in ('vload', 'dma', 'vstore'):
                return it
        return None

    while True:
        m, l, f = head(0), head(1), head(2)
        if m is None and l is None and f is None:
            assert all(I[s] == len(S[s]) for s in range(3)), 'scheduler deadlock on %s' % \
                [S[s][I[s]].name for s in range(3) if I[s] < len(S[s])]
            break
        pipe_free = md.pipe <= md.t + 3
        if f is not None and f.kind == 'mfma' and pipe_free and md.rdy(f) <= md.t:
            take(2); continue
        if m is not None and md.rdy(m) <= md.t and (m.kind != 'mfma' or pipe_free):
            take(0); continue
        if l is not None and md.ta <= md.t + slack * md.vgap and md.rdy(l) <= md.t:
            take(1); continue
        if f is not None and f.kind != 'mfma' and md.rdy(f) <= md.t and \
                not (f.kind in ('vload', 'dma', 'vstore') and md.ta > md.t + 3 * md.vgap):
            take(2); continue
        c = []
        if m is not None:
            c.append(max(md.rdy(m), md.pipe - 3 if m.kind == 'mfma' else 0))
        if l is not None:
            c.append(max(md.rdy(l), md.ta - slack * md.vgap))
        if f is not None:
            x = md.rdy(f)
            if f.kind == 'mfma':
                x = max(x, md.pipe - 3)
            if f.kind in ('vload', 'dma', 'vstore'):
                x = max(x, md.ta - 3 * md.vgap)
            c.append(x)
        md.t = max(md.t + 1, min(c))
    return out


def _req(prev, cur):
    need = 0
    pk, ck = prev.kind, cur.kind
    raw = prev.writes & cur.reads
    vraw = {r for r in raw if r[0] in 'va'}
    waw = {r for r in (prev.writes & cur.writes) if r[0] in 'va'}
    if prev.is_valu:
        if vraw:
            if ck == 'mfma':
                need = max(need, 2)
            if cur.op.startswith('v_permlane') or '_dpp' in cur.op:
                need = max(need, 2)
            if cur.op.startswith('v_readfirstlane') or cur.op.startswith('v_readlane'):
                need = max(need, 1)
            if pk == 'trans' and ck == 'valu':
                need = max(need, 1)
        if prev.is_dot and (vraw or waw):
            if not (cur.op == prev.op and not waw - vraw and _only_srcc_dot(prev, cur)):
                need = max(need, 3)
        sraw = {r for r in raw if r[0] in ('s', 'vcc')}
        if sraw:
            if cur.is_valu or ck == 'mfma':
                need = max(need, 2)
            if cur.op.startswith('v_readlane') or cur.op.startswith('v_writelane'):
                need = max(need, 4)
            if ck in ('vload', 'vstore', 'dma'):
                need = max(need, 5)
            if ck in ('salu', 'branch', 'smem'):
                need = max(need, 1 if ck != 'branch' else 5)
    if pk == 'mfma':
        p = prev.passes
        big = 12 if p == 8 else 8
        ov = 10 if p == 8 else 6
        if ck == 'mfma':
            if prev.writes & set(cur.srcab):
                need = max(need, big)
            c = set(cur.srcc)
            if prev.writes & c:
                if not (c == prev.writes and cur.passes == p):
                    need = max(need, ov)
            elif waw:
                need = max(need, ov)
        else:
            if vraw or waw:
                need = max(need, big)
            if cur.is_valu and (set(prev.srcc) & cur.writes):
                need = max(need, 7 if p == 8 else 3)
    if pk == 'salu' and ('m0', 0) in prev.writes and ck == 'dma':
        need = max(need, 1)
    if pk == 'vstore' and prev.wide and (set(prev.data) & cur.writes):
        need = max(need, 2 if cur.is_valu else 1)
    return need


def _only_srcc_dot(prev, cur):
    ops = [o.strip() for o in cur.text.split(None, 1)[1].split(',')]
    ab = set(regs_of(ops[1]) + regs_of(ops[2]))
    return not (prev.writes & ab)


def finalize(prog, verbose=False):
    vmq = []
    lgq = []
    out = []
    hist = []
    stats = {'nops': 0, 'waits': 0}

    def emit(inst):
        if inst.kind not in ('label',):
            need = 0
            dist = 0
            for p in reversed(hist):
                if dist >= 20:
                    break
                r = _req(p[0], inst) if p[0] is not None else 0
                if r > dist:
                    need = max(need, r - dist)
                dist += p[1]
            while need > 0:
                n = min(need, 16)
                out.append('    s_nop %d' % (n - 1))
                hist.append((None, n))
                stats['nops'] += n
                need -= n
        out.append(inst.text if inst.kind == 'label' else '    ' + inst.text)
        if inst.op == 's_nop':
            hist.append((None, int(inst.text.split()[1]) + 1))
        elif inst.kind != 'label':
            hist.append((inst, 1))
        if len(hist) > 64:
            del hist[:32]

    def do_wait(vm=None, lg=None):
        parts = []
        if vm is not None and vm < len(vmq):
            n = min(vm, 63)
            parts.append('vmcnt(%d)' % n)
            del vmq[:len(vmq) - n]
        if lg is not None and lg < len(lgq):
            if any(i.kind == 'smem' for i in lgq):
                lg = 0
            n = min(lg, 15)
            parts.append('lgkmcnt(%d)' % n)
            del lgq[:len(lgq) - n]
        if parts:
            stats['waits'] += 1
            emit(Inst('s_waitcnt ' + ' '.join(parts)))

    for it in prog.items:
        if isinstance(it, tuple):
            out.append(it[1])
            continue
        if it.kind == 'wait':
            q = vmq if it.counter == 'vm' else lgq
            idx = -1
            for i, x in enumerate(q):
                if it.tags is None or x.tag in it.tags:
                    idx = i
            if idx >= 0:
                n = len(q) - 1 - idx
                if it.counter == 'vm':
                    do_wait(vm=n)
                else:
                    do_wait(lg=n)
            continue
        if it.kind in ('reset', 'mark', 'need'):
            continue
        touched = it.reads | it.writes
        vm = lg = None
        for i, x in enumerate(vmq):
            if x.writes & touched:
                vm = len(vmq) - 1 - i
        for i, x in enumerate(lgq):
            if x.writes & touched:
                lg = len(lgq) - 1 - i
        if vm is not None or lg is not None:
            do_wait(vm, lg)
        if it.op == 's_waitcnt':
            m = re.search(r'vmcnt\((\d+)\)', it.text)
            if m:
                n = int(m.group(1))
                if n < len(vmq):
                    del vmq[:len(vmq) - n]
            m = re.search(r'lgkmcnt\((\d+)\)', it.text)
            if m:
                n = int(m.group(1))
                if n < len(lgq):
                    assert n == 0 or not any(i.kind == 'smem' for i in lgq)
                    del lgq[:len(lgq) - n]
        if it.kind in ('vload', 'vstore', 'dma') and len(vmq) >= 63:
            stats['vmfull'] = stats.get('vmfull', 0) + 1
            do_wait(vm=62)
        emit(it)
        if it.kind in ('vload', 'vstore', 'dma'):
            vmq.append(it)
        elif it.kind in ('dsread', 'dswrite', 'smem'):
            lgq.append(it)
    if verbose:
        print('finalize:', stats, 'lines', len(out))
    return out
```

```python
import sys, os
sys.path.insert(0, os.path.dirname(os.path.abspath(__file__)))
import asmgen
from asmgen import Prog, finalize, schedule, Model
import gen as G1
from gen import Regs, vr, ar, sr, NAME, HEADER, FOOTER
from gen import WQ_OFF, WQ_J, W2_OFF, W2_C, HO_OFF, HO_R, KV_OFF, F1_OFF, F2_OFF, FH_OFF, FO_OFF, FK_OFF
from gen import ST_OFF, TS_OFF, WS_SIZE, OOB, SOOB, LOG2E, LDS_BYTES

NSLOT = 5
SLOT = 28672
L_EU = 143360
L_WT = 155648
L_CT = 159744
L_DUMMY = 161280
L_ST = 143360
TILE = 41 * 1024
L_A, L_B, L_C = 0, TILE, 2 * TILE
TSTR = 328
L_KVS = L_C
L_EX1 = 0
L_EX2 = 61440


class GenA(G1.Gen):
    def seq(self, Q):
        self.P.extend(schedule(self.md, Prog(), None, Q))

    def sched(self, M, L=None, F=None, name='', **kw):
        t0 = self.md.t
        if asmgen.CHECK:
            print('phase', name)
        self.P.extend(schedule(self.md, M, L, F, **kw))
        print('  model %-8s %6d -> %6d' % (name, t0, self.md.t))

    def hilo(self, Q, a, t, dst):
        Q('v_cvt_pk_bf16_f32 v%d, v%d, v%d' % (t, a, a))
        Q('v_lshlrev_b32 v%d, 16, v%d' % (t, t))
        Q('v_sub_f32 v%d, v%d, v%d' % (t, a, t))
        Q('v_cvt_pk_bf16_f32 v%d, v%d, v%d' % (dst, a, t))

    def red32(self, Q, a, t):
        for n in (8, 4, 2, 1):
            Q('v_add_f32_dpp v%d, v%d, v%d row_ror:%d row_mask:0xf bank_mask:0xf' % (a, a, a, n))
        self.xswap_sum(Q, a, t, swap='v_permlane16_swap_b32')

    def rbf(self, Q, a):
        Q('v_cvt_pk_bf16_f32 v%d, v%d, v%d' % (a, a, a))
        Q('v_lshlrev_b32 v%d, 16, v%d' % (a, a))

    def prologue(self):
        P, S, V = self.P, self.S, self.V
        self.md = Model()
        S.at('karg', 0, 2); S.at('wg', 2, 1); V.at('tid', 0, 1)
        P('s_cmp_ge_u32 s2, 256')
        P('s_cbranch_scc1 Lend')
        sX = self.sX = self.srd_load('X', 0); sWQ = self.srd_load('WQKV', 8); sW1 = self.srd_load('W1', 40)
        sDB = self.sDB = self.srd_load('DBG', 64)
        sWS = self.sWS = self.srd_load('WS', 72)
        sWP = self.srd_load('WPHI', 16); self.sW2 = self.srd_load('W2', 48)
        self.sWO = self.srd_load('WO', 24); self.sOUT = self.srd_load('OUT', 56)
        sRT = self.s('rt', 2)
        P('s_memrealtime %s' % sr(sRT, 2))
        if self.ts:
            self.sTS = self.s('ts', 36)
        self.stamp()
        sPC = self.sPC = self.s('pc', 2)
        P('s_getpc_b64 %s' % sr(sPC, 2))
        vLane = self.vLane = self.v('lane'); vL16 = self.vL16 = self.v('l16')
        vJunk = self.v('junk', 4)
        t0 = self.vT0 = self.v('t0')
        t1 = self.t1 = self.v('t1'); t2 = self.t2 = self.v('t2'); t3 = self.t3 = self.v('t3')
        self.vNONCE = self.v('nonce'); self.vF = self.v('fa')
        self.vPL = self.v('pl', 4); self.vPA = self.v('pa')
        sL = self.s('l'); sW = self.sW = self.s('w'); sT = self.sT = self.s('st'); sT2 = self.sT2 = self.s('st2')
        self.sNONCE = self.s('nonce'); self.sCNT = self.s('cnt')
        P('s_lshr_b32 s%d, s2, 3' % sL)
        P('s_lshl_b32 s%d, s%d, 12' % (sT, sL))
        P('v_lshlrev_b32 v%d, 4, v0' % t0)
        P('v_add_u32 v%d, s%d, v%d' % (t0, sT, t0))
        P('s_mov_b32 s%d, Lcode_end-Lcode_pc-16' % sT2)
        P('v_min_u32 v%d, s%d, v%d' % (t0, sT2, t0))
        P('global_load_dwordx4 %s, v%d, %s' % (vr(vJunk, 4), t0, sr(sPC, 2)), 'pref')
        P('v_and_b32 v%d, 63, v0' % vLane)
        P('v_lshrrev_b32 v%d, 6, v0' % t1)
        P('v_lshlrev_b32 v%d, 4, v%d' % (vL16, vLane))
        P('v_readfirstlane_b32 s%d, v%d' % (sW, t1))
        sR = self.sR = self.s('r'); sJ = self.sJ = self.s('j'); sR3 = self.sR3 = self.s('R3'); sC3 = self.sC3 = self.s('c3')
        P('s_bfe_u32 s%d, s2, 0x20001' % sT)
        P('s_lshr_b32 s%d, s%d, 3' % (sT2, sL))
        P('s_lshl2_add_u32 s%d, s%d, s%d' % (sR, sT, sT2))
        P('s_lshr_b32 s%d, s%d, 2' % (sT2, sL))
        P('s_lshl3_add_u32 s%d, s%d, s%d' % (sR3, sT, sT2))
        P('s_and_b32 s%d, s2, 1' % sT)
        P('s_and_b32 s%d, s%d, 7' % (sT2, sL))
        P('s_lshl3_add_u32 s%d, s%d, s%d' % (sJ, sT, sT2))
        P('s_and_b32 s%d, s%d, 3' % (sT2, sL))
        P('s_lshl2_add_u32 s%d, s%d, s%d' % (sC3, sT, sT2))
        vG = self.vG = self.v('g'); vR4 = self.vR4 = self.v('r4'); vC4 = self.vC4 = self.v('c4')
        vHF = self.vHF = self.v('hf'); vT32 = self.vT32 = self.v('t32')
        P('v_lshrrev_b32 v%d, 5, v%d' % (vHF, vLane))
        P('v_and_b32 v%d, 31, v%d' % (vT32, vLane))
        sKQ = self.s('kq')
        P('s_and_b32 s%d, s2, 7' % sKQ)
        vEU = self.v('eu')
        P('v_lshrrev_b32 v%d, 3, v%d' % (t1, vLane))
        P('v_and_b32 v%d, 7, v%d' % (t2, vLane))
        P('s_mul_i32 s%d, s%d, %d' % (sT, sKQ, 80 * 3840))
        P('s_lshl_b32 s%d, s%d, 7' % (sT2, sL))
        P('s_add_u32 s%d, s%d, s%d' % (sT, sT, sT2))
        P('s_cmp_lt_u32 s2, 240')
        P('s_cselect_b32 s%d, s%d, 0x%x' % (sT, sT, OOB))
        P('v_mul_u32_u24 v%d, 3840, v%d' % (vEU, t1))
        P('v_lshl_add_u32 v%d, v%d, 4, v%d' % (vEU, t2, vEU))
        P('v_add_u32 v%d, s%d, v%d' % (vEU, sT, vEU))
        vX = self.v('xd', 4)
        P('v_lshrrev_b32 v%d, 1, v%d' % (t3, t1))
        P('v_xor_b32 v%d, v%d, v%d' % (t3, t3, t2))
        P('s_lshl2_add_u32 s%d, s%d, s%d' % (sT, sR, sW))
        P('s_mul_i32 s%d, s%d, %d' % (sT, sT, 32 * 1280))
        P('v_mul_u32_u24 v%d, 1280, v%d' % (vX, t1))
        P('v_lshl_add_u32 v%d, v%d, 4, v%d' % (vX, t3, vX))
        P('v_add_u32 v%d, s%d, v%d' % (vX, sT, vX))
        P('v_xor_b32 v%d, 64, v%d' % (vX + 1, vX))
        P('v_add_u32 v%d, %d, v%d' % (vX + 1, 8 * 1280, vX + 1))
        P('v_add_u32 v%d, %d, v%d' % (vX + 2, 16 * 1280, vX))
        P('v_add_u32 v%d, %d, v%d' % (vX + 3, 16 * 1280, vX + 1))
        vW1 = self.v('w1d', 3)
        P('s_mul_i32 s%d, s%d, %d' % (sT, sW, 16 * 3072))
        P('s_mul_i32 s%d, s%d, 192' % (sT2, sJ))
        P('s_add_u32 s%d, s%d, s%d' % (sT, sT, sT2))
        for i in range(3):
            P('v_add_u32 v%d, %d, v%d' % (t1, 64 * i, vLane))
            P('v_mul_u32_u24 v%d, 43691, v%d' % (t2, t1))
            P('v_lshrrev_b32 v%d, 19, v%d' % (t2, t2))
            P('v_mul_u32_u24 v%d, %d, v%d' % (t2, 3072 - 192, t2))
            P('v_lshl_add_u32 v%d, v%d, 4, v%d' % (t2, t1, t2))
            P('v_add_u32 v%d, s%d, v%d' % (vW1 + i, sT, t2))
        vSA = self.v('sa'); vSX = V.at('sx', 96, 10); sSR = self.s('srow')
        P('s_lshl4_add_u32 s%d, s%d, s%d' % (sSR, sR, sJ))
        P('s_lshl2_add_u32 s%d, s%d, s%d' % (sSR, sSR, sW))
        P('s_lshl_b32 s%d, s%d, 1' % (sSR, sSR))
        P('s_mul_i32 s%d, s%d, 1280' % (sT, sSR))
        P('v_mul_u32_u24 v%d, 1280, v%d' % (vSA, vHF))
        P('v_mad_u32_u24 v%d, v%d, 40, v%d' % (vSA, vT32, vSA))
        P('s_lshl_b32 s%d, s2, 10' % sT2)
        P('v_add_u32 v%d, s%d, v0' % (t3, sT2))
        P('v_lshlrev_b32 v%d, 8, v%d' % (t3, t3))
        sM = self.sM = self.s('m'); sSO = self.sSO = self.s('so')
        sMX = self.s('mx'); sMW = self.s('mw')
        P('s_lshl_b32 s%d, s%d, 10' % (sM, sW))
        P('s_mul_i32 s%d, s%d, %d' % (sSO, sW, 8 * 3840))
        P('s_lshl_b32 s%d, s%d, 12' % (sMX, sW))
        P('s_mul_i32 s%d, s%d, 3072' % (sMW, sW))
        P.wait_lgkm()
        self.srd(sDB, 256)
        P('s_or_b32 s%d, s%d, 1' % (sRT, sRT))
        P('v_mov_b32 v%d, s%d' % (t2, sRT))
        self.srd(sWQ, 640 * 3840)
        P('buffer_store_dword v%d, v%d, %s, 0 offen sc1' % (t2, t3, sr(sDB, 4)), 'nonce')
        S.release('rt')
        self.srd(sX, 2048 * 1280)
        for i in range(3):
            P('s_add_u32 m0, s%d, %d' % (sM, L_EU + 4096 * i))
            if i == 2:
                P('s_cmp_lt_u32 s%d, 2' % sW)
                P('s_cselect_b32 s%d, s%d, 0x%x' % (sSO, sSO, SOOB))
            P('buffer_load_dwordx4 v%d, %s, s%d offen lds' % (vEU, sr(sWQ, 4), sSO), 'eu')
            if i < 2:
                P('s_add_u32 s%d, s%d, %d' % (sSO, sSO, 32 * 3840))
        P('buffer_load_dwordx4 %s, v%d, %s, s%d offen' % (vr(vSX, 4), vSA, sr(sX, 4), sT))
        P('buffer_load_dwordx4 %s, v%d, %s, s%d offen offset:16' % (vr(vSX + 4, 4), vSA, sr(sX, 4), sT))
        P('buffer_load_dwordx2 %s, v%d, %s, s%d offen offset:32' % (vr(vSX + 8, 2), vSA, sr(sX, 4), sT))
        self.srd(sW1, 640 * 3072)
        V.release('eu')
        sLS = self.sLS = self.s('ls')

        def stage_dma(s):
            Q = Prog()
            slot = s % NSLOT
            Q('s_movk_i32 s%d, %d' % (sLS, s * 128))
            for u in range(4):
                Q('s_add_u32 m0, s%d, %d' % (sMX, slot * SLOT + u * 1024))
                Q('buffer_load_dwordx4 v%d, %s, s%d offen lds' % (vX + u, sr(sX, 4), sLS), 'st%d' % s)
            Q('s_mov_b32 s%d, %d' % (sLS, s * 64 * 3072))
            for i in range(3):
                Q('s_add_u32 m0, s%d, %d' % (sMW, slot * SLOT + 16384 + i * 1024))
                Q('buffer_load_dwordx4 v%d, %s, s%d offen lds' % (vW1 + i, sr(sW1, 4), sLS), 'st%d' % s)
                Q.items[-1].gap = 94
            return Q
        self.stage_dma = stage_dma
        self.md.t = 1000
        for it in P.items:
            if getattr(it, 'kind', '') in ('dma', 'vload'):
                self.md.issue(it)
        self.seq(stage_dma(0))
        self.stamp()

        F = Prog()
        P0, self.P = self.P, F
        for b, sz in ((sWS, WS_SIZE), (sWP, 32 * 800), (self.sW2, 1536 * 1280), (self.sWO, 640 * 1280), (self.sOUT, 2048 * 1280)):
            self.srd(b, sz)
        self.P = P0
        vWL = self.v('wl', 2)
        F('s_mul_i32 s%d, s%d, 1600' % (sT, sJ))
        F('v_lshlrev_b32 v%d, 2, v0' % t1)
        F('buffer_load_dword v%d, v%d, %s, s%d offen' % (vWL, t1, sr(sWP, 4), sT)); F.items[-1].gap = 20
        F('buffer_load_dword v%d, v%d, %s, s%d offen offset:800' % (vWL + 1, t1, sr(sWP, 4), sT)); F.items[-1].gap = 20
        vE = V.at('e', 108, 12)
        for i in range(4):
            F('v_mov_b32 v%d, 0' % (vE + i))
        F('v_lshlrev_b32 v%d, 4, v0' % t1)
        F('v_add_u32 v%d, %d, v%d' % (t1, L_WT, t1))
        F('ds_write_b128 v%d, %s' % (t1, vr(vE, 4)))
        F('v_lshrrev_b32 v%d, 4, v%d' % (vG, vLane))
        F('v_bfe_u32 v%d, v%d, 2, 2' % (vR4, vLane))
        F('v_and_b32 v%d, 3, v%d' % (vC4, vLane))
        vSEL = self.vSEL = self.v('sel', 4)
        sONE = self.s('ones')
        F('s_mov_b32 s%d, 0x3f803f80' % sONE)
        F('v_xor_b32 v%d, v%d, v%d' % (t1, vG, vR4))
        F('v_and_b32 v%d, 1, v%d' % (t1, t1))
        F('v_cmp_eq_u32 vcc, 0, v%d' % t1)
        F('v_mov_b32 v%d, s%d' % (t2, sONE))
        for i in range(4):
            F('v_cndmask_b32 v%d, 0, v%d, vcc' % (vSEL + i, t2))
        vES = self.v('es'); vES2 = self.v('es2'); vEC = self.v('ec'); vER = self.v('er')
        sSec = self.s('sec')
        F('s_mul_i32 s%d, s%d, 205' % (sSec, sL))
        F('s_lshr_b32 s%d, s%d, 11' % (sSec, sSec))
        F('s_mul_i32 s%d, s%d, 10' % (sT, sSec))
        F('s_sub_u32 s%d, s%d, s%d' % (sT, sL, sT))
        F('s_lshl_b32 s%d, s%d, 6' % (sT, sT))
        F('s_lshl4_add_u32 s%d, s%d, s%d' % (sT, sW, sT))
        F('s_mul_i32 s%d, s%d, 40' % (sT2, sSec))
        F('s_sub_u32 s%d, s%d, 40' % (sT2, sT2))
        F('s_cmp_eq_u32 s%d, 0' % sSec)
        F('s_cselect_b32 s%d, 80, s%d' % (sT2, sT2))
        F('v_and_b32 v%d, 15, v%d' % (t1, vLane))
        F('v_add_u32 v%d, s%d, v%d' % (t1, sT, t1))
        F('v_mul_u32_u24 v%d, 1639, v%d' % (t2, t1))
        F('v_lshrrev_b32 v%d, 16, v%d' % (t2, t2))
        F('v_mul_u32_u24 v%d, 40, v%d' % (t3, t2))
        F('v_sub_u32 v%d, v%d, v%d' % (t1, t1, t3))
        F('v_add_u32 v%d, s%d, v%d' % (t1, sT2, t1))
        F('v_mul_u32_u24 v%d, %d, v%d' % (t2, WQ_J, t2))
        F('v_lshrrev_b32 v%d, 5, v%d' % (t3, t1))
        F('v_mul_u32_u24 v%d, %d, v%d' % (t3, TILE, t3))
        F('v_add_u32 v%d, v%d, v%d' % (t2, t2, t3))
        F('v_and_b32 v%d, 31, v%d' % (t1, t1))
        F('v_lshl_add_u32 v%d, v%d, 4, v%d' % (t2, t1, t2))
        F('s_cmp_lt_u32 s2, 240')
        F('s_cselect_b32 s%d, %d, 0x%x' % (sT, WQ_OFF, OOB))
        F('v_add_u32 v%d, s%d, v%d' % (t2, sT, t2))
        F('s_lshr_b32 s%d, s%d, 2' % (sT, sKQ))
        F('s_lshl_b32 s%d, s%d, 9' % (sT, sT))
        F('s_and_b32 s%d, s%d, 3' % (sT2, sKQ))
        F('s_lshl2_add_u32 s%d, s%d, s%d' % (sT, sT2, sT))
        F('s_add_u32 s%d, s%d, %d' % (sT, sT, 40 * 1024))
        F('v_add_u32 v%d, s%d, v%d' % (vEC, sT, t2))
        F('v_cmp_gt_u32 vcc, 16, v%d' % vLane)
        F('v_mov_b32 v%d, 0x%x' % (t3, OOB))
        F('v_cndmask_b32 v%d, v%d, v%d, vcc' % (vEC, t3, vEC))
        F('s_mul_i32 s%d, s%d, 5120' % (sT, sKQ))
        F('v_and_b32 v%d, 1, v%d' % (t1, vG))
        F('v_lshl_add_u32 v%d, v%d, 9, v%d' % (t2, t1, t2))
        F('v_lshl_add_u32 v%d, v%d, 10, v%d' % (t2, vHF, t2))
        F('v_add_u32 v%d, s%d, v%d' % (vES, sT, t2))
        F('v_cmp_gt_u32 vcc, 32, v%d' % vLane)
        F('v_add_u32 v%d, 4096, v%d' % (vES2, vES))
        F('v_cndmask_b32 v%d, v%d, v%d, vcc' % (vES2, t3, vES2))
        F('v_lshl_add_u32 v%d, v%d, 3, v%d' % (t1, vG, vR4))
        F('v_lshlrev_b32 v%d, 7, v%d' % (t1, t1))
        F('v_lshl_add_u32 v%d, v%d, 3, v%d' % (t1, vC4, t1))
        F('s_lshl_b32 s%d, s%d, 5' % (sT, sW))
        F('s_add_u32 s%d, s%d, %d' % (sT, sT, L_EU))
        F('v_add_u32 v%d, s%d, v%d' % (vER, sT, t1))
        S.release('sec', 'kq')
        vWA = self.v('wa', 2)
        F('v_mul_u32_u24 v%d, 6554, v0' % t1)
        F('v_lshrrev_b32 v%d, 16, v%d' % (t1, t1))
        F('v_mul_u32_u24 v%d, 10, v%d' % (t2, t1))
        F('v_sub_u32 v%d, v0, v%d' % (t2, t2))
        F('v_cmp_le_u32 vcc, 5, v%d' % t2)
        F('v_cndmask_b32 v%d, 0, 1, vcc' % t3)
        F('v_lshlrev_b32 v%d, 6, v%d' % (t1, t1))
        F('v_lshl_add_u32 v%d, v%d, 3, v%d' % (t1, t3, t1))
        F('v_mul_u32_u24 v%d, 5, v%d' % (t3, t3))
        F('v_sub_u32 v%d, v%d, v%d' % (t2, t2, t3))
        F('v_lshrrev_b32 v%d, 1, v%d' % (t3, t2))
        F('v_lshl_add_u32 v%d, v%d, 4, v%d' % (t1, t3, t1))
        F('v_and_b32 v%d, 1, v%d' % (t2, t2))
        F('v_lshl_add_u32 v%d, v%d, 2, v%d' % (t1, t2, t1))
        F('v_add_u32 v%d, %d, v%d' % (t1, L_WT, t1))
        F('v_cmp_gt_u32 vcc, 200, v0')
        F('v_mov_b32 v%d, %d' % (t2, L_DUMMY - 2304))
        F('v_cndmask_b32 v%d, v%d, v%d, vcc' % (vWA, t2, t1))
        F('v_mov_b32 v%d, %d' % (t2, L_DUMMY))
        F('v_cndmask_b32 v%d, v%d, v%d, vcc' % (vWA + 1, t2, t1))
        vXR = self.vXR = V.at('kb', 68, 12); vWR = self.vWR = self.v('wr', 3); vWC = self.vWC = self.v('wc', 3)
        F('v_bfe_u32 v%d, v%d, 1, 3' % (t1, vLane))
        F('v_xor_b32 v%d, v%d, v%d' % (t1, t1, vHF))
        F('v_lshlrev_b32 v%d, 4, v%d' % (t1, t1))
        F('v_lshl_add_u32 v%d, v%d, 7, v%d' % (t1, vT32, t1))
        F('v_add_u32 v%d, s%d, v%d' % (vXR, sMX, t1))
        for u in range(1, 4):
            F('v_xor_b32 v%d, %d, v%d' % (vXR + u, 32 * u, vXR))
        F('v_lshl_add_u32 v%d, v%d, 3, v%d' % (t1, vHF, vR4))
        F('v_mul_u32_u24 v%d, 192, v%d' % (t1, t1))
        F('v_and_b32 v%d, 1, v%d' % (t2, vG))
        F('v_lshl_add_u32 v%d, v%d, 5, v%d' % (t1, t2, t1))
        F('v_lshl_add_u32 v%d, v%d, 3, v%d' % (t1, vC4, t1))
        F('v_add_u32 v%d, 16384, v%d' % (vWR, t1))
        F('v_add_u32 v%d, s%d, v%d' % (vWC, sMW, vWR))
        for b in (1, 2):
            for u in range(4):
                F('v_add_u32 v%d, %d, v%d' % (vXR + 4 * b + u, 2 * SLOT * b, vXR + u))
            F('v_add_u32 v%d, %d, v%d' % (vWR + b, 2 * SLOT * b, vWR))
            F('v_add_u32 v%d, %d, v%d' % (vWC + b, 2 * SLOT * b, vWC))
        F.wait_vm('eu')
        F.wait_lgkm()
        F('s_barrier')
        for p in range(3):
            for run in range(2):
                F('ds_read_b64_tr_b16 %s, v%d offset:%d' % (vr(vE + 4 * p + 2 * run, 2), vER, p * 4096 + run * 512))
        vST = self.vST = self.v('stat', 4)
        F('v_mov_b32 v%d, 0' % (vST + 3))
        F('buffer_load_dword v%d, v%d, %s, 0 offen sc1' % (self.vNONCE, vST + 3, sr(sDB, 4))); F.items[-1].gap = 10
        vSF = V.at('sf', 120, 20)
        F('v_dot2_f32_bf16 v%d, v%d, s%d, 0' % (t1, vSX, sONE))
        F('v_dot2_f32_bf16 v%d, v%d, s%d, 0' % (t2, vSX + 1, sONE))
        for i in range(2, 10):
            F('v_dot2_f32_bf16 v%d, v%d, s%d, v%d' % (t1 + (i & 1), vSX + i, sONE, t1 + (i & 1)))
        for p in range(3):
            a = vES if p < 2 else vES2
            F('buffer_store_dwordx4 %s, v%d, %s, 0 offen offset:%d sc1' %
              (vr(vE + 4 * p, 4), a, sr(sWS, 4), 2048 if p == 1 else 0), 'eus')
        for i in range(10):
            F('v_lshlrev_b32 v%d, 16, v%d' % (vSF + 2 * i, vSX + i))
            F('v_and_b32 v%d, 0xffff0000, v%d' % (vSF + 2 * i + 1, vSX + i))
        F('v_add_f32 v%d, v%d, v%d' % (t1, t1, t2))
        self.red32(F, t1, t2)
        F('v_mul_f32 v%d, 0x3acccccd, v%d' % (t1, t1))
        for i in range(20):
            F('v_sub_f32 v%d, v%d, v%d' % (vSF + i, vSF + i, t1))
        F('v_mul_f32 v%d, v%d, v%d' % (t2, vSF, vSF))
        F('v_mul_f32 v%d, v%d, v%d' % (t3, vSF + 1, vSF + 1))
        for i in range(2, 20):
            F('v_fmac_f32 v%d, v%d, v%d' % (t2 + (i & 1), vSF + i, vSF + i))
        F('v_add_f32 v%d, v%d, v%d' % (t2, t2, t3))
        self.red32(F, t2, t3)
        F('v_mul_f32 v%d, 0x3acccccd, v%d' % (t2, t2))
        self.rbf(F, t2)
        F('v_add_f32 v%d, 0x3727c5ac, v%d' % (t2, t2))
        self.rbf(F, t2)
        F('v_sqrt_f32 v%d, v%d' % (t2, t2))
        F('v_cvt_pk_bf16_f32 v%d, -v%d, v%d' % (vST, t1, t2))
        F('s_lshl_b32 s%d, s%d, 3' % (sT, sSR))
        F('s_add_u32 s%d, s%d, %d' % (sT, sT, ST_OFF))
        F('v_lshlrev_b32 v%d, 24, v%d' % (t3, vT32))
        F('v_lshl_add_u32 v%d, v%d, 3, v%d' % (t3, vHF, t3))
        F('v_add_u32 v%d, s%d, v%d' % (vST + 2, sT, t3))
        F('v_dot2_f32_bf16 v%d, v%d, s%d, 0' % (t1, vE, sONE))
        F('v_dot2_f32_bf16 v%d, v%d, s%d, 0' % (t2, vE + 1, sONE))
        for i in range(2, 12):
            F('v_dot2_f32_bf16 v%d, v%d, s%d, v%d' % (t1 + (i & 1), vE + i, sONE, t1 + (i & 1)))
        F('ds_write_b32 v%d, v%d' % (vWA + 1, vWL))
        F('ds_write_b32 v%d, v%d offset:%d' % (vWA, vWL + 1, 2048 + 256))
        F('v_add_f32 v%d, v%d, v%d' % (t2, t1, t2))
        self.xswap_sum(F, t2, t3)
        self.xswap_sum(F, t2, t3, swap='v_permlane16_swap_b32')
        self.hilo(F, t2, t3, t2)
        F('buffer_store_dword v%d, v%d, %s, 0 offen sc1' % (t2, vEC, sr(sWS, 4)), 'eus'); F.items[-1].gap = 10
        L = Prog()
        for s in range(1, 4):
            L.extend(stage_dma(s))
        self.sched(Prog(), L, F, 'prolog', slack=2)
        V.release('e', 'es', 'es2', 'ec', 'er', 'wl', 'wa', 'sf', 'sx', 'sa', 'junk')
        S.release('WPHI', 'WQKV', 'ones', 'srow', 'l')
        self.stamp()

    def nonce_check(self, P):
        G1.Gen.nonce_check(self, P, self.sDB, self.vST + 3)
```

```python
from gen2a import *


class GenB(GenA):
    def lane0(self, Q, dst, s):
        Q('v_lshlrev_b32 v%d, 24, v%d' % (dst, self.vLane))
        Q('v_add_u32 v%d, s%d, v%d' % (dst, s, dst))

    def tile_dma(self, T, lds):
        Q = Prog()
        sLS, sTB, sMB, sWS = self.sLS, self.sTB, self.sMB, self.sWS
        va = self.vL16 if T < 3 else self.vLP
        for grp in range(3):
            Q('s_add_u32 s%d, s%d, %d' % (sLS, sTB, T * TILE + grp * 4096))
            Q('s_add_u32 m0, s%d, %d' % (sMB, lds + grp * 4096))
            for i in range(4 if grp < 2 else 2):
                Q('buffer_load_dwordx4 v%d, %s, s%d offen offset:%d sc1 lds' % (va, sr(sWS, 4), sLS, i * 1024), 'tile%d' % T)
        Q('s_add_u32 s%d, s%d, %d' % (sLS, self.sTB0, T * TILE + 40960))
        Q('s_cmp_eq_u32 s%d, %d' % (self.sW, T))
        Q('s_cselect_b32 s%d, s%d, 0x%x' % (sLS, sLS, SOOB))
        Q('s_cselect_b32 m0, %d, s%d' % (lds + 40960, self.sDUM))
        Q('buffer_load_dwordx4 v%d, %s, s%d offen sc1 lds' % (va, sr(sWS, 4), sLS), 'tile%d' % T)
        Q.items[-1].gap = 20
        return Q

    def pass12(self):
        S, V = self.S, self.V
        sW, sR, sJ, sT, sT2, sM, sWS = self.sW, self.sR, self.sJ, self.sT, self.sT2, self.sM, self.sWS
        t1, t2, t3 = self.t1, self.t2, self.t3
        vLane, vL16, vG, vR4, vC4, vHF, vT32 = self.vLane, self.vL16, self.vG, self.vR4, self.vC4, self.vHF, self.vT32
        vXR, vWR, vWC, vSEL, vF, vPL, vPA = self.vXR, self.vWR, self.vWC, self.vSEL, self.vF, self.vPL, self.vPA
        O = self.o
        vQ = self.vQ = V.at('accQ', 96, 64)
        vH = self.vH = V.at('accH', 208, 48)
        vWP = self.vWP = V.at('wphi', 80, 16)
        NWF = 6
        vW2 = V.at('wf2', 184, 4 * NWF)
        vWF = vQ + 16
        vCF = V.at('ph', 160, 24)
        vCS = vCF + 12
        vRS = self.vRS = self.v('rstd'); vSD = self.v('sd'); vC1 = self.v('c1')
        vNM = self.v('negm', 4); vNH = self.v('negmh', 4)
        vRB = self.v('rb'); vRC = self.v('rc')
        self.vLP = self.v('lp'); self.sDUM = self.s('dum')
        M, L, F = Prog(), Prog(), Prog()

        def rdx(ks):
            s, u = divmod(ks, 4); sl = s % NSLOT
            M('ds_read_b128 %s, v%d offset:%d' % (ar(4 * ks, 4), vXR + 4 * (sl >> 1) + u, (sl & 1) * SLOT))

        def rdw(ks, T):
            s, u = divmod(ks, 4); sl = s % NSLOT
            for run in range(2):
                M('ds_read_b64_tr_b16 %s, v%d offset:%d' % (vr(vWF + 12 * (ks % 3) + 4 * T + 2 * run, 2), vWR + (sl >> 1),
                                                           (sl & 1) * SLOT + (16 * u + 4 * run) * 192 + T * 64))

        def rdc(s, T):
            sl = s % NSLOT
            for run in range(2):
                M('ds_read_b64_tr_b16 %s, v%d offset:%d' % (vr(vCF + 4 * T + 2 * run, 2), vWC + (sl >> 1),
                                                           (sl & 1) * SLOT + 4 * run * 192 + T * 64))

        def rd2(n):
            T, ks = divmod(n, 41)
            a, off = [(vL16, L_A), (vRB, 0), (vRC, 0), (vL16, L_A)][T]
            M('ds_read_b128 %s, v%d offset:%d' % (vr(vW2 + 4 * (n % NWF), 4), a, off + ks * 1024))

        M('v_lshl_add_u32 v%d, v%d, 2, v%d' % (vRB, vHF, vR4))
        M('v_lshlrev_b32 v%d, 6, v%d' % (vRB, vRB))
        M('v_and_b32 v%d, 1, v%d' % (vRC, vG))
        M('v_lshl_add_u32 v%d, v%d, 5, v%d' % (vRB, vRC, vRB))
        M('v_lshl_add_u32 v%d, v%d, 3, v%d' % (vRB, vC4, vRB))
        M('v_add_u32 v%d, %d, v%d' % (vRB, L_WT, vRB))
        M.wait_vm('st0')
        M.wait_lgkm()
        M('s_barrier')
        M.mark('B0')
        for ks in range(2):
            rdx(ks)
            for T in range(3):
                rdw(ks, T)
        for ks in range(40):
            s, u = divmod(ks, 4)
            for T in range(3):
                c = '0' if ks == 0 else vr(vH + 16 * T, 16)
                M('v_mfma_f32_32x32x16_bf16 %s, %s, %s, %s' % (vr(vH + 16 * T, 16), vr(vWF + 12 * (ks % 3) + 4 * T, 4), ar(4 * ks, 4), c))
                if T == 0 and u == 2 and s < 9:
                    if s + 1 >= 4:
                        M.need('sti%d' % (s + 1))
                    M.wait_vm('st%d' % (s + 1), *(['eus'] if s == O.get('f1b', 2) - 1 else []))
                    M('s_barrier')
                    M.mark('B%d' % (s + 1))
                if T == 0 and ks == 39:
                    M.need('ct'); M.need('tl0')
                    M.wait_vm('tile0')
                    M.wait_lgkm()
                    M('s_barrier')
                    M.mark('BF')
                    self.stamp(M)
                    for n in range(NWF - 1):
                        rd2(n)
                    for TT in range(3):
                        M('ds_read_b128 %s, v%d offset:%d' % (vr(vCF + 4 * TT, 4), vCS + 2, TT * 512))
                if ks + 2 < 40:
                    if T == 0:
                        rdx(ks + 2); rdw(ks + 2, 0)
                    elif T == 1:
                        rdw(ks + 2, 1); rdw(ks + 2, 2)
                if ks == 0:
                    rdc(0, T)
                elif u == 3 and s < 9:
                    rdc(s + 1, T)
                if ks == 2 and T < 2:
                    for win in range(2):
                        for run in range(2):
                            M('ds_read_b64_tr_b16 %s, v%d offset:%d' %
                              (vr(vWP + 8 * T + 4 * win + 2 * run, 2), vRB, T * 2048 + (16 * win + 8 * run) * 64))
            if u == 1:
                for T in range(3):
                    c = '0' if s == 0 else vr(vCS + 4 * T, 4)
                    M('v_mfma_f32_16x16x32_bf16 %s, %s, %s, %s' % (vr(vCS + 4 * T, 4), vr(vSEL, 4), vr(vCF + 4 * T, 4), c))
                if s == 9:
                    M.mark('cs')
            if ks == 4:
                M('v_add_u32 v%d, %d, v%d' % (vRB, L_B, vL16))
                M('v_add_u32 v%d, %d, v%d' % (vRC, L_C, vL16))
        KVPOS = O.get('kvpos', 163)
        for n in range(164):
            T, ks = divmod(n, 41)
            b = ar(4 * ks, 4) if ks < 40 else vr(vNM, 4)
            c = '0' if ks == 0 else vr(vQ + 16 * T, 16)
            if n == 123:
                M.need('silu')
            if n == 2:
                M.need('stats')
                for TT in range(3):
                    M('v_mfma_f32_32x32x16_bf16 %s, %s, %s, %s' % (vr(vH + 16 * TT, 16), vr(vCF + 4 * TT, 4), vr(vNH, 4), vr(vH + 16 * TT, 16)))
                M.mark('corr')
            M('v_mfma_f32_32x32x16_bf16 %s, %s, %s, %s' % (vr(vQ + 16 * T, 16), vr(vW2 + 4 * (n % NWF), 4), b, c))
            if ks == 40:
                M.mark('T%d' % T)
                self.stamp(M)
            if ks == 3 and T in (1, 2):
                M('s_barrier')
                M.mark('BX%d' % T)
            if n + NWF - 1 < 164:
                if (n + NWF - 1) % 41 == 0:
                    M.need('tl%d' % (T + 1))
                    M.wait_vm('tile%d' % (T + 1))
                    M('s_barrier')
                rd2(n + NWF - 1)

        self.sTB = self.s('tb'); self.sTB0 = self.s('tb0'); self.sMB = self.s('mb')
        L.extend(self.stage_dma(4)); L.mark('sti4')
        for s in range(5, 10):
            L.need('B%d' % (s - 3))
            if s == 9:
                L.need('f1i')
            L.extend(self.stage_dma(s)); L.mark('sti%d' % s)
        vUA = self.V.alloc('ua', 5, 1)
        sSel = self.s('sel', 4); sMU = self.s('mu')
        L.need('ua')
        for i in range(5):
            L('s_add_u32 m0, s%d, %d' % (sMU, L_ST + i * 1024))
            L('buffer_load_dwordx4 v%d, %s, 0 offen lds' % (vUA + i, sr(sSel, 4)), 'w2u')
            L.items[-1].gap = 50
        L.mark('w2i')
        L.need('B8'); L.need('f1ok')
        L.extend(self.tile_dma(0, L_A)); L.mark('tl0')
        L.need('B9')
        L.extend(self.tile_dma(1, L_B)); L.mark('tl1')
        L.need('BF')
        L.extend(self.tile_dma(2, L_C)); L.mark('tl2')
        L.need('BX1')
        L.extend(self.tile_dma(3, L_A)); L.mark('tl3')

        F('s_mul_i32 s%d, s%d, %d' % (self.sTB0, sJ, WQ_J))
        F('s_mul_i32 s%d, s%d, 10240' % (self.sMB, sW))
        F('s_add_u32 s%d, s%d, s%d' % (self.sTB, self.sTB0, self.sMB))
        F('v_mov_b32 v%d, 0x%x' % (t3, OOB))
        F('v_cmp_gt_u32 vcc, 24, v%d' % vT32)
        F('v_cndmask_b32 v%d, v%d, v%d, vcc' % (self.vLP, t3, vL16))
        F('s_mov_b32 s%d, %d' % (self.sDUM, L_DUMMY))
        sU = self.s('u'); sKS = self.s('ks')
        F('s_lshl_b32 s%d, s%d, 8' % (sU, sW))
        F('s_add_u32 s%d, s%d, s2' % (sU, sU))
        F('s_lshr_b32 s%d, s%d, 3' % (sKS, sU))
        F('s_mul_i32 s%d, s%d, 5120' % (sMU, sW))
        F('s_cmp_lt_u32 s%d, 48' % sKS)
        for i in range(4):
            F('s_cselect_b32 s%d, s%d, s%d' % (sSel + i, self.sW2 + i, self.sWO + i))
        a, b, c, d, e = vUA, vUA + 1, vUA + 2, vUA + 3, vUA + 4
        F('v_bfe_u32 v%d, v%d, 3, 2' % (a, vLane))
        F('v_bfe_u32 v%d, v%d, 2, 1' % (b, vLane))
        F('s_sub_u32 s%d, s%d, 48' % (sT, sKS))
        F('s_lshl_b32 s%d, s%d, 2' % (sT, sT))
        F('s_and_b32 s%d, s%d, 0xff' % (sT, sT))
        F('v_add_u32 v%d, s%d, v%d' % (c, sT, a))
        F('v_mul_u32_u24 v%d, 205, v%d' % (d, c))
        F('v_lshrrev_b32 v%d, 10, v%d' % (d, d))
        F('v_mul_u32_u24 v%d, 5, v%d' % (e, d))
        F('v_sub_u32 v%d, v%d, v%d' % (c, c, e))
        F('v_lshrrev_b32 v%d, 1, v%d' % (e, c))
        F('v_mul_u32_u24 v%d, 20, v%d' % (e, e))
        F('v_and_b32 v%d, 1, v%d' % (t1, c))
        F('v_lshl_add_u32 v%d, v%d, 3, v%d' % (e, t1, e))
        F('v_lshl_add_u32 v%d, v%d, 2, v%d' % (e, b, e))
        F('v_mad_u32_u24 v%d, v%d, 20, 16' % (t1, b))
        F('v_cmp_eq_u32 vcc, 4, v%d' % c)
        F('v_cndmask_b32 v%d, v%d, v%d, vcc' % (e, e, t1))
        F('v_mad_u32_u24 v%d, v%d, 40, v%d' % (e, d, e))
        F('v_lshrrev_b32 v%d, 1, v%d' % (c, a))
        F('v_and_b32 v%d, 1, v%d' % (a, a))
        F('v_lshlrev_b32 v%d, 4, v%d' % (c, c))
        F('v_lshl_add_u32 v%d, v%d, 2, v%d' % (c, a, c))
        F('v_lshl_add_u32 v%d, v%d, 3, v%d' % (c, b, c))
        F('s_lshl_b32 s%d, s%d, 5' % (sT, sKS))
        F('v_add_u32 v%d, s%d, v%d' % (c, sT, c))
        F('s_cmp_lt_u32 s%d, 48' % sKS)
        F('s_cselect_b64 vcc, -1, 0')
        F('v_cndmask_b32 v%d, v%d, v%d, vcc' % (c, e, c))
        F('v_add_u32 v%d, v%d, v%d' % (c, c, vC4))
        F('s_and_b32 s%d, s%d, 7' % (sT, sU))
        F('s_mul_i32 s%d, s%d, 160' % (sT, sT))
        F('s_cmp_lt_u32 s%d, 544' % sU)
        F('s_cselect_b32 s%d, s%d, 0x%x' % (sT, sT, OOB))
        F('v_mul_u32_u24 v%d, 1280, v%d' % (t2, c))
        F('v_add_u32 v%d, s%d, v%d' % (t2, sT, t2))
        vUB = self.V.alloc('ub', 5, 1)
        for i in range(5):
            F('v_add_u32 v%d, %d, v%d' % (t1, 64 * i, vLane))
            F('v_mul_u32_u24 v%d, 6554, v%d' % (t3, t1))
            F('v_lshrrev_b32 v%d, 16, v%d' % (t3, t3))
            F('v_mul_u32_u24 v%d, 10, v%d' % (vUB + i, t3))
            F('v_sub_u32 v%d, v%d, v%d' % (vUB + i, t1, vUB + i))
            F('v_lshlrev_b32 v%d, 2, v%d' % (t3, t3))
            F('ds_bpermute_b32 v%d, v%d, v%d' % (vUA + i, t3, t2))
        for i in range(5):
            F('v_lshl_add_u32 v%d, v%d, 4, v%d' % (vUA + i, vUB + i, vUA + i))
        F.mark('ua')
        F.need('B%d' % O.get('f1b', 2))
        self.nonce_check(F)
        F('v_mov_b32 v%d, v%d' % (self.vST + 1, self.vNONCE))
        F('buffer_store_dwordx2 %s, v%d, %s, 0 offen sc1' % (vr(self.vST, 2), self.vST + 2, sr(sWS, 4)), 'sts'); F.items[-1].gap = 10
        F('s_lshl_b32 s%d, s2, 2' % sT)
        F('s_add_u32 s%d, s%d, %d' % (sT, sT, F1_OFF))
        F('v_lshlrev_b32 v%d, 24, v0' % vF)
        F('v_add_u32 v%d, s%d, v%d' % (vF, sT, vF))
        self.flag_store(F, vF)
        F('v_min_u32 v%d, 59, v%d' % (vPA, vLane))
        F('v_lshlrev_b32 v%d, 4, v%d' % (vPA, vPA))
        F('v_add_u32 v%d, %d, v%d' % (vPA, F1_OFF, vPA))
        vSP = self.v('sp', 2); vSQ = self.v('sq')
        F('s_lshl2_add_u32 s%d, s%d, s%d' % (sT, sR, sW))
        F('s_lshl_b32 s%d, s%d, 8' % (sT, sT))
        F('s_add_u32 s%d, s%d, %d' % (sT, sT, ST_OFF))
        F('v_lshl_add_u32 v%d, v%d, 3, s%d' % (vSQ, vT32, sT))
        ta, tb = vUB, vUB + 1
        F('v_lshl_add_u32 v%d, v%d, 3, v%d' % (ta, vG, vR4))
        F('v_mul_u32_u24 v%d, 160, v%d' % (ta, ta))
        F('v_mad_u32_u24 v%d, v%d, 40, v%d' % (ta, vC4, ta))
        F('s_add_u32 s%d, s%d, %d' % (sT, sMU, L_ST))
        F('v_add_u32 v%d, s%d, v%d' % (ta, sT, ta))
        F('s_and_b32 s%d, s%d, 7' % (sT, sU))
        F('s_mul_i32 s%d, s%d, %d' % (sT2, sT, W2_C))
        F('s_mul_i32 s%d, s%d, 5120' % (sM, sKS))
        F('s_add_u32 s%d, s%d, s%d' % (sM, sM, sT2))
        F('s_add_u32 s%d, s%d, %d' % (sM, sM, W2_OFF))
        F('s_lshl_b32 s%d, s%d, 7' % (sT, sT))
        F('s_add_u32 s%d, s%d, s%d' % (sT, sT, sKS))
        F('s_lshl_b32 s%d, s%d, 2' % (sT, sT))
        F('s_add_u32 s%d, s%d, %d' % (sT, sT, F2_OFF))
        F('s_cmp_lt_u32 s%d, 544' % sU)
        F('s_cselect_b32 s%d, s%d, 0x%x' % (sM, sM, SOOB))
        F('s_cselect_b32 s%d, s%d, 0x%x' % (sT, sT, SOOB))
        self.lane0(F, vF, sT)
        F('v_add_u32 v%d, 4096, v%d' % (tb, vL16))
        F.need('B6')
        self.poll_issue(F, vPL, 4, vPA, 'f1'); F.items[-1].gap = 20
        F('buffer_load_dwordx2 %s, v%d, %s, 0 offen sc1' % (vr(vSP, 2), vSQ, sr(sWS, 4)), 'sp'); F.items[-1].gap = 10
        F.mark('f1i')
        self.poll_check(F, vPL, 4, vPA, 1)
        F.mark('f1ok')
        self.poll_check2(F, vSP, vSQ)
        F('v_and_b32 v%d, 0xffff0000, v%d' % (vSD, vSP))
        F('v_rcp_f32 v%d, v%d' % (vRS, vSD))
        F('v_lshlrev_b32 v%d, 16, v%d' % (t1, vSP))
        F('v_cvt_pk_bf16_f32 v%d, v%d, v%d' % (vNM, t1, t1))
        F('v_mul_f32 v%d, 0.5, v%d' % (t1, t1))
        F('v_cvt_pk_bf16_f32 v%d, v%d, v%d' % (vNH, t1, t1))
        F('v_mul_f32 v%d, 0x%x, v%d' % (vC1, LOG2E | 0x80000000, vRS))
        for i in range(1, 4):
            F('v_mov_b32 v%d, v%d' % (vNM + i, vNM))
            F('v_mov_b32 v%d, v%d' % (vNH + i, vNH))
        F.mark('stats')
        vU = vW2
        F.need('w2i')
        F.wait_vm('w2u')
        for ft in range(5):
            for run in range(2):
                F('ds_read_b64_tr_b16 %s, v%d offset:%d' % (vr(vU + 4 * ft + 2 * run, 2), ta, run * 640 + ft * 8))
        for ft in range(5):
            F('buffer_store_dwordx4 %s, v%d, %s, s%d offen offset:%d sc1' %
              (vr(vU + 4 * ft, 4), vL16 if ft < 4 else tb, sr(sWS, 4), sM, (ft & 3) * 1024), 'w2s')
            F.items[-1].gap = 50
        F('v_lshlrev_b32 v%d, 4, v%d' % (t1, vT32))
        F('v_add_u32 v%d, %d, v%d' % (t1, L_CT, t1))
        F('s_lshl_b32 s%d, s%d, 2' % (sT, sW))
        F('v_add_u32 v%d, s%d, v%d' % (t2, sT, t1))
        F.need('cs')
        for T in range(3):
            self.hilo(F, vCS + 4 * T, t3, vCS + 4 * T + 1)
            F('ds_write_b32 v%d, v%d offset:%d' % (t2, vCS + 4 * T + 1, T * 512))
        F('v_mov_b32 v%d, v%d' % (vCS + 2, t1))
        F.mark('ct')
        self.ctx = dict(M=M, L=L, F=F, vSD=vSD, vC1=vC1, vW2=vW2)

    def poll_check2(self, P, vdst, vaddr):
        self.nlab += 1
        L = 'Lpoll%d' % self.nlab
        c = 'v_cmp_ne_u32 vcc, s%d, v%d' % (self.sNONCE, vdst + 1)
        P(c)
        P('s_cbranch_vccnz %s' % L)
        P('%s_ret:' % L)
        txt = ['%s:' % L, '    s_mov_b32 s%d, 0x20000' % self.sCNT, '%s_loop:' % L, '    s_nop 7',
               '    buffer_load_dwordx2 %s, v%d, %s, 0 offen sc1' % (vr(vdst, 2), vaddr, sr(self.sWS, 4)),
               '    s_waitcnt vmcnt(0)', '    ' + c, '    s_nop 7', '    s_cbranch_vccz %s_done' % L,
               '    s_sub_u32 s%d, s%d, 1' % (self.sCNT, self.sCNT),
               '    s_cmp_lg_u32 s%d, 0' % self.sCNT,
               '    s_cbranch_scc1 %s_loop' % L,
               '%s_done:' % L, '    s_nop 7', '    s_branch %s_ret' % L]
        self.ool.append('\n'.join(txt))
```

```python
from gen2a import *


def phase3(self, E):
    globals().update({k: v for k, v in E.items() if k not in ('E',)})
    S, V, O = self.S, self.V, self.o
    mf, where = self.p3['mf'], self.p3['where']
    vKI = self.v('ki')
    F('v_cmp_eq_u32 vcc, 24, v%d' % vT32)
    F('v_cndmask_b32 v%d, v%d, 21, vcc' % (t1, vT32))
    F('v_mad_u32_u24 v%d, v%d, 22, v%d' % (t2, vHF, t1))
    F('v_cmp_gt_u32 vcc, 22, v%d' % t1)
    F('v_cmp_ne_u32 s[%d:%d], 21, v%d' % (sPC, sPC + 1, vT32))
    F('s_and_b64 vcc, vcc, s[%d:%d]' % (sPC, sPC + 1))
    F('v_mov_b32 v%d, 0x%x' % (t3, OOB >> 4))
    F('v_cndmask_b32 v%d, v%d, v%d, vcc' % (vKI, t3, t2))
    sKB = self.s('kb')
    F('s_lshl1_add_u32 s%d, s%d, s%d' % (sKB, sJ, sHH))
    F('s_lshl4_add_u32 s%d, s%d, s%d' % (sT2, sKB, sR))
    F('s_mul_i32 s%d, s%d, 1792' % (sM, sT2))
    F('s_add_u32 s%d, s%d, %d' % (sM, sM, KV_OFF))
    F('s_bitcmp1_b32 s%d, 0' % sW)
    F('s_cselect_b32 s%d, 0x%x, s%d' % (sSO, SOOB, sM))
    F('s_cselect_b32 s%d, s%d, 0x%x' % (sM, sM, SOOB))
    vK16 = self.v('k16'); vK8 = self.v('k8')
    F('v_lshlrev_b32 v%d, 4, v%d' % (vK16, vKI))
    F('v_lshlrev_b32 v%d, 3, v%d' % (vK8, vKI))
    F('s_and_b32 s%d, s%d, 1' % (sT, sW))
    F('s_lshl1_add_u32 s%d, s%d, s%d' % (sT2, sT2, sT))
    F('s_lshl_b32 s%d, s%d, 2' % (sT2, sT2))
    F('s_add_u32 s%d, s%d, %d' % (sT2, sT2, FK_OFF))
    self.lane0(F, vF, sT2)
    F('s_lshl_b32 s%d, s%d, 5' % (sT2, sKB))
    F('s_lshl4_add_u32 s%d, s%d, s%d' % (sT2, sT, sT2))
    F('v_and_b32 v%d, 15, v%d' % (t1, vLane))
    F('v_add_u32 v%d, s%d, v%d' % (t1, sT2, t1))
    F('v_lshlrev_b32 v%d, 2, v%d' % (t1, t1))
    F('v_add_u32 v%d, %d, v%d' % (vPA, FK_OFF, t1))
    V.release('ki')
    F.need('kvd')
    V.release('rb', 'rc', 'negm', 'lp', 'ad')
    vKF = vQ + 32
    vPQ = vQ
    for i in range(8):
        F('v_cvt_pk_bf16_f32 v%d, v%d, v%d' % (vKF + i, vKD + 2 * i, vKD + 2 * i + 1))
    F('buffer_store_dwordx4 %s, v%d, %s, s%d offen sc1' % (vr(vKF, 4), vK16, sr(sWS, 4), sSO), 'kvs')
    F('buffer_store_dwordx4 %s, v%d, %s, s%d offen offset:704 sc1' % (vr(vKF + 4, 4), vK16, sr(sWS, 4), sSO), 'kvs')
    F('buffer_store_dwordx2 %s, v%d, %s, s%d offen offset:1408 sc1' % (vr(vKF, 2), vK8, sr(sWS, 4), sM), 'kvs')
    for it in F.items[-3:]:
        it.gap = 20
    phi_pre(F, vPQ, [(vQ + 40, 8), (vQ + 48, 8), (vQ + 56, 4)], True, [None, None, None])
    if O.get('kvf', 0) == 0:
        F.wait_vm('kvs'); self.flag_store(F, vF); F.items[-1].gap = 10
    softmax(F, vPQ, vPH)
    if O.get('kvf', 0) == 1:
        F.wait_vm('kvs'); self.flag_store(F, vF); F.items[-1].gap = 10
    if O.get('fki', 1) == 0:
        self.poll_issue(F, vPL, 1, vPA, 'fk'); F.items[-1].gap = 10
    softmax(F, vPQ + 16, vPH + 12)
    if O.get('fki', 1) == 1:
        self.poll_issue(F, vPL, 1, vPA, 'fk'); F.items[-1].gap = 10
    for hh in range(2):
        F('v_mov_b32 v%d, 0' % (vPH + 12 * hh + 10))
        F('v_mov_b32 v%d, 0' % (vPH + 12 * hh + 11))
    V.release('accQ', 'sm', 'kb', 'ta', 'rs2', 'rstd', 'wphi')
    vKP = V.at('kp', 80, 80); vSU = V.at('su', 60, 20)
    F('s_lshl_b32 s%d, s%d, 4' % (sT2, sKB))
    F('s_lshl3_add_u32 s%d, s%d, s%d' % (sT2, sT, sT2))
    F('s_mul_i32 s%d, s%d, 1792' % (sT2, sT2))
    F('s_add_u32 s%d, s%d, %d' % (sT2, sT2, KV_OFF))
    sLO = self.s('lo'); sHI = self.s('hi')
    F('s_mov_b32 s%d, 0x3f80' % sLO)
    F('s_mov_b32 s%d, 0x3f800000' % sHI)
    vOA = self.v('oa', 3)
    F('s_mul_i32 s%d, s%d, 5' % (sM, sJ))
    for n, add in enumerate((0, 2, 4)):
        F('v_add_u32 v%d, s%d, v%d' % (t1, sM, vHF))
        if add:
            F('v_add_u32 v%d, %d, v%d' % (t1, add, t1))
        F('v_lshrrev_b32 v%d, 2, v%d' % (t2, t1))
        F('v_and_b32 v%d, 3, v%d' % (t1, t1))
        F('v_lshl_add_u32 v%d, v%d, 12, v%d' % (t2, t2, vTK))
        F('v_lshl_add_u32 v%d, v%d, 8, v%d' % (vOA + n, t1, t2))
        if add == 4:
            F('v_lshl_add_u32 v%d, v%d, 31, v%d' % (vOA + n, vHF, vOA + n))
    self.poll_check(F, vPL, 1, vPA, 4)
    self.stamp(F)
    for p in range(8):
        b = vKP + 10 * p
        F('buffer_load_dwordx4 %s, v%d, %s, s%d offen sc1' % (vr(b, 4), vK16, sr(sWS, 4), sT2)); F.items[-1].gap = 55
        F('buffer_load_dwordx4 %s, v%d, %s, s%d offen offset:704 sc1' % (vr(b + 4, 4), vK16, sr(sWS, 4), sT2)); F.items[-1].gap = 55
        F('buffer_load_dwordx2 %s, v%d, %s, s%d offen offset:1408 sc1' % (vr(b + 8, 2), vK8, sr(sWS, 4), sT2)); F.items[-1].gap = 30
        if p < 7:
            F('s_add_u32 s%d, s%d, 1792' % (sT2, sT2))
    V.release('k16', 'k8')
    F('s_mul_i32 s%d, s%d, 5120' % (sT2, sW))
    F('s_add_u32 s%d, s%d, %d' % (sT2, sT2, L_KVS))
    F('v_add_u32 v%d, s%d, v%d' % (t1, sT2, vL16))
    F('v_add_u32 v%d, %d, v%d' % (t2, L_KVS, vL16))
    F('s_add_u32 s%d, s%d, %d' % (sM, sHB, 48 * 4096))
    F('s_add_u32 s%d, s%d, %d' % (sT2, sFH, FO_OFF))
    self.lane0(F, vF, sT2)
    F('s_add_u32 s%d, s%d, %d' % (sT2, sFC, FO_OFF // 4))
    F('v_and_b32 v%d, 7, v%d' % (t3, vLane))
    F('v_add_u32 v%d, s%d, v%d' % (t3, sT2, t3))
    F('v_lshlrev_b32 v%d, 2, v%d' % (vPA, t3))
    for p in range(8):
        for i in range(10):
            for h, sc in ((0, sLO), (1, sHI)):
                c = '0' if p == 0 else 'v%d' % (vSU + 2 * i + h)
                F('v_dot2_f32_bf16 v%d, v%d, s%d, %s' % (vSU + 2 * i + h, vKP + 10 * p + i, sc, c))
    S.release('lo', 'hi')
    for i in range(5):
        F('ds_write_b128 v%d, %s offset:%d' % (t1, vr(vSU + 4 * i, 4), i * 1024))
    F.wait_lgkm()
    F('s_barrier')
    for ww in range(4):
        for i in range(5):
            F('ds_read_b128 %s, v%d offset:%d' % (vr(vKP + 20 * ww + 4 * i, 4), t2, ww * 5120 + i * 1024))
    kt = [vKP + 20, vKP + 60]; od = [vKP, vKP + 40]; vKT = vSU
    for hh in range(2):
        a, b = vKP + 40 * hh, vKP + 40 * hh + 20
        for i in range(0, 20, 2):
            F('v_pk_add_f32 %s, %s, %s' % (vr(a + i, 2), vr(a + i, 2), vr(b + i, 2)))
        for i in range(10):
            F('v_cvt_pk_bf16_f32 v%d, v%d, v%d' % (kt[hh] + i, a + 2 * i, a + 2 * i + 1))
        F('v_mov_b32 v%d, 0' % (kt[hh] + 10))
        F('v_mov_b32 v%d, 0' % (kt[hh] + 11))
        for ks in range(3):
            c = '0' if ks == 0 else vr(od[hh], 16)
            F('v_mfma_f32_32x32x16_bf16 %s, %s, %s, %s' % (vr(od[hh], 16), vr(kt[hh] + 4 * ks, 4), vr(vPH + 12 * hh + 4 * ks, 4), c))
    F('v_cmp_eq_u32 vcc, 0, v%d' % vHF)
    vDN = self.v('dn', 4)
    for hh in range(2):
        d = od[hh]
        F('v_cndmask_b32 v%d, v%d, v%d, vcc' % (vDN + 2 * hh, d + 8, d + 12))
        F('v_add_f32 v%d, 0x358637bd, v%d' % (vDN + 2 * hh, vDN + 2 * hh))
        F('v_rcp_f32 v%d, v%d' % (vDN + 2 * hh, vDN + 2 * hh))
        for i in range(0, 12, 2):
            F('v_pk_mul_f32 %s, %s, %s op_sel_hi:[1,0]' % (vr(d + i, 2), vr(d + i, 2), vr(vDN + 2 * hh, 2)))
        for i in range(4):
            F('v_cvt_pk_bf16_f32 v%d, v%d, v%d' % (vKT + 4 * hh + i, d + 2 * i, d + 2 * i + 1))
        for i in range(2):
            F('v_cvt_pk_bf16_f32 v%d, v%d, v%d' % (vKT + 8 + 2 * hh + i, d + 8 + 2 * i, d + 9 + 2 * i))
        F('buffer_store_dwordx4 %s, v%d, %s, s%d offen sc1' % (vr(vKT + 4 * hh, 4), vOA + hh, sr(sWS, 4), sM), 'ost')
    F('buffer_store_dwordx4 %s, v%d, %s, s%d offen sc1' % (vr(vKT + 8, 4), vOA + 2, sr(sWS, 4), sM), 'ost')
    self.stamp(F)
    V.release('kp', 'oa', 'dn', 'ph', 'tk')
    vEA = self.v('ea', 6); vER = self.v('er', 2); vXO = self.v('xo'); vXR = self.v('xres', 10)
    vS3 = V.at('s3', 140, 20); vRD = V.at('rd', 80, 60)
    for v in range(3):
        F('s_add_u32 s%d, s%d, %d' % (sT, sW, v + 1))
        F('s_and_b32 s%d, s%d, 3' % (sT, sT))
        F('s_mul_i32 s%d, s%d, 15360' % (sT, sT))
        F('s_add_u32 s%d, s%d, %d' % (sT, sT, L_EX1 + v * 5120))
        F('v_add_u32 v%d, s%d, v%d' % (vEA + v, sT, vL16))
        F('v_add_u32 v%d, %d, v%d' % (vEA + 3 + v, L_EX2 - L_EX1, vEA + v))
    F('s_mul_i32 s%d, s%d, 15360' % (sT, sW))
    F('v_add_u32 v%d, s%d, v%d' % (vER, sT, vL16))
    F('v_add_u32 v%d, %d, v%d' % (vER + 1, L_EX2 - L_EX1, vER))
    F('s_lshl2_add_u32 s%d, s%d, s%d' % (sT2, sR3, sW))
    F('s_mul_i32 s%d, s%d, %d' % (sT2, sT2, 16 * 1280))
    F('s_mul_i32 s%d, s%d, 160' % (sT, sC3))
    F('s_add_u32 s%d, s%d, s%d' % (sT2, sT2, sT))
    F('v_and_b32 v%d, 15, v%d' % (t1, vLane))
    F('v_mul_u32_u24 v%d, 1280, v%d' % (t1, t1))
    F('v_mad_u32_u24 v%d, v%d, 40, v%d' % (t1, vG, t1))
    F('v_add_u32 v%d, s%d, v%d' % (vXO, sT2, t1))
    F.wait_vm('ost')
    self.flag_store(F, vF); F.items[-1].gap = 10
    V.release('su')
    F.need(O.get('fo_at', 'lW14_0'))
    self.poll_issue(F, vPL, 1, vPA, 'fo'); F.items[-1].gap = 10
    F('buffer_load_dwordx4 %s, v%d, %s, 0 offen' % (vr(vXR, 4), vXO, sr(self.sX, 4)))
    F('buffer_load_dwordx4 %s, v%d, %s, 0 offen offset:16' % (vr(vXR + 4, 4), vXO, sr(self.sX, 4)))
    F('buffer_load_dwordx2 %s, v%d, %s, 0 offen offset:32' % (vr(vXR + 8, 2), vXO, sr(self.sX, 4)))
    self.poll_check(F, vPL, 1, vPA, 5)
    F.mark('fook')
    self.stamp(F)

    def exch(x, abase, own, mk):
        for v in range(3):
            F.need(mk(v))
            for ft in range(5):
                F('ds_write_b128 v%d, %s offset:%d' % (vEA + 3 * x + v, ar(abase + 20 * v + 4 * ft, 4), ft * 1024))
                F.items[-1].cost = 16
        F.wait_lgkm()
        F('s_barrier')
        for sl in range(3):
            for ft in range(5):
                F('ds_read_b128 %s, v%d offset:%d' % (vr(vRD + 20 * sl + 4 * ft, 4), vER + x, sl * 5120 + ft * 1024))
        for i in range(0, 20, 2):
            F('v_pk_add_f32 %s, %s, %s' % (vr(vRD + i, 2), vr(vRD + i, 2), vr(vRD + 20 + i, 2)))
        for i in range(0, 20, 2):
            F('v_pk_add_f32 %s, %s, %s' % (vr(vRD + i, 2), vr(vRD + i, 2), vr(vRD + 40 + i, 2)))
        F.need(mk(3))
        for i in range(0, 20, 2):
            F('v_pk_add_f32 %s, %s, %s' % (vr(own + i, 2), vr(own + i, 2), vr(vRD + i, 2)))

    exch(0, 0, vO2, lambda v: 'm%d' % (220 + 5 * v + 4))
    vGT = vRD + 20
    F('s_mov_b32 s%d, 0x%x' % (sT2, LOG2E | 0x80000000))
    for i in range(20):
        F('v_mul_f32 v%d, s%d, v%d' % (vGT + i, sT2, vO2 + i))
    for i in range(20):
        F('v_exp_f32 v%d, v%d' % (vGT + i, vGT + i))
    for i in range(0, 20, 2):
        F('v_pk_add_f32 %s, %s, 1.0 op_sel_hi:[1,0]' % (vr(vGT + i, 2), vr(vGT + i, 2)))
    for i in range(20):
        F('v_rcp_f32 v%d, v%d' % (vGT + i, vGT + i))
    for i in range(0, 20, 2):
        F('v_pk_mul_f32 %s, %s, %s' % (vr(vO2 + i, 2), vr(vGT + i, 2), vr(vO2 + i, 2)))
    vXF = V.at('xf', 160, 20)
    for i in range(10):
        F('v_lshlrev_b32 v%d, 16, v%d' % (vXF + 2 * i, vXR + i))
        F('v_and_b32 v%d, 0xffff0000, v%d' % (vXF + 2 * i + 1, vXR + i))
    exch(1, 60, vS3, lambda v: 'm%d' % (240 + 25 * v + 24))
    self.stamp(F)
    for i in range(0, 20, 2):
        F('v_pk_fma_f32 %s, %s, %s, %s' % (vr(vXF + i, 2), vr(vS3 + i, 2), vr(vO2 + i, 2), vr(vXF + i, 2)))
    for i in range(10):
        F('v_cvt_pk_bf16_f32 v%d, v%d, v%d' % (vXR + i, vXF + 2 * i, vXF + 2 * i + 1))
    F('buffer_store_dwordx4 %s, v%d, %s, 0 offen' % (vr(vXR, 4), vXO, sr(self.sOUT, 4)))
    F('buffer_store_dwordx4 %s, v%d, %s, 0 offen offset:16' % (vr(vXR + 4, 4), vXO, sr(self.sOUT, 4)))
    F('buffer_store_dwordx2 %s, v%d, %s, 0 offen offset:32' % (vr(vXR + 8, 2), vXO, sr(self.sOUT, 4)))
    for i, (st, v, ft) in enumerate(mf):
        M.need('lW%d_%d' % (st, ft)); M.need('lA%d_%d' % (st, v))
        if st < 12:
            d = accH(v, ft)
        else:
            d = ar(60 + 20 * v + 4 * ft, 4) if v < 3 else vr(vS3 + 4 * ft, 4)
        c = '0' if st in (0, 12) else d
        M('v_mfma_f32_16x16x32_bf16 %s, %s, %s, %s' % (d, where[('W', st, ft)], where[('A', st, v)], c))
        M.mark('m%d' % i)
        if i in (119, 239):
            self.stamp(M)
    self.sched(M, L, F, 'main', slack=O.get('slack', 1))
    mk = self.md.marks
    print('  marks:', ' '.join('%s=%d' % (k, mk[k]) for k in ('B0', 'B5', 'B9', 'BF', 'T0', 'T1', 'T2', 'T3', 'silu', 'kvw', 'kvd', 'f2ok', 'fhok', 'm119', 'm239', 'fook', 'm339')))
```

```python
from gen2b import *


class Gen2(GenB):
    def build(self):
        self.prologue()
        self.pass12()
        S, V, O = self.S, self.V, self.o
        sW, sR, sJ, sT, sT2, sM, sWS, sSO = self.sW, self.sR, self.sJ, self.sT, self.sT2, self.sM, self.sWS, self.sSO
        sR3, sC3, sLS, sPC = self.sR3, self.sC3, self.sLS, self.sPC
        t1, t2, t3 = self.t1, self.t2, self.t3
        vLane, vL16, vG, vR4, vC4, vHF, vT32 = self.vLane, self.vL16, self.vG, self.vR4, self.vC4, self.vHF, self.vT32
        vF, vPL, vPA, vQ, vH, vWP, vRS = self.vF, self.vPL, self.vPA, self.vQ, self.vH, self.vWP, self.vRS
        M, L, F = self.ctx['M'], self.ctx['L'], self.ctx['F']
        vSD, vC1 = self.ctx['vSD'], self.ctx['vC1']
        F.need('BF')
        V.release('xd', 'w1d', 'wr', 'wc', 'sel', 'ua', 'ub', 'sp', 'sq', 'stat')
        if self.ts != 3:
            S.release('DBG')
        S.release('mx', 'mw', 'W1', 'sel', 'mu', 'u', 'ks', 'W2', 'WO')
        vTK = self.v('tk'); vHA = self.v('ha')
        sHB = self.s('hb'); sFH = self.s('fh'); sFC = self.s('fc')
        F('s_lshr_b32 s%d, s%d, 1' % (sT, sW))
        F('s_lshl1_add_u32 s%d, s%d, s%d' % (sHB, sR, sT))
        F('s_lshl4_add_u32 s%d, s%d, s%d' % (sFH, sHB, sJ))
        F('s_mul_i32 s%d, s%d, %d' % (sHB, sHB, HO_R))
        F('s_and_b32 s%d, s%d, 1' % (sT, sW))
        F('s_lshl1_add_u32 s%d, s%d, s%d' % (sFH, sFH, sT))
        F('s_lshl_b32 s%d, s%d, 2' % (sFH, sFH))
        F('s_lshl_b32 s%d, s%d, 11' % (sT, sT))
        F('s_add_u32 s%d, s%d, s%d' % (sHB, sHB, sT))
        F('s_add_u32 s%d, s%d, %d' % (sHB, sHB, HO_OFF))
        F('v_and_b32 v%d, 15, v%d' % (t2, vLane))
        F('v_lshlrev_b32 v%d, 4, v%d' % (t2, t2))
        F('v_bfe_u32 v%d, v%d, 4, 1' % (t3, vLane))
        F('v_lshl_add_u32 v%d, v%d, 10, v%d' % (vTK, t3, t2))
        F('v_lshl_add_u32 v%d, v%d, 8, v%d' % (vHA, vHF, vTK))
        F('s_mul_i32 s%d, s%d, %d' % (sT, sJ, 3 * 4096))
        F('s_add_u32 s%d, s%d, s%d' % (sSO, sHB, sT))
        sWB = [self.s('wbh'), self.s('wbo')]; sAB = [self.s('abh'), self.s('abo')]
        v4k = self.v('v4k'); vAV = self.v('av', 4)
        F('s_mul_i32 s%d, s%d, %d' % (sT, sC3, W2_C))
        F('s_mul_i32 s%d, s%d, %d' % (sT2, sW, 12 * 5120))
        F('s_add_u32 s%d, s%d, s%d' % (sWB[0], sT, sT2))
        F('s_mul_i32 s%d, s%d, %d' % (sT2, sW, 5 * 5120))
        F('s_add_u32 s%d, s%d, s%d' % (sWB[1], sT, sT2))
        F('s_mul_i32 s%d, s%d, %d' % (sT, sR3, HO_R))
        F('s_mul_i32 s%d, s%d, %d' % (sT2, sW, 12 * 4096))
        F('s_add_u32 s%d, s%d, s%d' % (sAB[0], sT, sT2))
        F('s_mul_i32 s%d, s%d, %d' % (sT2, sW, 5 * 4096))
        F('s_add_u32 s%d, s%d, s%d' % (sAB[1], sT, sT2))
        F('v_add_u32 v%d, 4096, v%d' % (v4k, vL16))
        for v in range(4):
            F('s_add_u32 s%d, s%d, %d' % (sT, sW, v + 1))
            F('s_and_b32 s%d, s%d, 3' % (sT, sT))
            F('s_lshl_b32 s%d, s%d, 10' % (sT, sT))
            F('v_add_u32 v%d, s%d, v%d' % (vAV + v, sT, vL16))
        F('s_mul_i32 s%d, s%d, 12' % (sT2, sW))
        F('s_lshl_b32 s%d, s%d, 7' % (sM, sC3))
        F('s_add_u32 s%d, s%d, s%d' % (sT2, sT2, sM))
        F('v_min_u32 v%d, 16, v%d' % (t1, vLane))
        F('v_add_u32 v%d, s%d, v%d' % (t2, sT2, t1))
        F('s_mul_i32 s%d, s%d, 5' % (sT2, sW))
        F('s_add_u32 s%d, s%d, s%d' % (sT2, sT2, sM))
        F('s_add_u32 s%d, s%d, %d' % (sT2, sT2, 48 - 12))
        F('v_add_u32 v%d, s%d, v%d' % (t3, sT2, t1))
        F('v_cmp_gt_u32 vcc, 12, v%d' % t1)
        F('v_cndmask_b32 v%d, v%d, v%d, vcc' % (t2, t3, t2))
        F('v_lshlrev_b32 v%d, 2, v%d' % (t2, t2))
        F('v_add_u32 v%d, %d, v%d' % (vPA, F2_OFF, t2))
        F('s_lshl_b32 s%d, s%d, 5' % (sFC, sR3))
        F('s_lshl3_add_u32 s%d, s%d, s%d' % (sFC, sW, sFC))
        F.wait_vm('w2s')
        self.flag_store(F, vF); F.items[-1].gap = 10
        F.need('corr')
        vKB = 68; vPH = 160
        vE = vKB; vPK = vQ + 56
        for T in range(3):
            for ip in range(2):
                a = vH + 16 * T + 8 * ip
                pk = vPK + 4 * ip
                for i in range(8):
                    F('v_mul_f32 v%d, v%d, v%d' % (vE + i, vC1, a + i))
                for i in range(8):
                    F('v_exp_f32 v%d, v%d' % (vE + i, vE + i))
                for i in range(8):
                    F('v_fma_f32 v%d, v%d, v%d, v%d' % (vE + i, vE + i, vSD, vSD))
                for i in range(8):
                    F('v_rcp_f32 v%d, v%d' % (vE + i, vE + i))
                for i in range(8):
                    F('v_mul_f32 v%d, v%d, v%d' % (a + i, a + i, vE + i))
                for i in range(4):
                    F('v_cvt_pk_bf16_f32 v%d, v%d, v%d' % (pk + i, a + 2 * i, a + 2 * i + 1))
                F('buffer_store_dwordx4 %s, v%d, %s, s%d offen offset:%d sc1' % (vr(pk, 4), vHA, sr(sWS, 4), sSO, ip * 512), 'hst')
            if T < 2:
                F('s_add_u32 s%d, s%d, 4096' % (sSO, sSO))
            if T == O.get('f2i', 0):
                self.poll_issue(F, vPL, 1, vPA, 'f2'); F.items[-1].gap = 10
            if T == O.get('f2c', 1):
                self.poll_check(F, vPL, 1, vPA, 2)
                F.mark('f2ok')
        F.mark('silu')
        V.release('ha', 'sd', 'c1', 'negmh')
        F('s_add_u32 s%d, s%d, %d' % (sT, sFH, FH_OFF))
        self.lane0(F, vF, sT)
        F('s_add_u32 s%d, s%d, %d' % (sT2, sFC, FH_OFF // 4))
        F('v_and_b32 v%d, 7, v%d' % (t1, vLane))
        F('v_add_u32 v%d, s%d, v%d' % (t1, sT2, t1))
        F('v_lshlrev_b32 v%d, 2, v%d' % (vPA, t1))
        sL2E = self.s('l2e')
        vSM = self.V.alloc('sm', 5, 1); vTA = self.v('ta'); vRS2 = self.v('rs2', 2); vAD = self.V.alloc('ad', 6, 1)
        F('s_mov_b32 s%d, 0x%x' % (sL2E, LOG2E))
        F('v_mov_b32 v%d, v%d' % (vRS2, vRS))
        F('s_mul_i32 s%d, s%d, %d' % (sT, sW, 32 * TSTR))
        F('s_add_u32 s%d, s%d, %d' % (sT, sT, L_B))
        F('v_mul_u32_u24 v%d, %d, v%d' % (vTA, TSTR, vT32))
        F('v_add_u32 v%d, s%d, v%d' % (vTA, sT, vTA))

        def pack(Q, dst, src, n, pk):
            for i in range(0, n, 2):
                if pk:
                    Q('v_pk_mul_f32 %s, %s, %s op_sel_hi:[1,0]' % (vr(src + i, 2), vr(src + i, 2), vr(vRS2, 2)))
                else:
                    Q('v_mul_f32 v%d, v%d, v%d' % (src + i, vRS, src + i))
                    Q('v_mul_f32 v%d, v%d, v%d' % (src + i + 1, vRS, src + i + 1))
            for i in range(0, n, 2):
                Q('v_cvt_pk_bf16_f32 v%d, v%d, v%d' % (dst + i // 2, src + i, src + i + 1))

        def softmax(Q, pq, out):
            mx, mn, sp, sn = vSM, vSM + 1, vSM + 2, vSM + 3
            ep, en = vKB, pq
            Q('v_max3_f32 v%d, v%d, v%d, v%d' % (mx, pq, pq + 1, pq + 2))
            Q('v_min3_f32 v%d, v%d, v%d, v%d' % (mn, pq, pq + 1, pq + 2))
            for i in (3, 5, 7):
                Q('v_max3_f32 v%d, v%d, v%d, v%d' % (mx, mx, pq + i, pq + i + 1))
                Q('v_min3_f32 v%d, v%d, v%d, v%d' % (mn, mn, pq + i, pq + i + 1))
            Q('v_max_f32 v%d, v%d, v%d' % (mx, mx, pq + 9))
            Q('v_min_f32 v%d, v%d, v%d' % (mn, mn, pq + 9))
            Q('v_mov_b32 v%d, v%d' % (sp, mx))
            Q('v_mov_b32 v%d, v%d' % (sn, mn))
            Q('s_nop 0')
            Q('v_permlane32_swap_b32 v%d, v%d' % (mx, sp))
            Q('v_permlane32_swap_b32 v%d, v%d' % (mn, sn))
            Q('v_max_f32 v%d, v%d, v%d' % (mx, mx, sp))
            Q('v_min_f32 v%d, v%d, v%d' % (mn, mn, sn))
            Q('v_mul_f32 v%d, s%d, v%d' % (mx, sL2E, mx))
            Q('v_mul_f32 v%d, s%d, v%d' % (mn, sL2E, mn))
            for i in range(10):
                Q('v_fma_f32 v%d, v%d, s%d, -v%d' % (ep + i, pq + i, sL2E, mx))
                Q('v_fma_f32 v%d, -v%d, s%d, v%d' % (en + i, pq + i, sL2E, mn))
            for i in range(10):
                Q('v_exp_f32 v%d, v%d' % (ep + i, ep + i))
                Q('v_exp_f32 v%d, v%d' % (en + i, en + i))
            Q('v_add_f32 v%d, v%d, v%d' % (sp, ep, ep + 1))
            Q('v_add_f32 v%d, v%d, v%d' % (sn, en, en + 1))
            for i in range(2, 10):
                Q('v_add_f32 v%d, v%d, v%d' % (sp, sp, ep + i))
                Q('v_add_f32 v%d, v%d, v%d' % (sn, sn, en + i))
            Q('v_mov_b32 v%d, v%d' % (mx, sp))
            Q('v_mov_b32 v%d, v%d' % (mn, sn))
            Q('s_nop 0')
            Q('v_permlane32_swap_b32 v%d, v%d' % (sp, mx))
            Q('v_permlane32_swap_b32 v%d, v%d' % (sn, mn))
            Q('v_add_f32 v%d, v%d, v%d' % (sp, sp, mx))
            Q('v_add_f32 v%d, v%d, v%d' % (sn, sn, mn))
            Q('v_rcp_f32 v%d, v%d' % (sp, sp))
            Q('v_rcp_f32 v%d, v%d' % (sn, sn))
            for i in range(10):
                Q('v_mul_f32 v%d, v%d, v%d' % (ep + i, sp, ep + i))
                Q('v_mul_f32 v%d, v%d, v%d' % (en + i, sn, en + i))
            for i in range(4):
                Q('v_cvt_pk_bf16_f32 v%d, v%d, v%d' % (out + i, ep + 2 * i, ep + 2 * i + 1))
                Q('v_cvt_pk_bf16_f32 v%d, v%d, v%d' % (out + 4 + i, en + 2 * i, en + 2 * i + 1))
            Q('v_cvt_pk_bf16_f32 v%d, v%d, v%d' % (out + 8, ep + 8, ep + 9))
            Q('v_cvt_pk_bf16_f32 v%d, v%d, v%d' % (out + 9, en + 8, en + 9))

        def phi_pre(Q, vPQ, wins, pk, needs):
            for wi, (src, n) in enumerate(wins):
                if needs[wi]:
                    Q.need(needs[wi])
                pack(Q, vKB + 4 * wi, src, n, pk)
                for i in range(n // 2, 4):
                    Q('v_mov_b32 v%d, 0' % (vKB + 4 * wi + i))
                if wi:
                    hh = wi - 1
                    for win in range(2):
                        c = '0' if win == 0 else vr(vPQ + 16 * hh, 16)
                        Q('v_mfma_f32_32x32x16_bf16 %s, %s, %s, %s' %
                          (vr(vPQ + 16 * hh, 16), vr(vWP + 8 * hh + 4 * win, 4), vr(vKB + 4 * (hh + win), 4), c))

        vPQ = vH
        phi_pre(F, vPQ, [(vQ, 8), (vQ + 8, 8), (vQ + 16, 4)], False, ['T0', None, 'T1'])
        F.wait_vm('hst')
        self.flag_store(F, vF); F.items[-1].gap = 10
        F('v_lshl_add_u32 v%d, v%d, 3, v%d' % (vSM + 4, vHF, vTA))
        for hh in range(2):
            softmax(F, vPQ + 16 * hh, vPH + 12 * hh)
            F.need('BX2')
            for i in range(5):
                F('ds_write_b64 v%d, %s offset:%d' % (vSM + 4, vr(vPH + 12 * hh + 2 * i, 2), hh * 80 + 16 * i))
            if hh == O.get('fhi', 1):
                self.poll_issue(F, vPL, 1, vPA, 'fh'); F.items[-1].gap = 10
        vVA = vAD
        deltas = {16: vVA, 32: vVA + 1, -8: vVA + 2, 8: vVA + 3}
        for dl, rg in deltas.items():
            F('v_mad_i32_i24 v%d, v%d, %d, v%d' % (rg, vHF, dl, vTA))
        vw = [(10, 0, 16), (12, 8, 16), (14, 32, 32), (16, 80, -8), (18, 88, 8)]
        for n, (q, off, dl) in enumerate(vw):
            if n == 3:
                F.need('T2')
            src = vQ + 16 * (q >> 3) + 4 * ((q & 7) >> 1)
            pack(F, vKB + 2 * n, src, 4, False)
            F('ds_write_b64 v%d, %s offset:%d' % (deltas[dl], vr(vKB + 2 * n, 2), 160 + off))
        F('v_mov_b32 v%d, 0x3f80' % (vKB + 10))
        F('v_mov_b32 v%d, 0' % (vKB + 11))
        for hh in range(2):
            F('ds_write_b64 v%d, %s offset:%d' % (deltas[8], vr(vKB + 10, 2), 160 + 64 * hh + 40))
        vKA = vAD + 4; vKV = vAD + 5
        F('v_lshl_add_u32 v%d, v%d, 3, v%d' % (t1, vHF, vR4))
        F('v_mul_u32_u24 v%d, %d, v%d' % (t1, TSTR, t1))
        F('v_and_b32 v%d, 1, v%d' % (t2, vG))
        F('v_lshl_add_u32 v%d, v%d, 5, v%d' % (t1, t2, t1))
        F('v_lshl_add_u32 v%d, v%d, 3, v%d' % (t1, vC4, t1))
        sHH = self.s('hh')
        F('s_lshr_b32 s%d, s%d, 1' % (sHH, sW))
        F('s_mul_i32 s%d, s%d, 80' % (sT2, sHH))
        F('s_bitcmp1_b32 s%d, 0' % sW)
        F('s_cselect_b32 s%d, %d, %d' % (sM, 64, 0))
        F('s_add_u32 s%d, s%d, s%d' % (sT2, sT2, sM))
        F('s_add_u32 s%d, s%d, %d' % (sT2, sT2, L_B))
        F('v_add_u32 v%d, s%d, v%d' % (vKA, sT2, t1))
        F('s_lshl_b32 s%d, s%d, 6' % (sT2, sHH))
        F('s_add_u32 s%d, s%d, %d' % (sT2, sT2, L_B + 160))
        F('v_add_u32 v%d, s%d, v%d' % (vKV, sT2, t1))
        F.mark('kvw')
        self.poll_check(F, vPL, 1, vPA, 3)
        F.mark('fhok')
        KV = Prog()
        KV.need('kvw')
        KV.wait_lgkm()
        KV('s_barrier')
        for ks in range(8):
            for base, o in ((vKA, 0), (vKV, 4)):
                for run in range(2):
                    KV('ds_read_b64_tr_b16 %s, v%d offset:%d' % (ar(8 * ks + o + 2 * run, 2), base, (16 * ks + 4 * run) * TSTR))
        idx = [i for i, it in enumerate(M.items) if it.kind == 'mfma']
        back = O.get('kvback', 8)
        tail = M.items[idx[-back] + 1:]
        M.items = M.items[:idx[-back] + 1] + KV.items[:3]
        rest = KV.items[3:]
        per = -(-len(rest) // back)
        M.items += rest[:per]; rest = rest[per:]
        for it in tail:
            M.items.append(it)
            if it.kind == 'mfma':
                M.items += rest[:per]; rest = rest[per:]
        M.items += rest
        vKD = vQ
        for ks in range(8):
            c = '0' if ks == 0 else vr(vKD, 16)
            M('v_mfma_f32_32x32x16_bf16 %s, %s, %s, %s' % (vr(vKD, 16), ar(8 * ks, 4), ar(8 * ks + 4, 4), c))
        M.mark('kvd')
        self.stamp(M)

        vO2 = self.ctx['vW2']
        accH = lambda v, ft: ar(20 * v + 4 * ft, 4) if v < 3 else vr(vO2 + 4 * ft, 4)
        slots = [[ar(b, 4), None, True] for b in range(160, 256, 4)]
        slots += [[vr(vH + 4 * i, 4), 'kvw', True] for i in range(12)]
        slots += [[ar(b, 4), 'T3', True] for b in range(120, 160, 4)]
        slots += [[ar(b, 4), 'T3', False] for b in range(64, 120, 4)]
        order = []
        NPRE = O.get('npre', 4)
        for st in range(NPRE):
            order += [('W', st, i) for i in range(5)]
        for st in range(NPRE):
            order += [('A', st, i) for i in range(4)]
        for st in range(NPRE, 12):
            order += [('W', st, i) for i in range(5)] + [('A', st, i) for i in range(4)]
        for st in range(12, 17):
            order += [('W', st, i) for i in range(5)]
        for v in range(4):
            order += [('A', st, v) for st in range(12, 17)]
        mf = [(st, v, ft) for st in range(12) for v in range(4) for ft in range(5)]
        mf += [(st, v, ft) for v in range(4) for st in range(12, 17) for ft in range(5)]
        last = {}
        for i, (st, v, ft) in enumerate(mf):
            last[('W', st, ft)] = i; last[('A', st, v)] = i
        rank = {None: -3, 'kvw': -2, 'T3': -1}
        freeat = [rank[s[1]] for s in slots]
        where = {}
        sbase = None
        L.need('f2ok')
        for ld in order:
            k, st, i = ld
            cand = [x for x in range(len(slots)) if st < 12 or slots[x][2]]
            x = min(cand, key=lambda x: (freeat[x], slots[x][2] and st >= 6, x))
            if freeat[x] >= 0:
                L.need('m%d' % freeat[x])
            elif slots[x][1]:
                L.need(slots[x][1])
            if k == 'A' and st == 0 and i == 0:
                L.need('fhok')
            if k == 'A' and st == 12 and i == 0:
                L.need('fook')
            freeat[x] = last[ld]
            where[ld] = slots[x][0]
            o = st >= 12
            if sbase != (k, st):
                if k == 'W':
                    L('s_add_u32 s%d, s%d, %d' % (sLS, sWB[o], W2_OFF + (48 + st - 12 if o else st) * 5120))
                else:
                    L('s_add_u32 s%d, s%d, %d' % (sLS, sAB[o], HO_OFF + (48 + st - 12 if o else st) * 4096))
                sbase = (k, st)
            if k == 'W':
                L('buffer_load_dwordx4 %s, v%d, %s, s%d offen offset:%d sc1' % (where[ld], vL16 if i < 4 else v4k, sr(sWS, 4), sLS, (i & 3) * 1024))
            else:
                L('buffer_load_dwordx4 %s, v%d, %s, s%d offen sc1' % (where[ld], vAV + i, sr(sWS, 4), sLS))
            L.mark('l%s%d_%d' % ld)
        self.p3 = dict(mf=mf, where=where)
        E = dict(locals()); E.pop('self')
        self.phase3(E)
        return self.finish()


from gen2c import phase3
Gen2.phase3 = phase3


def generate(ts=0, opts=None):
    g = Gen2(ts=ts, opts=opts)
    lines = g.build()
    return HEADER % (LDS_BYTES, NAME, NAME, NAME) + '\n'.join(lines) + '\n' + '\n'.join(g.ool) + FOOTER % NAME


if __name__ == '__main__':
    import argparse
    ap = argparse.ArgumentParser()
    ap.add_argument('-o', default='cdna_kernels/%s.s' % NAME)
    ap.add_argument('--ts', type=int, default=0)
    ap.add_argument('--check', action='store_true')
    ap.add_argument('--opt', action='append', default=[])
    a = ap.parse_args()
    asmgen.CHECK = a.check
    opts = {k: int(v) for k, v in (x.split('=') for x in a.opt)}
    open(a.o, 'w').write(generate(ts=a.ts, opts=opts))
    print('wrote', a.o)
```

```python
import sys, os
sys.path.insert(0, os.path.dirname(os.path.abspath(__file__)))
from asmgen import Prog, interleave, finalize

NAME = 'recurrent_scan__linear_kernel_hedgehog__dense_activation_silu__prompt'

WQ_OFF = 0
WQ_J = 4 * 41 * 1024
W2_OFF = WQ_OFF + 16 * WQ_J
W2_C = 68 * 5120
HO_OFF = W2_OFF + 8 * W2_C
HO_R = 68 * 4096
KV_OFF = HO_OFF + 32 * HO_R
FL_OFF = KV_OFF + 16 * 2 * 16 * 1792
F1_OFF = FL_OFF
F2_OFF = F1_OFF + 1024
FH_OFF = F2_OFF + 4096
FO_OFF = FH_OFF + 4096
FK_OFF = FO_OFF + 4096
ST_OFF = FK_OFF + 4096
TS_OFF = ST_OFF + 16384
WS_SIZE = TS_OFF + 256 * 4 * 32 * 8
OOB = 0x80000000
SOOB = 0x40000000

NSLOT = 5
L_X = 0
L_W1 = 81920
L_EU = 143360
L_WT = 155648
L_CT = 159744
L_DUMMY = 161280
TILE = 41 * 1024
L_A, L_B, L_C = 0, TILE, 2 * TILE
L_ST = 3 * TILE
TSTR = 328
L_KVS = L_C
L_EX1 = 0
L_EX2 = 61440
LDS_BYTES = 163840

LOG2E = 0x3fb8aa3b


class Regs:
    def __init__(self, kind, n):
        self.kind = kind
        self.free = [True] * n
        self.names = {}

    def alloc(self, name, n=1, align=None):
        if align is None:
            align = 1 if n == 1 else (2 if n < 4 else 4)
        for b in range(0, len(self.free) - n + 1, align):
            if all(self.free[b:b + n]):
                for i in range(b, b + n):
                    self.free[i] = False
                self.names[name] = (b, n)
                return b
        raise RuntimeError('out of %s regs for %s: %s' % (self.kind, name, sorted(self.names.items(), key=lambda x: x[1])))

    def at(self, name, b, n):
        assert all(self.free[b:b + n]), (name, b, n)
        for i in range(b, b + n):
            self.free[i] = False
        self.names[name] = (b, n)
        return b

    def release(self, *names):
        for name in names:
            b, n = self.names.pop(name)
            for i in range(b, b + n):
                self.free[i] = True


def vr(b, n=1, k='v'):
    return '%s%d' % (k, b) if n == 1 else '%s[%d:%d]' % (k, b, b + n - 1)


def ar(b, n=1):
    return vr(b, n, 'a')


def sr(b, n=1):
    return vr(b, n, 's')


class Gen:
    def __init__(self, ts=False, stop=None, opts=None):
        self.ts = ts
        self.stop = stop
        self.o = opts or {}
        self.V = Regs('v', 256)
        self.S = Regs('s', 100)
        self.P = Prog()
        self.ool = []
        self.nts = 0
        self.nlab = 0

    def v(self, name, n=1):
        return self.V.alloc(name, n)

    def s(self, name, n=1):
        return self.S.alloc(name, n, align=(1 if n == 1 else (2 if n == 2 else 4)))

    def stamp(self, P=None, grp=0):
        if not self.ts or (grp != 9 and grp != self.o.get('tsg', 0)):
            return
        P = P or self.P
        b = self.sTS + 2 * self.nts
        P('%s %s' % ('s_memtime' if self.ts == 2 else 's_memrealtime', sr(b, 2)))
        self.nts += 1

    def srd_load(self, name, off):
        b = self.s(name, 4)
        self.P('s_load_dwordx2 %s, s[0:1], %d' % (sr(b, 2), off))
        return b

    def srd(self, b, size):
        self.P('s_and_b32 s%d, s%d, 0xffff' % (b + 1, b + 1))
        self.P('s_mov_b32 s%d, 0x%x' % (b + 2, size))
        self.P('s_mov_b32 s%d, 0x20000' % (b + 3))
        return b

    def poll_issue(self, P, vdst, n, vaddr, tag):
        op = {1: 'dword', 4: 'dwordx4'}[n]
        P('buffer_load_%s %s, v%d, %s, 0 offen sc1' % (op, vr(vdst, n), vaddr, sr(self.sWS, 4)), tag)

    def poll_check(self, P, vdst, n, vaddr, code):
        self.nlab += 1
        L = 'Lpoll%d' % self.nlab
        t = self.vT0
        cmp_ = []
        if n == 1:
            cmp_.append('v_cmp_ne_u32 vcc, s%d, v%d' % (self.sNONCE, vdst))
        else:
            for i in range(4):
                cmp_.append('v_xor_b32 v%d, s%d, v%d' % (vdst + i, self.sNONCE, vdst + i))
            cmp_.append('v_or3_b32 v%d, v%d, v%d, v%d' % (t, vdst, vdst + 1, vdst + 2))
            cmp_.append('v_or_b32 v%d, v%d, v%d' % (t, t, vdst + 3))
            cmp_.append('v_cmp_ne_u32 vcc, 0, v%d' % t)
        for c in cmp_:
            P(c)
        P('s_cbranch_vccnz %s' % L)
        P('%s_ret:' % L)
        op = {1: 'dword', 4: 'dwordx4'}[n]
        txt = ['%s:' % L, '    s_mov_b32 s%d, 0x20000' % self.sCNT, '%s_loop:' % L,
               '    s_nop 7',
               '    buffer_load_%s %s, v%d, %s, 0 offen sc1' % (op, vr(vdst, n), vaddr, sr(self.sWS, 4)),
               '    s_waitcnt vmcnt(0)']
        txt += ['    ' + c for c in cmp_]
        txt += ['    s_nop 7', '    s_cbranch_vccz %s_done' % L,
                '    s_sub_u32 s%d, s%d, 1' % (self.sCNT, self.sCNT),
                '    s_cmp_lg_u32 s%d, 0' % self.sCNT,
                '    s_cbranch_scc1 %s_loop' % L,
                '%s_done:' % L, '    s_nop 7', '    s_branch %s_ret' % L]
        self.ool.append('\n'.join(txt))

    def flag_store(self, P, vaddr):
        P('buffer_store_dword v%d, v%d, %s, 0 offen sc1' % (self.vNONCE, vaddr, sr(self.sWS, 4)), 'flag')

    def xswap_sum(self, P, a, t, op='v_add_f32', swap='v_permlane32_swap_b32'):
        P('v_mov_b32 v%d, v%d' % (t, a))
        P('%s v%d, v%d' % (swap, a, t))
        P('%s v%d, v%d, v%d' % (op, a, a, t))

    def build(self):
        P = self.P
        S, V = self.S, self.V
        S.at('karg', 0, 2)
        S.at('wg', 2, 1)
        V.at('tid', 0, 1)
        sWG = 2
        P('s_cmp_ge_u32 s2, 256')
        P('s_cbranch_scc1 Lend')
        sX = self.srd_load('X', 0); sWQ = self.srd_load('WQKV', 8); sW1 = self.srd_load('W1', 40)
        sWS = self.sWS = self.srd_load('WS', 72)
        sWP = self.srd_load('WPHI', 16); sDB = self.srd_load('DBG', 64); sW2 = self.srd_load('W2', 48)
        sWO = self.srd_load('WO', 24); sOUT = self.srd_load('OUT', 56)
        if self.ts:
            self.sTS = self.s('ts', 36)
        self.stamp()
        sPC = self.s('pc', 2)
        P('s_getpc_b64 %s' % sr(sPC, 2))
        vLane = self.v('lane')
        vL16 = self.v('l16')
        vJunk = self.v('junk', 4)
        t0 = self.vT0 = self.v('t0')
        t1 = self.v('t1'); t2 = self.v('t2'); t3 = self.v('t3')
        sL = self.s('l'); sW = self.s('w'); sT = self.s('st'); sT2 = self.s('st2')
        P('s_lshr_b32 s%d, s2, 3' % sL)
        P('s_lshl_b32 s%d, s%d, 12' % (sT, sL))
        P('v_lshlrev_b32 v%d, 4, v0' % t0)
        P('v_add_u32 v%d, s%d, v%d' % (t0, sT, t0))
        sCS = self.s('codesz')
        P('s_mov_b32 s%d, Lcode_end-Lcode_pc-16' % sCS)
        P('v_min_u32 v%d, s%d, v%d' % (t0, sCS, t0))
        P('global_load_dwordx4 %s, v%d, %s' % (vr(vJunk, 4), t0, sr(sPC, 2)), 'pref')
        S.release('codesz')
        P('v_and_b32 v%d, 63, v0' % vLane)
        P('v_lshrrev_b32 v%d, 6, v0' % t1)
        P('v_lshlrev_b32 v%d, 4, v%d' % (vL16, vLane))
        P('v_readfirstlane_b32 s%d, v%d' % (sW, t1))
        sR = self.s('r'); sJ = self.s('j'); sR3 = self.s('R3'); sC3 = self.s('c3')
        P('s_bfe_u32 s%d, s2, 0x20001' % sT)
        P('s_lshr_b32 s%d, s%d, 3' % (sT2, sL))
        P('s_lshl2_add_u32 s%d, s%d, s%d' % (sR, sT, sT2))
        P('s_lshr_b32 s%d, s%d, 2' % (sT2, sL))
        P('s_lshl3_add_u32 s%d, s%d, s%d' % (sR3, sT, sT2))
        P('s_and_b32 s%d, s2, 1' % sT)
        P('s_and_b32 s%d, s%d, 7' % (sT2, sL))
        P('s_lshl3_add_u32 s%d, s%d, s%d' % (sJ, sT, sT2))
        P('s_and_b32 s%d, s%d, 3' % (sT2, sL))
        P('s_lshl2_add_u32 s%d, s%d, s%d' % (sC3, sT, sT2))
        self.sW, self.sR, self.sJ, self.sR3, self.sC3, self.sT, self.sT2 = sW, sR, sJ, sR3, sC3, sT, sT2
        self.vLane, self.vL16 = vLane, vL16

        sKQ = self.s('kq'); sLn = self.s('Ln')
        P('s_and_b32 s%d, s2, 7' % sKQ)
        vEU = self.v('eu')
        P('v_lshrrev_b32 v%d, 3, v%d' % (t1, vLane))
        P('v_and_b32 v%d, 7, v%d' % (t2, vLane))
        P('s_mul_i32 s%d, s%d, %d' % (sT, sKQ, 80 * 3840))
        P('s_lshl_b32 s%d, s%d, 7' % (sT2, sL))
        P('s_add_u32 s%d, s%d, s%d' % (sT, sT, sT2))
        P('s_cmp_lt_u32 s2, 240')
        P('s_cselect_b32 s%d, s%d, 0x%x' % (sT, sT, OOB))
        P('v_mul_u32_u24 v%d, 3840, v%d' % (vEU, t1))
        P('v_lshl_add_u32 v%d, v%d, 4, v%d' % (vEU, t2, vEU))
        P('v_add_u32 v%d, s%d, v%d' % (vEU, sT, vEU))
        vX = self.v('xd', 4)
        P('v_lshrrev_b32 v%d, 1, v%d' % (t3, t1))
        P('v_xor_b32 v%d, v%d, v%d' % (t3, t3, t2))
        P('s_lshl_b32 s%d, s%d, 2' % (sT, sR))
        P('s_add_u32 s%d, s%d, s%d' % (sT, sT, sW))
        P('s_mul_i32 s%d, s%d, %d' % (sT, sT, 32 * 1280))
        P('v_mul_u32_u24 v%d, 1280, v%d' % (vX, t1))
        P('v_lshl_add_u32 v%d, v%d, 4, v%d' % (vX, t3, vX))
        P('v_add_u32 v%d, s%d, v%d' % (vX, sT, vX))
        P('v_xor_b32 v%d, 64, v%d' % (vX + 1, vX))
        P('v_add_u32 v%d, %d, v%d' % (vX + 1, 8 * 1280, vX + 1))
        P('v_add_u32 v%d, %d, v%d' % (vX + 2, 16 * 1280, vX))
        P('v_add_u32 v%d, %d, v%d' % (vX + 3, 16 * 1280, vX + 1))
        vW1 = self.v('w1d', 3)
        P('s_mul_i32 s%d, s%d, 192' % (sT, sW))
        P('s_mul_i32 s%d, s%d, 192' % (sT2, sJ))
        for i in range(3):
            P('v_add_u32 v%d, s%d, v%d' % (t1, sT, vLane))
            if i:
                P('v_add_u32 v%d, %d, v%d' % (t1, 64 * i, t1))
            P('v_mul_u32_u24 v%d, 43691, v%d' % (t2, t1))
            P('v_lshrrev_b32 v%d, 19, v%d' % (t2, t2))
            P('v_mul_u32_u24 v%d, 12, v%d' % (t3, t2))
            P('v_sub_u32 v%d, v%d, v%d' % (t3, t1, t3))
            P('v_mul_u32_u24 v%d, 3072, v%d' % (t2, t2))
            P('v_lshl_add_u32 v%d, v%d, 4, v%d' % (t2, t3, t2))
            P('v_add_u32 v%d, s%d, v%d' % (vW1 + i, sT2, t2))
        P.wait_lgkm()
        self.srd(sWQ, 640 * 3840)
        self.srd(sX, 2048 * 1280)
        self.srd(sW1, 640 * 3072)
        sM = self.s('m')
        sSO = self.s('so')
        P('s_lshl_b32 s%d, s%d, 10' % (sM, sW))
        P('s_mul_i32 s%d, s%d, %d' % (sSO, sW, 8 * 3840))
        for i in range(3):
            P('s_add_u32 m0, s%d, %d' % (sM, L_EU + 4096 * i))
            if i == 2:
                P('s_cmp_lt_u32 s%d, 2' % sW)
                P('s_cselect_b32 s%d, s%d, 0x%x' % (sSO, sSO, SOOB))
            P('buffer_load_dwordx4 v%d, %s, s%d offen lds' % (vEU, sr(sWQ, 4), sSO), 'eu')
            if i < 2:
                P('s_add_u32 s%d, s%d, %d' % (sSO, sSO, 32 * 3840))
        V.release('eu')
        sMX = self.s('mx'); sMW = self.s('mw')
        P('s_mul_i32 s%d, s%d, %d' % (sMX, sW, NSLOT * 4096))
        P('s_mul_i32 s%d, s%d, 3072' % (sMW, sW))

        def stage_dma(s):
            Q = Prog()
            slot = s % NSLOT
            Q('s_movk_i32 s%d, %d' % (sSO, s * 128))
            for u in range(4):
                Q('s_add_u32 m0, s%d, %d' % (sMX, L_X + slot * 4096 + u * 1024))
                Q('buffer_load_dwordx4 v%d, %s, s%d offen lds' % (vX + u, sr(sX, 4), sSO), 'st%d' % s)
            Q('s_mov_b32 s%d, %d' % (sSO, s * 64 * 3072))
            for i in range(3):
                Q('s_add_u32 m0, s%d, %d' % (sMW, L_W1 + slot * 12288 + i * 1024))
                Q('buffer_load_dwordx4 v%d, %s, s%d offen lds' % (vW1 + i, sr(sW1, 4), sSO), 'st%d' % s)
            return Q
        for s in range(NSLOT - 1):
            P.extend(stage_dma(s))
        self.stamp()
        self.srd(sWS, WS_SIZE)
        self.srd(sWP, 32 * 800)
        self.srd(sDB, 256)
        self.srd(sW2, 1536 * 1280)
        self.srd(sWO, 640 * 1280)
        self.srd(sOUT, 2048 * 1280)
        S.release('WQKV')
        self.sNONCE = self.s('nonce'); self.sCNT = self.s('cnt')
        self.vNONCE = self.v('nonce')
        vF = self.v('fa')
        sRT = self.s('rt', 2)
        P('s_memrealtime %s' % sr(sRT, 2))
        vWL = self.v('wl', 2)
        P('s_mul_i32 s%d, s%d, 1600' % (sT, sJ))
        P('v_lshlrev_b32 v%d, 2, v0' % t1)
        P('buffer_load_dword v%d, v%d, %s, s%d offen' % (vWL, t1, sr(sWP, 4), sT))
        P('buffer_load_dword v%d, v%d, %s, s%d offen offset:800' % (vWL + 1, t1, sr(sWP, 4), sT))
        P('s_or_b32 s%d, s%d, 1' % (sRT, sRT))
        P('v_mov_b32 v%d, s%d' % (t2, sRT))
        P('s_lshl_b32 s%d, s2, 10' % sT)
        P('v_add_u32 v%d, s%d, v0' % (t3, sT))
        P('v_lshlrev_b32 v%d, 8, v%d' % (t3, t3))
        P('buffer_store_dword v%d, v%d, %s, 0 offen sc1' % (t2, t3, sr(sDB, 4)), 'nonce')
        S.release('rt')
        vZero = self.v('zero')
        P('v_mov_b32 v%d, 0' % vZero)
        P('buffer_load_dword v%d, v%d, %s, 0 offen sc1' % (self.vNONCE, vZero, sr(sDB, 4)), 'noncel')
        vZ4 = self.v('z4', 4)
        for i in range(4):
            P('v_mov_b32 v%d, 0' % (vZ4 + i))
        P('v_lshlrev_b32 v%d, 4, v0' % t1)
        P('v_add_u32 v%d, %d, v%d' % (t1, L_WT, t1))
        P('ds_write_b128 v%d, %s' % (t1, vr(vZ4, 4)))
        V.release('z4')
        vG = self.v('g'); vR4 = self.v('r4'); vC4 = self.v('c4'); vHF = self.v('hf'); vT32 = self.v('t32')
        P('v_lshrrev_b32 v%d, 4, v%d' % (vG, vLane))
        P('v_bfe_u32 v%d, v%d, 2, 2' % (vR4, vLane))
        P('v_and_b32 v%d, 3, v%d' % (vC4, vLane))
        P('v_lshrrev_b32 v%d, 5, v%d' % (vHF, vLane))
        P('v_and_b32 v%d, 31, v%d' % (vT32, vLane))
        self.vG, self.vR4, self.vC4, self.vHF, self.vT32 = vG, vR4, vC4, vHF, vT32
        vSEL = self.v('sel', 4)
        sONE = self.s('ones')
        P('s_mov_b32 s%d, 0x3f803f80' % sONE)
        P('v_xor_b32 v%d, v%d, v%d' % (t1, vG, vR4))
        P('v_and_b32 v%d, 1, v%d' % (t1, t1))
        P('v_cmp_eq_u32 vcc, 0, v%d' % t1)
        P('v_mov_b32 v%d, s%d' % (t2, sONE))
        for i in range(4):
            P('v_cndmask_b32 v%d, 0, v%d, vcc' % (vSEL + i, t2))
        vXR = self.v('xr', 4)
        P('v_bfe_u32 v%d, v%d, 1, 3' % (t1, vLane))
        P('v_xor_b32 v%d, v%d, v%d' % (t1, t1, vHF))
        P('v_lshlrev_b32 v%d, 4, v%d' % (t1, t1))
        P('v_lshl_add_u32 v%d, v%d, 7, v%d' % (t1, vT32, t1))
        P('v_add_u32 v%d, s%d, v%d' % (vXR, sMX, t1))
        for u in range(1, 4):
            P('v_xor_b32 v%d, %d, v%d' % (vXR + u, 32 * u, vXR))
        vWR = self.v('wr')
        P('v_lshl_add_u32 v%d, v%d, 3, v%d' % (t1, vHF, vR4))
        P('v_mul_u32_u24 v%d, 192, v%d' % (t1, t1))
        P('v_and_b32 v%d, 1, v%d' % (t2, vG))
        P('v_lshl_add_u32 v%d, v%d, 5, v%d' % (t1, t2, t1))
        P('v_lshl_add_u32 v%d, v%d, 3, v%d' % (t1, vC4, t1))
        P('v_add_u32 v%d, %d, v%d' % (vWR, L_W1, t1))
        vES = self.v('es'); vES2 = self.v('es2'); vEC = self.v('ec'); vER = self.v('er')
        sSec = self.s('sec')
        P('s_mul_i32 s%d, s%d, 205' % (sSec, sL))
        P('s_lshr_b32 s%d, s%d, 11' % (sSec, sSec))
        P('s_mul_i32 s%d, s%d, 10' % (sT, sSec))
        P('s_sub_u32 s%d, s%d, s%d' % (sT, sL, sT))
        P('s_lshl_b32 s%d, s%d, 6' % (sT, sT))
        P('s_lshl4_add_u32 s%d, s%d, s%d' % (sT, sW, sT))
        P('s_mul_i32 s%d, s%d, 40' % (sT2, sSec))
        P('s_sub_u32 s%d, s%d, 40' % (sT2, sT2))
        P('s_cmp_eq_u32 s%d, 0' % sSec)
        P('s_cselect_b32 s%d, 80, s%d' % (sT2, sT2))
        P('v_and_b32 v%d, 15, v%d' % (t1, vLane))
        P('v_add_u32 v%d, s%d, v%d' % (t1, sT, t1))
        P('v_mul_u32_u24 v%d, 1639, v%d' % (t2, t1))
        P('v_lshrrev_b32 v%d, 16, v%d' % (t2, t2))
        P('v_mul_u32_u24 v%d, 40, v%d' % (t3, t2))
        P('v_sub_u32 v%d, v%d, v%d' % (t1, t1, t3))
        P('v_add_u32 v%d, s%d, v%d' % (t1, sT2, t1))
        P('v_mul_u32_u24 v%d, %d, v%d' % (t2, WQ_J, t2))
        P('v_lshrrev_b32 v%d, 5, v%d' % (t3, t1))
        P('v_mul_u32_u24 v%d, %d, v%d' % (t3, TILE, t3))
        P('v_add_u32 v%d, v%d, v%d' % (t2, t2, t3))
        P('v_and_b32 v%d, 31, v%d' % (t1, t1))
        P('v_lshl_add_u32 v%d, v%d, 4, v%d' % (t2, t1, t2))
        P('s_cmp_lt_u32 s2, 240')
        P('s_cselect_b32 s%d, %d, 0x%x' % (sT, WQ_OFF, OOB))
        P('v_add_u32 v%d, s%d, v%d' % (t2, sT, t2))
        P('s_lshr_b32 s%d, s%d, 2' % (sT, sKQ))
        P('s_lshl_b32 s%d, s%d, 9' % (sT, sT))
        P('s_and_b32 s%d, s%d, 3' % (sT2, sKQ))
        P('s_lshl2_add_u32 s%d, s%d, s%d' % (sT, sT2, sT))
        P('s_add_u32 s%d, s%d, %d' % (sT, sT, 40 * 1024))
        P('v_add_u32 v%d, s%d, v%d' % (vEC, sT, t2))
        P('v_cmp_gt_u32 vcc, 16, v%d' % vLane)
        P('v_mov_b32 v%d, 0x%x' % (t3, OOB))
        P('v_cndmask_b32 v%d, v%d, v%d, vcc' % (vEC, t3, vEC))
        P('s_mul_i32 s%d, s%d, 5120' % (sT, sKQ))
        P('v_and_b32 v%d, 1, v%d' % (t1, vG))
        P('v_lshl_add_u32 v%d, v%d, 9, v%d' % (t2, t1, t2))
        P('v_lshl_add_u32 v%d, v%d, 10, v%d' % (t2, vHF, t2))
        P('v_add_u32 v%d, s%d, v%d' % (vES, sT, t2))
        P('v_cmp_gt_u32 vcc, 32, v%d' % vLane)
        P('v_add_u32 v%d, 4096, v%d' % (vES2, vES))
        P('v_cndmask_b32 v%d, v%d, v%d, vcc' % (vES2, t3, vES2))
        P('v_lshl_add_u32 v%d, v%d, 3, v%d' % (t1, vG, vR4))
        P('v_lshlrev_b32 v%d, 7, v%d' % (t1, t1))
        P('v_lshl_add_u32 v%d, v%d, 3, v%d' % (t1, vC4, t1))
        P('s_lshl_b32 s%d, s%d, 5' % (sT, sW))
        P('s_add_u32 s%d, s%d, %d' % (sT, sT, L_EU))
        P('v_add_u32 v%d, s%d, v%d' % (vER, sT, t1))
        S.release('sec', 'kq', 'Ln')
        vWA = self.v('wa')
        P('v_mul_u32_u24 v%d, 6554, v0' % t1)
        P('v_lshrrev_b32 v%d, 16, v%d' % (t1, t1))
        P('v_mul_u32_u24 v%d, 10, v%d' % (t2, t1))
        P('v_sub_u32 v%d, v0, v%d' % (t2, t2))
        P('v_cmp_le_u32 vcc, 5, v%d' % t2)
        P('v_cndmask_b32 v%d, 0, 1, vcc' % t3)
        P('v_lshlrev_b32 v%d, 6, v%d' % (t1, t1))
        P('v_lshl_add_u32 v%d, v%d, 3, v%d' % (t1, t3, t1))
        P('v_mul_u32_u24 v%d, 5, v%d' % (t3, t3))
        P('v_sub_u32 v%d, v%d, v%d' % (t2, t2, t3))
        P('v_lshrrev_b32 v%d, 1, v%d' % (t3, t2))
        P('v_lshl_add_u32 v%d, v%d, 4, v%d' % (t1, t3, t1))
        P('v_and_b32 v%d, 1, v%d' % (t2, t2))
        P('v_lshl_add_u32 v%d, v%d, 2, v%d' % (t1, t2, t1))
        P('v_add_u32 v%d, %d, v%d' % (t1, L_WT, t1))
        P('v_cmp_gt_u32 vcc, 200, v0')
        P('v_mov_b32 v%d, %d' % (t2, L_DUMMY - 2304))
        P('v_cndmask_b32 v%d, v%d, v%d, vcc' % (vWA, t2, t1))
        P('v_mov_b32 v%d, %d' % (t2, L_DUMMY))
        P('v_cndmask_b32 v%d, v%d, v%d, vcc' % (t1, t2, t1))
        P.wait_vm('eu')
        P.wait_lgkm()
        P('s_barrier')
        vE = self.v('e', 12)
        for p in range(3):
            for run in range(2):
                P('ds_read_b64_tr_b16 %s, v%d offset:%d' % (vr(vE + 4 * p + 2 * run, 2), vER, p * 4096 + run * 512))
        for p in range(3):
            a = vES if p < 2 else vES2
            P('buffer_store_dwordx4 %s, v%d, %s, 0 offen offset:%d sc1' %
              (vr(vE + 4 * p, 4), a, sr(sWS, 4), 2048 if p == 1 else 0), 'eus')
        P('v_mov_b32 v%d, 0' % t2)
        for i in range(12):
            P('v_dot2_f32_bf16 v%d, v%d, s%d, v%d' % (t2, vE + i, sONE, t2))
        self.xswap_sum(P, t2, t3)
        self.xswap_sum(P, t2, t3, swap='v_permlane16_swap_b32')
        P('v_cvt_pk_bf16_f32 v%d, v%d, v%d' % (t3, t2, t2))
        P('v_lshlrev_b32 v%d, 16, v%d' % (t3, t3))
        P('v_sub_f32 v%d, v%d, v%d' % (t3, t2, t3))
        P('v_cvt_pk_bf16_f32 v%d, v%d, v%d' % (t2, t2, t3))
        P('buffer_store_dword v%d, v%d, %s, 0 offen sc1' % (t2, vEC, sr(sWS, 4)), 'eus')
        V.release('e', 'es', 'es2', 'ec', 'er')
        P('ds_write_b32 v%d, v%d' % (t1, vWL))
        P('ds_write_b32 v%d, v%d offset:%d' % (vWA, vWL + 1, 2048 + 256))
        V.release('wl', 'wa')
        S.release('WPHI')
        self.stamp()

        vH = self.v('accH', 48)
        vWF = self.v('wf', 24)
        vXC = self.v('xc', 8)
        vCS = self.v('cs', 12)
        vSUM = self.v('sum', 4)
        vSS = self.v('ss', 2)
        vWP = self.v('wphi', 16)
        P('v_mov_b32 v%d, 0' % vSS)
        P('v_mov_b32 v%d, 0' % (vSS + 1))
        for i in range(12):
            P('v_mov_b32 v%d, 0' % (vCS + i))

        def rd_step(Q, s, u):
            slot = s % NSLOT
            ks = 4 * s + u
            b = ks & 1
            Q('ds_read_b128 %s, v%d offset:%d' % (ar(4 * ks, 4), vXR + u, slot * 4096))
            for T in range(3):
                for run in range(2):
                    Q('ds_read_b64_tr_b16 %s, v%d offset:%d' %
                      (vr(vWF + 12 * b + 4 * T + 2 * run, 2), vWR, slot * 12288 + (16 * u + 4 * run) * 192 + T * 64))
            Q('ds_read_b128 %s, v%d offset:%d' % (vr(vXC + 4 * b, 4), vXR + u, slot * 4096))

        for s in range(10):
            P.wait_vm('st%d' % s)
            P.wait_lgkm()
            P('s_barrier')
            if s == 0:
                P('v_lshl_add_u32 v%d, v%d, 2, v%d' % (t1, vHF, vR4))
                P('v_lshlrev_b32 v%d, 6, v%d' % (t1, t1))
                P('v_and_b32 v%d, 1, v%d' % (t2, vG))
                P('v_lshl_add_u32 v%d, v%d, 5, v%d' % (t1, t2, t1))
                P('v_lshl_add_u32 v%d, v%d, 3, v%d' % (t1, vC4, t1))
                P('v_add_u32 v%d, %d, v%d' % (t1, L_WT, t1))
                for hh in range(2):
                    for win in range(2):
                        for run in range(2):
                            P('ds_read_b64_tr_b16 %s, v%d offset:%d' %
                              (vr(vWP + 8 * hh + 4 * win + 2 * run, 2), t1, hh * 2048 + (16 * win + 8 * run) * 64))
            rd_step(P, s, 0)
            if s + NSLOT - 1 < 10:
                P.extend(stage_dma(s + NSLOT - 1))
            if s == 4:
                self.nonce_check(P, sDB, vZero)
                P('s_lshl_b32 s%d, s2, 2' % sT)
                P('s_add_u32 s%d, s%d, %d' % (sT, sT, F1_OFF))
                P('v_mov_b32 v%d, s%d' % (vF, sT))
                P('v_cmp_eq_u32 vcc, 0, v0')
                P('v_mov_b32 v%d, 0x%x' % (t1, OOB))
                P('v_cndmask_b32 v%d, v%d, v%d, vcc' % (vF, t1, vF))
                self.flag_store(P, vF)
            for u in range(4):
                ks = 4 * s + u
                b = ks & 1
                if u < 3:
                    rd_step(P, s, u + 1)
                for T in range(3):
                    c = '0' if ks == 0 else vr(vH + 16 * T, 16)
                    P('v_mfma_f32_32x32x16_bf16 %s, %s, %s, %s' %
                      (vr(vH + 16 * T, 16), vr(vWF + 12 * b + 4 * T, 4), ar(4 * ks, 4), c))
                c = '0' if ks == 0 else vr(vSUM, 4)
                P('v_mfma_f32_16x16x32_bf16 %s, %s, %s, %s' % (vr(vSUM, 4), vr(vSEL, 4), ar(4 * ks, 4), c))
                self.nlab += 1
                L = 'Lcs%d' % self.nlab
                P('s_cmp_lg_u32 s%d, %d' % (sW, u))
                P('s_cbranch_scc1 %s' % L)
                for T in range(3):
                    P('v_mfma_f32_16x16x32_bf16 %s, %s, %s, %s' %
                      (vr(vCS + 4 * T, 4), vr(vSEL, 4), vr(vWF + 12 * b + 4 * T, 4), vr(vCS + 4 * T, 4)))
                P('%s:' % L)
                for i in range(4):
                    P('v_dot2_f32_bf16 v%d, v%d, v%d, v%d' %
                      (vSS + (i & 1), vXC + 4 * b + i, vXC + 4 * b + i, vSS + (i & 1)))
        self.stamp()
        V.release('xd', 'w1d', 'xr', 'wr', 'xc', 'sel', 'zero')
        S.release('mx', 'mw', 'W1')
        self.sDB = sDB
        if self.ts != 3:
            S.release('DBG')
        vPL = self.v('pl', 4)
        vPA = self.v('pa')
        P('v_min_u32 v%d, 59, v%d' % (vPA, vLane))
        P('v_lshlrev_b32 v%d, 4, v%d' % (vPA, vPA))
        P('v_add_u32 v%d, %d, v%d' % (vPA, F1_OFF, vPA))
        self.poll_issue(P, vPL, 4, vPA, 'f1')
        P('v_lshlrev_b32 v%d, 4, v%d' % (t1, vT32))
        P('v_add_u32 v%d, %d, v%d' % (t1, L_CT, t1))
        vCA = self.v('ca')
        P('s_lshl_b32 s%d, s%d, 2' % (sT, sW))
        P('v_add_u32 v%d, s%d, v%d' % (vCA, sT, t1))
        for T in range(3):
            a = vCS + 4 * T
            P('v_cvt_pk_bf16_f32 v%d, v%d, v%d' % (t3, a, a))
            P('v_lshlrev_b32 v%d, 16, v%d' % (t3, t3))
            P('v_sub_f32 v%d, v%d, v%d' % (t3, a, t3))
            P('v_cvt_pk_bf16_f32 v%d, v%d, v%d' % (a + 1, a, t3))
            P('ds_write_b32 v%d, v%d offset:%d' % (vCA, a + 1, T * 512))
        V.release('ca')
        vRS = self.v('rstd')
        vNM = self.v('negm', 4)
        vNH = self.v('negmh', 4)
        P('v_add_f32 v%d, v%d, v%d' % (vSS, vSS, vSS + 1))
        self.xswap_sum(P, vSS, t2)
        P('v_mul_f32 v%d, 0x3acccccd, v%d' % (t2, vSUM))
        P('v_mul_f32 v%d, 0x3acccccd, v%d' % (vSS, vSS))
        P('v_fma_f32 v%d, -v%d, v%d, v%d' % (vSS, t2, t2, vSS))
        P('v_max_f32 v%d, 0, v%d' % (vSS, vSS))
        P('v_cvt_pk_bf16_f32 v%d, v%d, v%d' % (vSS, vSS, vSS))
        P('v_lshlrev_b32 v%d, 16, v%d' % (vSS, vSS))
        P('v_add_f32 v%d, 0x3727c5ac, v%d' % (vSS, vSS))
        P('v_cvt_pk_bf16_f32 v%d, v%d, v%d' % (vSS, vSS, vSS))
        P('v_lshlrev_b32 v%d, 16, v%d' % (vSS, vSS))
        P('v_sqrt_f32 v%d, v%d' % (vSS, vSS))
        P('v_cvt_pk_bf16_f32 v%d, v%d, v%d' % (vSS, vSS, vSS))
        P('v_lshlrev_b32 v%d, 16, v%d' % (vSS, vSS))
        P('v_rcp_f32 v%d, v%d' % (vRS, vSS))
        P('v_cvt_pk_bf16_f32 v%d, -v%d, -v%d' % (vNM, t2, t2))
        P('v_lshlrev_b32 v%d, 16, v%d' % (t3, vNM))
        P('v_mul_f32 v%d, 0.5, v%d' % (t3, t3))
        P('v_cvt_pk_bf16_f32 v%d, v%d, v%d' % (vNH, t3, t3))
        for i in range(1, 4):
            P('v_mov_b32 v%d, v%d' % (vNM + i, vNM))
            P('v_mov_b32 v%d, v%d' % (vNH + i, vNH))
        V.release('ss', 'sum')
        P.wait_lgkm()
        P('s_barrier')
        for T in range(3):
            P('ds_read_b128 %s, v%d offset:%d' % (vr(vWF + 4 * T, 4), t1, T * 512))
        self.poll_check(P, vPL, 4, vPA, 1)
        self.stamp()
        sTB = self.s('tb')
        sMB = self.s('mb')
        P('s_mul_i32 s%d, s%d, %d' % (sTB, sJ, WQ_J))
        P('s_mul_i32 s%d, s%d, 10240' % (sMB, sW))

        def tile_dma(T, lds):
            Q = Prog()
            for grp in range(3):
                Q('s_add_u32 s%d, s%d, s%d' % (sSO, sTB, sMB))
                Q('s_add_u32 s%d, s%d, %d' % (sSO, sSO, WQ_OFF + T * TILE + grp * 4096))
                Q('s_add_u32 m0, s%d, %d' % (sMB, lds + grp * 4096))
                for i in range(4 if grp < 2 else 2):
                    Q('buffer_load_dwordx4 v%d, %s, s%d offen offset:%d sc1 lds' % (vL16, sr(sWS, 4), sSO, i * 1024),
                      'tile%d' % T)
            Q('s_add_u32 s%d, s%d, %d' % (sSO, sTB, WQ_OFF + T * TILE + 40960))
            Q('s_mov_b32 m0, %d' % (lds + 40960))
            Q('buffer_load_dwordx4 v%d, %s, s%d offen sc1 lds' % (vL16, sr(sWS, 4), sSO), 'tile%d' % T)
            return Q
        P.extend(tile_dma(0, L_A))
        P.extend(tile_dma(1, L_B))
        for T in range(3):
            P('v_mfma_f32_32x32x16_bf16 %s, %s, %s, %s' %
              (vr(vH + 16 * T, 16), vr(vWF + 4 * T, 4), vr(vNH, 4), vr(vH + 16 * T, 16)))
        P.extend(tile_dma(2, L_C))
        V.release('negmh', 'cs')
        sU = self.s('u'); sKS = self.s('ks'); sSel = self.s('sel', 4); sRB = self.s('rb')
        P('s_lshl_b32 s%d, s%d, 8' % (sU, sW))
        P('s_add_u32 s%d, s%d, s2' % (sU, sU))
        P('s_lshr_b32 s%d, s%d, 3' % (sKS, sU))
        P('s_cmp_lt_u32 s%d, 48' % sKS)
        for i in range(4):
            P('s_cselect_b32 s%d, s%d, s%d' % (sSel + i, sW2 + i, sWO + i))
        vUA = self.v('ua')
        P('s_and_b32 s%d, s%d, 7' % (sT, sU))
        P('s_mul_i32 s%d, s%d, 160' % (sT, sT))
        P('s_cmp_lt_u32 s%d, 544' % sU)
        P('s_cselect_b32 s%d, s%d, 0x%x' % (sT, sT, OOB))
        P('v_mul_u32_u24 v%d, 1280, v%d' % (vUA, vG))
        P('v_and_b32 v%d, 15, v%d' % (t2, vLane))
        P('v_lshl_add_u32 v%d, v%d, 4, v%d' % (vUA, t2, vUA))
        P('v_add_u32 v%d, s%d, v%d' % (vUA, sT, vUA))
        P('v_cmp_gt_u32 vcc, 10, v%d' % t2)
        P('v_mov_b32 v%d, 0x%x' % (t3, OOB))
        P('v_cndmask_b32 v%d, v%d, v%d, vcc' % (vUA, t3, vUA))
        P('s_lshl_b32 s%d, s%d, 13' % (sM, sW))
        sG5 = self.s('g5'); sCC = self.s('cc'); sRW = self.s('rw')
        for g in range(4):
            P('s_sub_u32 s%d, s%d, 48' % (sG5, sKS))
            P('s_lshl2_add_u32 s%d, s%d, %d' % (sG5, sG5, g))
            P('s_and_b32 s%d, s%d, 0xff' % (sG5, sG5))
            P('s_mul_i32 s%d, s%d, 205' % (sCC, sG5))
            P('s_lshr_b32 s%d, s%d, 10' % (sCC, sCC))
            P('s_mul_i32 s%d, s%d, 40' % (sRB, sCC))
            P('s_mul_i32 s%d, s%d, 5' % (sCC, sCC))
            P('s_sub_u32 s%d, s%d, s%d' % (sCC, sG5, sCC))
            P('s_lshr_b32 s%d, s%d, 1' % (sT, sCC))
            P('s_mul_i32 s%d, s%d, 20' % (sT, sT))
            P('s_and_b32 s%d, s%d, 1' % (sT2, sCC))
            P('s_lshl3_add_u32 s%d, s%d, s%d' % (sT, sT2, sT))
            P('s_cmp_eq_u32 s%d, 4' % sCC)
            P('s_cselect_b32 s%d, 16, s%d' % (sT, sT))
            P('s_cselect_b32 s%d, 20, 4' % sT2)
            P('s_add_u32 s%d, s%d, s%d' % (sRB, sRB, sT))
            P('s_lshl_b32 s%d, s%d, 5' % (sT, sKS))
            P('s_add_u32 s%d, s%d, %d' % (sT, sT, 16 * (g >> 1) + 4 * (g & 1)))
            P('s_cmp_lt_u32 s%d, 48' % sKS)
            P('s_cselect_b32 s%d, s%d, s%d' % (sRB, sT, sRB))
            P('s_cselect_b32 s%d, 8, s%d' % (sT2, sT2))
            for run in range(2):
                if run:
                    P('s_add_u32 s%d, s%d, s%d' % (sRB, sRB, sT2))
                P('s_mul_i32 s%d, s%d, 1280' % (sRW, sRB))
                P('s_add_u32 m0, s%d, %d' % (sM, L_ST + (2 * g + run) * 1024))
                P('buffer_load_dwordx4 v%d, %s, s%d offen lds' % (vUA, sr(sSel, 4), sRW), 'w2u')
        S.release('g5', 'cc', 'rw', 'rb', 'sel', 'W2', 'WO')
        V.release('ua')
        vHA = self.v('ha')
        sHB = self.s('hb')
        P('s_lshr_b32 s%d, s%d, 1' % (sT, sW))
        P('s_lshl1_add_u32 s%d, s%d, s%d' % (sHB, sR, sT))
        sRP = self.s('rp')
        P('s_mov_b32 s%d, s%d' % (sRP, sHB))
        P('s_mul_i32 s%d, s%d, %d' % (sHB, sHB, HO_R))
        P('s_and_b32 s%d, s%d, 1' % (sT, sW))
        P('s_lshl_b32 s%d, s%d, 11' % (sT, sT))
        P('s_add_u32 s%d, s%d, s%d' % (sHB, sHB, sT))
        P('s_add_u32 s%d, s%d, %d' % (sHB, sHB, HO_OFF))
        vTK = self.v('tk')
        P('v_and_b32 v%d, 15, v%d' % (t2, vLane))
        P('v_lshlrev_b32 v%d, 4, v%d' % (t2, t2))
        P('v_bfe_u32 v%d, v%d, 4, 1' % (t3, vLane))
        P('v_lshl_add_u32 v%d, v%d, 10, v%d' % (vTK, t3, t2))
        P('v_lshl_add_u32 v%d, v%d, 8, v%d' % (vHA, vHF, vTK))
        P('s_mul_i32 s%d, s%d, %d' % (sT, sJ, 3 * 4096))
        P('s_add_u32 s%d, s%d, s%d' % (sSO, sHB, sT))
        vC = self.v('c', 4)
        P('v_mov_b32 v%d, v%d' % (vC, vRS))
        P('v_mul_f32 v%d, 0x%x, v%d' % (vC + 2, LOG2E | 0x80000000, vRS))
        vE = self.v('e', 16)
        vPK = self.v('pk', 8)
        for T in range(3):
            a = vH + 16 * T
            for i in range(0, 16, 2):
                P('v_pk_mul_f32 %s, %s, %s op_sel_hi:[1,0]' % (vr(vE + i, 2), vr(a + i, 2), vr(vC + 2, 2)))
            for i in range(16):
                P('v_exp_f32 v%d, v%d' % (vE + i, vE + i))
            for i in range(0, 16, 2):
                P('v_pk_mul_f32 %s, %s, %s op_sel_hi:[1,0]' % (vr(a + i, 2), vr(a + i, 2), vr(vC, 2)))
            for i in range(0, 16, 2):
                P('v_pk_add_f32 %s, %s, 1.0 op_sel_hi:[1,0]' % (vr(vE + i, 2), vr(vE + i, 2)))
            for i in range(16):
                P('v_rcp_f32 v%d, v%d' % (vE + i, vE + i))
            for i in range(0, 16, 2):
                P('v_pk_mul_f32 %s, %s, %s' % (vr(a + i, 2), vr(a + i, 2), vr(vE + i, 2)))
            for i in range(8):
                P('v_cvt_pk_bf16_f32 v%d, v%d, v%d' % (vPK + i, a + 2 * i, a + 2 * i + 1))
            for ip in range(2):
                P('buffer_store_dwordx4 %s, v%d, %s, s%d offen offset:%d sc1' %
                  (vr(vPK + 4 * ip, 4), vHA, sr(sWS, 4), sSO, ip * 512), 'hst')
            if T < 2:
                P('s_add_u32 s%d, s%d, 4096' % (sSO, sSO))
        V.release('e', 'pk', 'accH', 'c', 'wf', 'ha')
        self.stamp()
        if self.stop == 'h':
            return self.finish()

        vQ = self.v('accQ', 64)
        NWF = 6
        vWF = self.v('wf', 4 * NWF)
        vRA = self.v('ra')
        P('v_add_u32 v%d, %d, v%d' % (vRA, L_C, vL16))

        def tile_main(T):
            Q = Prog()
            lds = [L_A, L_B, L_C, L_A][T]

            def rd(ks):
                if lds == L_C:
                    Q('ds_read_b128 %s, v%d offset:%d' % (vr(vWF + 4 * (ks % NWF), 4), vRA, ks * 1024))
                elif lds + ks * 1024 < 65536:
                    Q('ds_read_b128 %s, v%d offset:%d' % (vr(vWF + 4 * (ks % NWF), 4), vL16, lds + ks * 1024))
                else:
                    Q('ds_read_b128 %s, v%d offset:%d' % (vr(vWF + 4 * (ks % NWF), 4), vRB, ks * 1024))
            for ks in range(NWF - 1):
                rd(ks)
            for ks in range(41):
                if ks + NWF - 1 < 41:
                    rd(ks + NWF - 1)
                b = ar(4 * ks, 4) if ks < 40 else vr(vNM, 4)
                c = '0' if ks == 0 else vr(vQ + 16 * T, 16)
                Q('v_mfma_f32_32x32x16_bf16 %s, %s, %s, %s' % (vr(vQ + 16 * T, 16), vr(vWF + 4 * (ks % NWF), 4), b, c))
            return Q
        vRB = self.v('rb')
        P('v_add_u32 v%d, %d, v%d' % (vRB, L_B, vL16))

        def w2_unit():
            Q = Prog()
            vU = vEX
            ta = vSM; tb = vSM + 1
            Q('v_lshl_add_u32 v%d, v%d, 3, v%d' % (ta, vG, vR4))
            Q('v_lshlrev_b32 v%d, 8, v%d' % (ta, ta))
            Q('v_mul_u32_u24 v%d, 40, v%d' % (tb, vC4))
            Q('v_add_u32 v%d, v%d, v%d' % (ta, ta, tb))
            Q('s_lshl_b32 s%d, s%d, 13' % (sT, sW))
            Q('s_add_u32 s%d, s%d, %d' % (sT, sT, L_ST))
            Q('v_add_u32 v%d, s%d, v%d' % (ta, sT, ta))
            Q.wait_vm('w2u')
            for ft in range(5):
                for run in range(2):
                    Q('ds_read_b64_tr_b16 %s, v%d offset:%d' % (vr(vU + 4 * ft + 2 * run, 2), ta, run * 1024 + ft * 8))
            Q('s_and_b32 s%d, s%d, 7' % (sT, sU))
            Q('s_mul_i32 s%d, s%d, %d' % (sT2, sT, W2_C))
            Q('s_mul_i32 s%d, s%d, 5120' % (sM, sKS))
            Q('s_add_u32 s%d, s%d, s%d' % (sM, sM, sT2))
            Q('s_add_u32 s%d, s%d, %d' % (sM, sM, W2_OFF))
            Q('s_lshl_b32 s%d, s%d, 7' % (sT, sT))
            Q('s_add_u32 s%d, s%d, s%d' % (sT, sT, sKS))
            Q('s_lshl_b32 s%d, s%d, 2' % (sT, sT))
            Q('s_add_u32 s%d, s%d, %d' % (sT, sT, F2_OFF))
            Q('s_cmp_lt_u32 s%d, 544' % sU)
            Q('s_cselect_b32 s%d, s%d, 0x%x' % (sM, sM, SOOB))
            Q('s_cselect_b32 s%d, s%d, 0x%x' % (sT, sT, SOOB))
            Q('v_add_u32 v%d, 4096, v%d' % (tb, vL16))
            for ft in range(5):
                Q('buffer_store_dwordx4 %s, v%d, %s, s%d offen offset:%d sc1' %
                  (vr(vU + 4 * ft, 4), vL16 if ft < 4 else tb, sr(sWS, 4), sM, (ft & 3) * 1024), 'w2s')
            Q('v_lshlrev_b32 v%d, 24, v%d' % (vF2, vLane))
            Q('v_add_u32 v%d, s%d, v%d' % (vF2, sT, vF2))
            return Q
        vF2 = self.v('f2')

        def pack(Q, dst, src, n, pk):
            for i in range(0, n, 2):
                if pk:
                    Q('v_pk_mul_f32 %s, %s, %s op_sel_hi:[1,0]' % (vr(src + i, 2), vr(src + i, 2), vr(vRS2, 2)))
                else:
                    Q('v_mul_f32 v%d, v%d, v%d' % (src + i, vRS, src + i))
                    Q('v_mul_f32 v%d, v%d, v%d' % (src + i + 1, vRS, src + i + 1))
                Q('v_cvt_pk_bf16_f32 v%d, v%d, v%d' % (dst + i // 2, src + i, src + i + 1))
        vRS2 = self.v('rs2', 2)
        P('v_mov_b32 v%d, v%d' % (vRS2, vRS))

        def softmax(Q, pq, out, pk):
            mx, mn, sp, sn, tt = vSM, vSM + 1, vSM + 2, vSM + 3, vSM + 4
            ep, en = vEX, vEX + 10
            Q('v_max3_f32 v%d, v%d, v%d, v%d' % (mx, pq, pq + 1, pq + 2))
            Q('v_min3_f32 v%d, v%d, v%d, v%d' % (mn, pq, pq + 1, pq + 2))
            for i in (3, 5, 7):
                Q('v_max3_f32 v%d, v%d, v%d, v%d' % (mx, mx, pq + i, pq + i + 1))
                Q('v_min3_f32 v%d, v%d, v%d, v%d' % (mn, mn, pq + i, pq + i + 1))
            Q('v_max_f32 v%d, v%d, v%d' % (mx, mx, pq + 9))
            Q('v_min_f32 v%d, v%d, v%d' % (mn, mn, pq + 9))
            Q('v_mov_b32 v%d, v%d' % (sp, mx))
            Q('v_mov_b32 v%d, v%d' % (sn, mn))
            Q('v_permlane32_swap_b32 v%d, v%d' % (mx, sp))
            Q('v_permlane32_swap_b32 v%d, v%d' % (mn, sn))
            Q('v_max_f32 v%d, v%d, v%d' % (mx, mx, sp))
            Q('v_min_f32 v%d, v%d, v%d' % (mn, mn, sn))
            Q('v_mul_f32 v%d, s%d, v%d' % (mx, sL2E, mx))
            Q('v_mul_f32 v%d, s%d, v%d' % (mn, sL2E, mn))
            for i in range(10):
                Q('v_fma_f32 v%d, v%d, s%d, -v%d' % (ep + i, pq + i, sL2E, mx))
                Q('v_fma_f32 v%d, -v%d, s%d, v%d' % (en + i, pq + i, sL2E, mn))
            for i in range(10):
                Q('v_exp_f32 v%d, v%d' % (ep + i, ep + i))
                Q('v_exp_f32 v%d, v%d' % (en + i, en + i))
            Q('v_add_f32 v%d, v%d, v%d' % (sp, ep, ep + 1))
            Q('v_add_f32 v%d, v%d, v%d' % (sn, en, en + 1))
            for i in range(2, 10):
                Q('v_add_f32 v%d, v%d, v%d' % (sp, sp, ep + i))
                Q('v_add_f32 v%d, v%d, v%d' % (sn, sn, en + i))
            Q('v_mov_b32 v%d, v%d' % (mx, sp))
            Q('v_mov_b32 v%d, v%d' % (mn, sn))
            Q('v_permlane32_swap_b32 v%d, v%d' % (sp, mx))
            Q('v_permlane32_swap_b32 v%d, v%d' % (sn, mn))
            Q('v_add_f32 v%d, v%d, v%d' % (sp, sp, mx))
            Q('v_add_f32 v%d, v%d, v%d' % (sn, sn, mn))
            Q('v_rcp_f32 v%d, v%d' % (sp, sp))
            Q('v_rcp_f32 v%d, v%d' % (sn, sn))
            for i in range(10):
                Q('v_mul_f32 v%d, v%d, v%d' % (ep + i, sp, ep + i))
                Q('v_mul_f32 v%d, v%d, v%d' % (en + i, sn, en + i))
            for i in range(4):
                Q('v_cvt_pk_bf16_f32 v%d, v%d, v%d' % (out + i, ep + 2 * i, ep + 2 * i + 1))
                Q('v_cvt_pk_bf16_f32 v%d, v%d, v%d' % (out + 4 + i, en + 2 * i, en + 2 * i + 1))
            Q('v_cvt_pk_bf16_f32 v%d, v%d, v%d' % (out + 8, ep + 8, ep + 9))
            Q('v_cvt_pk_bf16_f32 v%d, v%d, v%d' % (out + 9, en + 8, en + 9))

        sL2E = self.s('l2e')
        P('s_mov_b32 s%d, 0x%x' % (sL2E, LOG2E))
        vSM = self.v('sm', 5)
        vEX = self.v('ex', 20)
        vPQ = self.v('pq', 32)
        vKB = self.v('kb', 12)
        vPH = self.v('ph', 24)
        vTA = self.v('ta')
        P('s_mul_i32 s%d, s%d, %d' % (sT, sW, 32 * TSTR))
        P('s_add_u32 s%d, s%d, %d' % (sT, sT, L_B))
        P('v_mul_u32_u24 v%d, %d, v%d' % (vTA, TSTR, vT32))
        P('v_add_u32 v%d, s%d, v%d' % (vTA, sT, vTA))

        def phi(Q, wins, pk):
            for wi, (src, n) in enumerate(wins):
                pack(Q, vKB + 4 * wi, src, n, pk)
                for i in range(n // 2, 4):
                    Q('v_mov_b32 v%d, 0' % (vKB + 4 * wi + i))
            for hh in range(2):
                for win in range(2):
                    c = '0' if win == 0 else vr(vPQ + 16 * hh, 16)
                    Q('v_mfma_f32_32x32x16_bf16 %s, %s, %s, %s' %
                      (vr(vPQ + 16 * hh, 16), vr(vWP + 8 * hh + 4 * win, 4), vr(vKB + 4 * (hh + win), 4), c))
            for hh in range(2):
                softmax(Q, vPQ + 16 * hh, vPH + 12 * hh, pk)

        P.wait_vm('tile0')
        P('s_barrier')
        self.stamp()
        P.extend(tile_main(0))
        P.wait_vm('tile1', 'hst')
        P.wait_lgkm()
        P('s_barrier')
        F = Prog()
        F('s_lshl4_add_u32 s%d, s%d, s%d' % (sT, sRP, sJ))
        F('s_lshl_b32 s%d, s%d, 1' % (sT, sT))
        F('s_and_b32 s%d, s%d, 1' % (sT2, sW))
        F('s_add_u32 s%d, s%d, s%d' % (sT, sT, sT2))
        F('s_lshl_b32 s%d, s%d, 2' % (sT, sT))
        sFH = self.s('fh')
        F('s_mov_b32 s%d, s%d' % (sFH, sT))
        F('s_add_u32 s%d, s%d, %d' % (sT, sT, FH_OFF))
        F('v_lshlrev_b32 v%d, 24, v%d' % (vF, vLane))
        F('v_add_u32 v%d, s%d, v%d' % (vF, sT, vF))
        self.flag_store(F, vF)
        F.extend(tile_dma(3, L_A))
        F.extend(w2_unit())
        m, left = interleave(tile_main(1), F, 16)
        P.extend(m); P.extend(left)
        P.wait_vm('tile2')
        P.wait_lgkm()
        P('s_barrier')
        self.stamp()
        F = Prog()
        F.wait_vm('w2s')
        self.flag_store(F, vF2)
        phi(F, [(vQ, 8), (vQ + 8, 8), (vQ + 16, 4)], False)
        F('v_lshl_add_u32 v%d, v%d, 3, v%d' % (vSM + 4, vHF, vTA))
        for hh in range(2):
            for i in range(5):
                F('ds_write_b64 v%d, %s offset:%d' % (vSM + 4, vr(vPH + 12 * hh + 2 * i, 2), hh * 80 + 16 * i))
        m, left = interleave(tile_main(2), F, 20)
        P.extend(m); P.extend(left)
        V.release('f2')
        S.release('u', 'ks')
        P.wait_vm('tile3')
        P.wait_lgkm()
        P('s_barrier')
        self.stamp()
        F = Prog()
        vVA = self.v('va', 4)
        deltas = {16: vVA, 32: vVA + 1, -8: vVA + 2, 8: vVA + 3}
        for dl, rg in deltas.items():
            F('v_mul_i32_i24 v%d, %d, v%d' % (rg, dl, vHF))
            F('v_add_u32 v%d, v%d, v%d' % (rg, rg, vTA))
        vw = [(10, 0, 16), (12, 8, 16), (14, 32, 32), (16, 80, -8), (18, 88, 8)]
        for n, (q, off, dl) in enumerate(vw):
            src = vQ + 16 * (q >> 3) + 4 * ((q & 7) >> 1)
            pack(F, vKB + 2 * n, src, 4, False)
            F('ds_write_b64 v%d, %s offset:%d' % (deltas[dl], vr(vKB + 2 * n, 2), 160 + off))
        F('v_mov_b32 v%d, 0x3f80' % (vKB + 10))
        F('v_mov_b32 v%d, 0' % (vKB + 11))
        for hh in range(2):
            F('ds_write_b64 v%d, %s offset:%d' % (deltas[8], vr(vKB + 10, 2), 160 + 64 * hh + 40))
        m, left = interleave(tile_main(3), F, 16)
        P.extend(m); P.extend(left)
        V.release('va', 'wf', 'ra', 'rb', 'negm')
        S.release('tb', 'mb')
        P.wait_lgkm()
        P('s_barrier')
        self.stamp()
        vKA = self.v('ka'); vKV = self.v('kvb')
        aKF = 0
        vKD = vPQ
        vKF = vEX
        P('v_lshl_add_u32 v%d, v%d, 3, v%d' % (t1, vHF, vR4))
        P('v_mul_u32_u24 v%d, %d, v%d' % (t1, TSTR, t1))
        P('v_and_b32 v%d, 1, v%d' % (t2, vG))
        P('v_lshl_add_u32 v%d, v%d, 5, v%d' % (t1, t2, t1))
        P('v_lshl_add_u32 v%d, v%d, 3, v%d' % (t1, vC4, t1))
        P('s_lshr_b32 s%d, s%d, 1' % (sT, sW))
        P('s_mul_i32 s%d, s%d, 80' % (sT2, sT))
        P('s_bitcmp1_b32 s%d, 0' % sW)
        P('s_cselect_b32 s%d, 64, 0' % sM)
        P('s_add_u32 s%d, s%d, s%d' % (sT2, sT2, sM))
        P('s_add_u32 s%d, s%d, %d' % (sT2, sT2, L_B))
        P('v_add_u32 v%d, s%d, v%d' % (vKA, sT2, t1))
        P('s_lshl_b32 s%d, s%d, 6' % (sT2, sT))
        P('s_add_u32 s%d, s%d, %d' % (sT2, sT2, L_B + 160))
        P('v_add_u32 v%d, s%d, v%d' % (vKV, sT2, t1))
        for ks in range(8):
            for run in range(2):
                off = (16 * ks + 4 * run) * TSTR
                P('ds_read_b64_tr_b16 %s, v%d offset:%d' % (ar(aKF + 8 * ks + 2 * run, 2), vKA, off))
            for run in range(2):
                off = (16 * ks + 4 * run) * TSTR
                P('ds_read_b64_tr_b16 %s, v%d offset:%d' % (ar(aKF + 8 * ks + 4 + 2 * run, 2), vKV, off))
        for ks in range(8):
            c = '0' if ks == 0 else vr(vKD, 16)
            P('v_mfma_f32_32x32x16_bf16 %s, %s, %s, %s' %
              (vr(vKD, 16), ar(aKF + 8 * ks, 4), ar(aKF + 8 * ks + 4, 4), c))
        vKI = self.v('ki')
        P('v_cmp_eq_u32 vcc, 24, v%d' % vT32)
        P('v_cndmask_b32 v%d, v%d, 21, vcc' % (t1, vT32))
        P('v_mad_u32_u24 v%d, v%d, 22, v%d' % (t2, vHF, t1))
        P('v_cmp_gt_u32 vcc, 22, v%d' % t1)
        P('v_cmp_ne_u32 s[%d:%d], 21, v%d' % (sPC, sPC + 1, vT32))
        P('s_and_b64 vcc, vcc, s[%d:%d]' % (sPC, sPC + 1))
        P('v_mov_b32 v%d, 0x%x' % (t3, OOB >> 4))
        P('v_cndmask_b32 v%d, v%d, v%d, vcc' % (vKI, t3, t2))
        sKB = self.s('kb')
        P('s_lshl1_add_u32 s%d, s%d, s%d' % (sKB, sJ, sT))
        P('s_lshl4_add_u32 s%d, s%d, s%d' % (sT2, sKB, sR))
        P('s_mul_i32 s%d, s%d, 1792' % (sM, sT2))
        P('s_add_u32 s%d, s%d, %d' % (sM, sM, KV_OFF))
        P('s_bitcmp1_b32 s%d, 0' % sW)
        P('s_cselect_b32 s%d, 0x%x, s%d' % (sSO, SOOB, sM))
        P('s_cselect_b32 s%d, s%d, 0x%x' % (sM, sM, SOOB))
        P('v_lshlrev_b32 v%d, 4, v%d' % (t1, vKI))
        P('v_lshlrev_b32 v%d, 3, v%d' % (t2, vKI))
        for i in range(8):
            P('v_cvt_pk_bf16_f32 v%d, v%d, v%d' % (vKF + i, vKD + 2 * i, vKD + 2 * i + 1))
        P('buffer_store_dwordx4 %s, v%d, %s, s%d offen sc1' % (vr(vKF, 4), t1, sr(sWS, 4), sSO), 'kvs')
        P('buffer_store_dwordx4 %s, v%d, %s, s%d offen offset:704 sc1' % (vr(vKF + 4, 4), t1, sr(sWS, 4), sSO), 'kvs')
        P('buffer_store_dwordx2 %s, v%d, %s, s%d offen offset:1408 sc1' % (vr(vKF, 2), t2, sr(sWS, 4), sM), 'kvs')
        P('s_and_b32 s%d, s%d, 1' % (sM, sW))
        P('s_lshl1_add_u32 s%d, s%d, s%d' % (sT2, sT2, sM))
        P('s_lshl_b32 s%d, s%d, 2' % (sT2, sT2))
        P('s_add_u32 s%d, s%d, %d' % (sT2, sT2, FK_OFF))
        P('v_lshlrev_b32 v%d, 24, v%d' % (vF, vLane))
        P('v_add_u32 v%d, s%d, v%d' % (vF, sT2, vF))
        V.release('ka', 'kvb')
        P('s_mul_i32 s%d, s%d, 12' % (sT2, sW))
        P('s_lshl_b32 s%d, s%d, 7' % (sM, sC3))
        P('s_add_u32 s%d, s%d, s%d' % (sT2, sT2, sM))
        P('v_min_u32 v%d, 24, v%d' % (t1, vLane))
        P('v_add_u32 v%d, s%d, v%d' % (t2, sT2, t1))
        P('s_mul_i32 s%d, s%d, 5' % (sT2, sW))
        P('s_add_u32 s%d, s%d, s%d' % (sT2, sT2, sM))
        P('s_add_u32 s%d, s%d, %d' % (sT2, sT2, 48 - 12))
        P('v_add_u32 v%d, s%d, v%d' % (t3, sT2, t1))
        P('v_cmp_gt_u32 vcc, 12, v%d' % t1)
        P('v_cndmask_b32 v%d, v%d, v%d, vcc' % (t2, t3, t2))
        sFC = self.s('fc')
        P('s_lshl_b32 s%d, s%d, 5' % (sFC, sR3))
        P('s_lshl3_add_u32 s%d, s%d, s%d' % (sFC, sW, sFC))
        P('s_add_u32 s%d, s%d, %d' % (sT2, sFC, (FH_OFF - F2_OFF) // 4 - 17))
        P('v_add_u32 v%d, s%d, v%d' % (t3, sT2, t1))
        P('v_cmp_gt_u32 vcc, 17, v%d' % t1)
        P('v_cndmask_b32 v%d, v%d, v%d, vcc' % (t2, t3, t2))
        P('v_lshlrev_b32 v%d, 2, v%d' % (t2, t2))
        P('v_add_u32 v%d, %d, v%d' % (vPA, F2_OFF, t2))
        self.poll_issue(P, vPL, 1, vPA, 'p3a')
        F = Prog()
        phi(F, [(vQ + 40, 8), (vQ + 48, 8), (vQ + 56, 4)], True)
        cut = 60
        P.items.extend(F.items[:cut])
        P.wait_vm('kvs')
        self.flag_store(P, vF)
        P.items.extend(F.items[cut:])
        for hh in range(2):
            P('v_mov_b32 v%d, 0' % (vPH + 12 * hh + 10))
            P('v_mov_b32 v%d, 0' % (vPH + 12 * hh + 11))
        V.release('accQ', 'sm', 'ex', 'pq', 'kb', 'ta', 'rs2', 'rstd', 'wphi')
        self.stamp()
        if self.stop == 'kv':
            return self.finish()

        DEPTH = 4
        bufs = [('a', 160), ('a', 196), ('v', self.v('b2', 36)), ('v', self.v('b3', 36))]
        sWB = self.s('wb'); sAB = self.s('ab')
        v4k = self.v('v4k')
        P('v_add_u32 v%d, 4096, v%d' % (v4k, vL16))
        P('s_mul_i32 s%d, s%d, %d' % (sWB, sC3, W2_C))
        P('s_mul_i32 s%d, s%d, %d' % (sAB, sR3, HO_R))
        sW12 = self.s('w12'); sW5 = self.s('w5')
        P('s_mul_i32 s%d, s%d, 12' % (sW12, sW))
        P('s_mul_i32 s%d, s%d, 5' % (sW5, sW))
        P('s_add_u32 s%d, s%d, 48' % (sW5, sW5))

        def ld_w(Q, st):
            k, b = bufs[st % DEPTH]
            if st < 12:
                Q('s_add_u32 s%d, s%d, %d' % (sSO, sW12, st))
            else:
                Q('s_add_u32 s%d, s%d, %d' % (sSO, sW5, st - 12))
            Q('s_mul_i32 s%d, s%d, 5120' % (sSO, sSO))
            Q('s_add_u32 s%d, s%d, s%d' % (sSO, sSO, sWB))
            Q('s_add_u32 s%d, s%d, %d' % (sSO, sSO, W2_OFF))
            for ft in range(5):
                Q('buffer_load_dwordx4 %s, v%d, %s, s%d offen offset:%d sc1' %
                  (vr(b + 4 * ft, 4, k), vL16 if ft < 4 else v4k, sr(sWS, 4), sSO, (ft & 3) * 1024))

        def ld_a(Q, st):
            k, b = bufs[st % DEPTH]
            if st < 12:
                Q('s_add_u32 s%d, s%d, %d' % (sSO, sW12, st))
            else:
                Q('s_add_u32 s%d, s%d, %d' % (sSO, sW5, st - 12))
            Q('s_lshl_b32 s%d, s%d, 12' % (sSO, sSO))
            Q('s_add_u32 s%d, s%d, s%d' % (sSO, sSO, sAB))
            Q('s_add_u32 s%d, s%d, %d' % (sSO, sSO, HO_OFF))
            for tb in range(4):
                Q('buffer_load_dwordx4 %s, v%d, %s, s%d offen offset:%d sc1' %
                  (vr(b + 20 + 4 * tb, 4, k), vL16, sr(sWS, 4), sSO, tb * 1024))

        def mm(Q, st):
            k, b = bufs[st % DEPTH]
            base = 0 if st < 12 else 80
            for tb in range(4):
                for ft in range(5):
                    d = ar(base + 20 * tb + 4 * ft, 4)
                    c = '0' if st in (0, 12) else d
                    Q('v_mfma_f32_16x16x32_bf16 %s, %s, %s, %s' % (d, vr(b + 4 * ft, 4, k), vr(b + 20 + 4 * tb, 4, k), c))

        self.poll_check(P, vPL, 1, vPA, 2)
        self.stamp()
        for st in range(DEPTH):
            ld_w(P, st); ld_a(P, st)
        P('s_lshl_b32 s%d, s%d, 5' % (sT2, sKB))
        P('s_and_b32 s%d, s%d, 1' % (sM, sW))
        P('s_lshl4_add_u32 s%d, s%d, s%d' % (sT2, sM, sT2))
        P('v_and_b32 v%d, 15, v%d' % (t1, vLane))
        P('v_add_u32 v%d, s%d, v%d' % (t1, sT2, t1))
        P('v_lshlrev_b32 v%d, 2, v%d' % (t1, t1))
        P('v_add_u32 v%d, %d, v%d' % (vPA, FK_OFF, t1))
        self.poll_issue(P, vPL, 1, vPA, 'fk')
        mm(P, 0)
        ld_w(P, 4); ld_a(P, 4)
        self.poll_check(P, vPL, 1, vPA, 3)
        self.stamp()
        vKP = self.v('kp', 80)
        vK16 = self.v('k16'); vK8 = self.v('k8')
        P('v_lshlrev_b32 v%d, 4, v%d' % (vK16, vKI))
        P('v_lshlrev_b32 v%d, 3, v%d' % (vK8, vKI))
        P('s_lshl_b32 s%d, s%d, 4' % (sT2, sKB))
        P('s_lshl3_add_u32 s%d, s%d, s%d' % (sT2, sM, sT2))
        P('s_mul_i32 s%d, s%d, 1792' % (sT2, sT2))
        P('s_add_u32 s%d, s%d, %d' % (sT2, sT2, KV_OFF))
        for p in range(8):
            b = vKP + 10 * p
            P('buffer_load_dwordx4 %s, v%d, %s, s%d offen sc1' % (vr(b, 4), vK16, sr(sWS, 4), sT2))
            P('buffer_load_dwordx4 %s, v%d, %s, s%d offen offset:704 sc1' % (vr(b + 4, 4), vK16, sr(sWS, 4), sT2))
            P('buffer_load_dwordx2 %s, v%d, %s, s%d offen offset:1408 sc1' % (vr(b + 8, 2), vK8, sr(sWS, 4), sT2))
            if p < 7:
                P('s_add_u32 s%d, s%d, 1792' % (sT2, sT2))
        V.release('k16', 'k8', 'ki')
        mm(P, 1)
        ld_w(P, 5); ld_a(P, 5)
        mm(P, 2)
        vSU = self.v('su', 20)
        sLO = self.s('lo'); sHI = self.s('hi')
        P('s_mov_b32 s%d, 0x3f80' % sLO)
        P('s_mov_b32 s%d, 0x3f800000' % sHI)
        for p in range(8):
            for i in range(10):
                for h, sc in ((0, sLO), (1, sHI)):
                    c = '0' if p == 0 else 'v%d' % (vSU + 2 * i + h)
                    P('v_dot2_f32_bf16 v%d, v%d, s%d, %s' % (vSU + 2 * i + h, vKP + 10 * p + i, sc, c))
        S.release('lo', 'hi')
        ld_w(P, 6); ld_a(P, 6)
        P('s_mul_i32 s%d, s%d, 5120' % (sT2, sW))
        P('s_add_u32 s%d, s%d, %d' % (sT2, sT2, L_KVS))
        P('v_add_u32 v%d, s%d, v%d' % (t1, sT2, vL16))
        for i in range(5):
            P('ds_write_b128 v%d, %s offset:%d' % (t1, vr(vSU + 4 * i, 4), i * 1024))
        P.wait_lgkm()
        P('s_barrier')
        P('v_add_u32 v%d, %d, v%d' % (t1, L_KVS, vL16))
        for ww in range(4):
            for i in range(5):
                P('ds_read_b128 %s, v%d offset:%d' % (vr(vKP + 20 * ww + 4 * i, 4), t1, ww * 5120 + i * 1024))
        mm(P, 3)
        ld_w(P, 7); ld_a(P, 7)
        kt = [vKP + 20, vKP + 60]
        od = [vKP, vKP + 40]
        vKT = vSU
        for hh in range(2):
            a, b = vKP + 40 * hh, vKP + 40 * hh + 20
            for i in range(0, 20, 2):
                P('v_pk_add_f32 %s, %s, %s' % (vr(a + i, 2), vr(a + i, 2), vr(b + i, 2)))
            for i in range(10):
                P('v_cvt_pk_bf16_f32 v%d, v%d, v%d' % (kt[hh] + i, a + 2 * i, a + 2 * i + 1))
            P('v_mov_b32 v%d, 0' % (kt[hh] + 10))
            P('v_mov_b32 v%d, 0' % (kt[hh] + 11))
        for hh in range(2):
            for ks in range(3):
                c = '0' if ks == 0 else vr(od[hh], 16)
                P('v_mfma_f32_32x32x16_bf16 %s, %s, %s, %s' %
                  (vr(od[hh], 16), vr(kt[hh] + 4 * ks, 4), vr(vPH + 12 * hh + 4 * ks, 4), c))
        vOA = self.v('oa', 3)
        P('s_mul_i32 s%d, s%d, 5' % (sT2, sJ))
        for n, add in enumerate((0, 2, 4)):
            P('v_add_u32 v%d, s%d, v%d' % (t1, sT2, vHF))
            if add:
                P('v_add_u32 v%d, %d, v%d' % (t1, add, t1))
            P('v_lshrrev_b32 v%d, 2, v%d' % (t2, t1))
            P('v_and_b32 v%d, 3, v%d' % (t1, t1))
            P('v_lshl_add_u32 v%d, v%d, 12, v%d' % (t2, t2, vTK))
            P('v_lshl_add_u32 v%d, v%d, 8, v%d' % (vOA + n, t1, t2))
            if add == 4:
                P('v_lshl_add_u32 v%d, v%d, 31, v%d' % (vOA + n, vHF, vOA + n))
        P('s_add_u32 s%d, s%d, %d' % (sM, sHB, 48 * 4096))
        P('v_cmp_eq_u32 vcc, 0, v%d' % vHF)
        vDN = self.v('dn', 4)
        for hh in range(2):
            d = od[hh]
            P('v_cndmask_b32 v%d, v%d, v%d, vcc' % (vDN + 2 * hh, d + 8, d + 12))
            P('v_add_f32 v%d, 0x358637bd, v%d' % (vDN + 2 * hh, vDN + 2 * hh))
            P('v_rcp_f32 v%d, v%d' % (vDN + 2 * hh, vDN + 2 * hh))
        for hh in range(2):
            d = od[hh]
            for i in range(0, 12, 2):
                P('v_pk_mul_f32 %s, %s, %s op_sel_hi:[1,0]' % (vr(d + i, 2), vr(d + i, 2), vr(vDN + 2 * hh, 2)))
            for i in range(4):
                P('v_cvt_pk_bf16_f32 v%d, v%d, v%d' % (vKT + 4 * hh + i, d + 2 * i, d + 2 * i + 1))
            for i in range(2):
                P('v_cvt_pk_bf16_f32 v%d, v%d, v%d' % (vKT + 8 + 2 * hh + i, d + 8 + 2 * i, d + 9 + 2 * i))
        for n in range(3):
            P('buffer_store_dwordx4 %s, v%d, %s, s%d offen sc1' % (vr(vKT + 4 * n, 4), vOA + n, sr(sWS, 4), sM), 'ost')
        P('s_add_u32 s%d, s%d, %d' % (sT2, sFH, FO_OFF))
        P('v_lshlrev_b32 v%d, 24, v%d' % (vF, vLane))
        P('v_add_u32 v%d, s%d, v%d' % (vF, sT2, vF))
        V.release('kp', 'oa', 'dn', 'ph', 'tk')
        self.stamp()
        mm(P, 4)
        ld_w(P, 8); ld_a(P, 8)
        mm(P, 5)
        P.wait_vm('ost')
        self.flag_store(P, vF)
        V.release('su')
        ld_w(P, 9); ld_a(P, 9)
        mm(P, 6)
        ld_w(P, 10); ld_a(P, 10)
        mm(P, 7)
        ld_w(P, 11); ld_a(P, 11)
        P('s_add_u32 s%d, s%d, %d' % (sT2, sFC, FO_OFF // 4))
        P('v_and_b32 v%d, 7, v%d' % (t1, vLane))
        P('v_add_u32 v%d, s%d, v%d' % (t1, sT2, t1))
        P('v_lshlrev_b32 v%d, 2, v%d' % (vPA, t1))
        mm(P, 8)
        ld_w(P, 12)
        mm(P, 9)
        self.poll_issue(P, vPL, 1, vPA, 'fo')
        ld_w(P, 13)
        vXO = self.v('xo'); vXR = self.v('xres', 12)
        P('s_lshl_b32 s%d, s%d, 2' % (sT2, sR3))
        P('s_add_u32 s%d, s%d, s%d' % (sT2, sT2, sW))
        P('s_mul_i32 s%d, s%d, %d' % (sT2, sT2, 16 * 1280))
        P('s_mul_i32 s%d, s%d, 160' % (sM, sC3))
        P('s_add_u32 s%d, s%d, s%d' % (sT2, sT2, sM))
        P('v_and_b32 v%d, 15, v%d' % (t1, vLane))
        P('v_mul_u32_u24 v%d, 1280, v%d' % (t1, t1))
        P('v_mad_u32_u24 v%d, v%d, 40, v%d' % (t1, vG, t1))
        P('v_add_u32 v%d, s%d, v%d' % (vXO, sT2, t1))
        mm(P, 10)
        self.poll_check(P, vPL, 1, vPA, 4)
        self.stamp()
        ld_a(P, 12); ld_a(P, 13)
        ld_w(P, 14); ld_a(P, 14)
        mm(P, 11)
        ld_w(P, 15); ld_a(P, 15)
        P('buffer_load_dwordx4 %s, v%d, %s, 0 offen' % (vr(vXR, 4), vXO, sr(sX, 4)))
        P('buffer_load_dwordx4 %s, v%d, %s, 0 offen offset:16' % (vr(vXR + 4, 4), vXO, sr(sX, 4)))
        P('buffer_load_dwordx2 %s, v%d, %s, 0 offen offset:32' % (vr(vXR + 8, 2), vXO, sr(sX, 4)))

        vEA = self.v('ea', 4)

        def exch_write(Q, lds, abase):
            for tb in range(4):
                Q('s_sub_u32 s%d, s%d, %d' % (sT2, sW, tb + 1))
                Q('s_and_b32 s%d, s%d, 3' % (sT2, sT2))
                Q('s_mul_i32 s%d, s%d, 5120' % (sM, sT2))
                Q('s_add_u32 s%d, s%d, %d' % (sM, sM, lds + tb * 15360))
                Q('s_cmp_eq_u32 s%d, 3' % sT2)
                Q('s_cselect_b32 s%d, %d, s%d' % (sM, 143360, sM))
                Q('s_mul_i32 s%d, s%d, 5120' % (sT2, sW))
                Q('s_cselect_b32 s%d, s%d, 0' % (sT2, sT2))
                Q('s_add_u32 s%d, s%d, s%d' % (sM, sM, sT2))
                Q('v_add_u32 v%d, s%d, v%d' % (vEA + tb, sM, vL16))
                for ft in range(5):
                    Q('ds_write_b128 v%d, %s offset:%d' % (vEA + tb, ar(abase + 20 * tb + 4 * ft, 4), ft * 1024))

        def exch_read(Q, lds, dst):
            Q('s_mul_i32 s%d, s%d, 15360' % (sM, sW))
            Q('s_add_u32 s%d, s%d, %d' % (sM, sM, lds))
            Q('v_add_u32 v%d, s%d, v%d' % (vEA, sM, vL16))
            Q('s_mul_i32 s%d, s%d, 5120' % (sM, sW))
            Q('s_add_u32 s%d, s%d, %d' % (sM, sM, 143360))
            Q('v_add_u32 v%d, s%d, v%d' % (vEA + 1, sM, vL16))
            for ft in range(5):
                Q('ds_read_b128 %s, v%d offset:%d' % (vr(dst + 4 * ft, 4), vEA + 1, ft * 1024))
            for sl in range(3):
                for ft in range(5):
                    Q('ds_read_b128 %s, v%d offset:%d' %
                      (vr(dst + 20 * (sl + 1) + 4 * ft, 4), vEA, sl * 5120 + ft * 1024))

        def exch_sum(Q, dst):
            for i in range(0, 20, 2):
                Q('v_pk_add_f32 %s, %s, %s' % (vr(dst + i, 2), vr(dst + i, 2), vr(dst + 20 + i, 2)))
                Q('v_pk_add_f32 %s, %s, %s' % (vr(dst + 40 + i, 2), vr(dst + 40 + i, 2), vr(dst + 60 + i, 2)))
            for i in range(0, 20, 2):
                Q('v_pk_add_f32 %s, %s, %s' % (vr(dst + i, 2), vr(dst + i, 2), vr(dst + 40 + i, 2)))

        vRD = self.v('rd', 80)
        vGT = self.v('gt', 20)
        exch_write(P, L_EX1, 0)
        mm(P, 12)
        ld_w(P, 16); ld_a(P, 16)
        P.wait_lgkm()
        P('s_barrier')
        exch_read(P, L_EX1, vRD)
        mm(P, 13)
        exch_sum(P, vRD)
        P('s_mov_b32 s%d, 0x%x' % (sT2, LOG2E | 0x80000000))
        for i in range(20):
            P('v_mul_f32 v%d, s%d, v%d' % (vGT + i, sT2, vRD + i))
        for i in range(20):
            P('v_exp_f32 v%d, v%d' % (vGT + i, vGT + i))
        for i in range(0, 20, 2):
            P('v_pk_add_f32 %s, %s, 1.0 op_sel_hi:[1,0]' % (vr(vGT + i, 2), vr(vGT + i, 2)))
        for i in range(20):
            P('v_rcp_f32 v%d, v%d' % (vGT + i, vGT + i))
        for i in range(0, 20, 2):
            P('v_pk_mul_f32 %s, %s, %s' % (vr(vGT + i, 2), vr(vGT + i, 2), vr(vRD + i, 2)))
        mm(P, 14)
        mm(P, 15)
        mm(P, 16)
        self.stamp()
        exch_write(P, L_EX2, 80)
        vXF = self.v('xf', 20)
        for i in range(10):
            P('v_lshlrev_b32 v%d, 16, v%d' % (vXF + 2 * i, vXR + i))
            P('v_and_b32 v%d, 0xffff0000, v%d' % (vXF + 2 * i + 1, vXR + i))
        P.wait_lgkm()
        P('s_barrier')
        exch_read(P, L_EX2, vRD)
        exch_sum(P, vRD)
        for i in range(0, 20, 2):
            P('v_pk_fma_f32 %s, %s, %s, %s' % (vr(vXF + i, 2), vr(vRD + i, 2), vr(vGT + i, 2), vr(vXF + i, 2)))
        for i in range(10):
            P('v_cvt_pk_bf16_f32 v%d, v%d, v%d' % (vXR + i, vXF + 2 * i, vXF + 2 * i + 1))
        P('buffer_store_dwordx4 %s, v%d, %s, 0 offen' % (vr(vXR, 4), vXO, sr(sOUT, 4)))
        P('buffer_store_dwordx4 %s, v%d, %s, 0 offen offset:16' % (vr(vXR + 4, 4), vXO, sr(sOUT, 4)))
        P('buffer_store_dwordx2 %s, v%d, %s, 0 offen offset:32' % (vr(vXR + 8, 2), vXO, sr(sOUT, 4)))
        return self.finish()

    def nonce_check(self, P, sDB, vZero):
        L = 'Lnonce'
        P('v_readfirstlane_b32 s%d, v%d' % (self.sNONCE, self.vNONCE))
        P('s_cmp_eq_u32 s%d, 0' % self.sNONCE)
        P('s_cbranch_scc1 %s' % L)
        P('%s_ret:' % L)
        txt = ['%s:' % L, '    s_mov_b32 s%d, 0x20000' % self.sCNT, '%s_loop:' % L, '    s_nop 7',
               '    buffer_load_dword v%d, v%d, %s, 0 offen sc1' % (self.vNONCE, vZero, sr(sDB, 4)),
               '    s_waitcnt vmcnt(0)',
               '    v_readfirstlane_b32 s%d, v%d' % (self.sNONCE, self.vNONCE),
               '    s_nop 3',
               '    s_cmp_lg_u32 s%d, 0' % self.sNONCE,
               '    s_cbranch_scc1 %s_done' % L,
               '    s_sub_u32 s%d, s%d, 1' % (self.sCNT, self.sCNT),
               '    s_cmp_lg_u32 s%d, 0' % self.sCNT,
               '    s_cbranch_scc1 %s_loop' % L,
               '%s_done:' % L, '    s_nop 7', '    s_branch %s_ret' % L]
        self.ool.append('\n'.join(txt))

    def finish(self):
        P = self.P
        if self.ts:
            P.wait_vm()
            self.stamp(grp=9)
            P.wait_lgkm()
            t = self.vT0
            if self.ts == 3:
                P('s_sub_u32 s%d, s2, 100' % self.sT)
                P('s_lshl_b32 s%d, s%d, 10' % (self.sT, self.sT))
                P('v_add_u32 v%d, s%d, v0' % (t, self.sT))
                P('v_min_u32 v%d, 0x10000, v%d' % (t, t))
                P('v_lshlrev_b32 v%d, 8, v%d' % (t, t))
                for n, i in enumerate(range(1, min(self.nts, 15))):
                    P('s_sub_u32 s%d, s%d, s%d' % (self.sT, self.sTS + 2 * i, self.sTS))
                    P('v_mov_b32 v4, s%d' % self.sT)
                    P('buffer_store_dword v4, v%d, %s, 0 offen offset:%d' % (t, sr(self.sDB, 4), 4 + 4 * n))
                P('s_sub_u32 s%d, s%d, s%d' % (self.sT, self.sTS, self.sNONCE))
                P('v_mov_b32 v4, s%d' % self.sT)
                P('buffer_store_dword v4, v%d, %s, 0 offen offset:60' % (t, sr(self.sDB, 4)))
            P('s_lshl2_add_u32 s%d, s2, s%d' % (self.sT, self.sW))
            P('s_lshl_b32 s%d, s%d, 8' % (self.sT, self.sT))
            P('s_add_u32 s%d, s%d, %d' % (self.sT, self.sT, TS_OFF))
            P('v_lshlrev_b32 v%d, 24, v%d' % (t, self.vLane))
            P('v_add_u32 v%d, s%d, v%d' % (t, self.sT, t))
            for i in list(range(self.nts)) + [17]:
                P('v_mov_b32 v4, s%d' % (self.sTS + 2 * i))
                P('v_mov_b32 v5, s%d' % (self.sTS + 2 * i + 1))
                P('buffer_store_dwordx2 v[4:5], v%d, %s, 0 offen offset:%d' % (t, sr(self.sWS, 4), 8 * i))
                P('s_nop 1')
        P('Lend:')
        P('s_endpgm')
        lines = finalize(P, verbose=True)
        o = []
        for ln in lines:
            o.append(ln)
            if 's_getpc_b64' in ln:
                o.append('Lcode_pc:')
        return o


HEADER = '''; Fused LayerNorm + hedgehog linear attention + SiLU FFN gate, one launch, 256 persistent workgroups.
; @launch grid=(256,1,1) block=(256,1,1) lds=%d
.amdgcn_target "amdgcn-amd-amdhsa--gfx950"
.text
.globl %s_kernel
.p2align 8
.type %s_kernel,@function
%s_kernel:
'''
FOOTER = '''
Lcode_end:
    s_endpgm
.section .rodata,"a"
.p2align 6
.amdhsa_kernel %s_kernel
  .amdhsa_next_free_vgpr 512
  .amdhsa_next_free_sgpr 102
  .amdhsa_accum_offset 256
  .amdhsa_group_segment_fixed_size 0
  .amdhsa_kernarg_size 80
  .amdhsa_user_sgpr_count 2
  .amdhsa_user_sgpr_kernarg_segment_ptr 1
  .amdhsa_system_sgpr_workgroup_id_x 1
  .amdhsa_float_denorm_mode_32 3
.end_amdhsa_kernel
'''


def generate(ts=False, stop=None, opts=None):
    g = Gen(ts=ts, stop=stop, opts=opts)
    lines = g.build()
    txt = HEADER % (LDS_BYTES, NAME, NAME, NAME) + '\n'.join(lines) + '\n' + '\n'.join(g.ool) + FOOTER % NAME
    return txt


if __name__ == '__main__':
    import argparse
    ap = argparse.ArgumentParser()
    ap.add_argument('-o', default='cdna_kernels/%s.s' % NAME)
    ap.add_argument('--ts', type=int, default=0)
    ap.add_argument('--stop', default=None)
    a = ap.parse_args()
    open(a.o, 'w').write(generate(ts=a.ts, stop=a.stop))
    print('wrote', a.o)
```

```python
import sys, os
sys.path.insert(0, os.path.dirname(os.path.abspath(__file__)))
import asmgen
from asmgen import Prog, finalize, schedule, Model
import gen as G1
from gen import Regs, vr, ar, sr, NAME, HEADER, FOOTER
from gen import WQ_OFF, WQ_J, W2_OFF, W2_C, HO_OFF, HO_R, KV_OFF, F1_OFF, F2_OFF, FH_OFF, FO_OFF, FK_OFF
from gen import ST_OFF, TS_OFF, WS_SIZE, OOB, SOOB, LOG2E, LDS_BYTES

NSLOT = 5
SLOT = 28672
L_EU = 143360
L_WT = 155648
L_CT = 159744
L_DUMMY = 161280
L_ST = 143360
TILE = 41 * 1024
L_A, L_B, L_C = 0, TILE, 2 * TILE
TSTR = 328
L_KVS = L_C
L_EX1 = 0
L_EX2 = 61440


class GenA(G1.Gen):
    def seq(self, Q):
        self.P.extend(schedule(self.md, Prog(), None, Q))

    def sched(self, M, L=None, F=None, name='', **kw):
        t0 = self.md.t
        if asmgen.CHECK:
            print('phase', name)
        self.P.extend(schedule(self.md, M, L, F, **kw))
        print('  model %-8s %6d -> %6d' % (name, t0, self.md.t))

    def hilo(self, Q, a, t, dst):
        Q('v_cvt_pk_bf16_f32 v%d, v%d, v%d' % (t, a, a))
        Q('v_lshlrev_b32 v%d, 16, v%d' % (t, t))
        Q('v_sub_f32 v%d, v%d, v%d' % (t, a, t))
        Q('v_cvt_pk_bf16_f32 v%d, v%d, v%d' % (dst, a, t))

    def red32(self, Q, a, t):
        for n in (8, 4, 2, 1):
            Q('v_add_f32_dpp v%d, v%d, v%d row_ror:%d row_mask:0xf bank_mask:0xf' % (a, a, a, n))
        self.xswap_sum(Q, a, t, swap='v_permlane16_swap_b32')

    def rbf(self, Q, a):
        Q('v_cvt_pk_bf16_f32 v%d, v%d, v%d' % (a, a, a))
        Q('v_lshlrev_b32 v%d, 16, v%d' % (a, a))

    def prologue(self):
        P, S, V = self.P, self.S, self.V
        self.md = Model()
        S.at('karg', 0, 2); S.at('wg', 2, 1); V.at('tid', 0, 1)
        P('s_cmp_ge_u32 s2, 256')
        P('s_cbranch_scc1 Lend')
        sX = self.sX = self.srd_load('X', 0); sWQ = self.srd_load('WQKV', 8); sW1 = self.srd_load('W1', 40)
        sDB = self.sDB = self.srd_load('DBG', 64)
        sWS = self.sWS = self.srd_load('WS', 72)
        sWP = self.srd_load('WPHI', 16); self.sW2 = self.srd_load('W2', 48)
        self.sWO = self.srd_load('WO', 24); self.sOUT = self.srd_load('OUT', 56)
        sRT = self.s('rt', 2)
        P('s_memrealtime %s' % sr(sRT, 2))
        if self.ts:
            self.sTS = self.s('ts', 36)
            P('s_mov_b32 s%d, 0' % (self.sTS + 34))
        self.stamp(grp=9)
        sPC = self.sPC = self.s('pc', 2)
        P('s_getpc_b64 %s' % sr(sPC, 2))
        vLane = self.vLane = self.v('lane'); vL16 = self.vL16 = self.v('l16')
        vJunk = self.v('junk', 4)
        t0 = self.vT0 = self.v('t0')
        t1 = self.t1 = self.v('t1'); t2 = self.t2 = self.v('t2'); t3 = self.t3 = self.v('t3')
        self.vNONCE = self.v('nonce'); self.vF = self.v('fa')
        self.vPL = self.v('pl', 4); self.vPA = self.v('pa')
        sL = self.s('l'); sW = self.sW = self.s('w'); sT = self.sT = self.s('st'); sT2 = self.sT2 = self.s('st2')
        self.sNONCE = self.s('nonce'); self.sCNT = self.s('cnt')
        P('s_lshr_b32 s%d, s2, 3' % sL)
        P('s_lshl_b32 s%d, s%d, 12' % (sT, sL))
        P('v_lshlrev_b32 v%d, 4, v0' % t0)
        P('v_add_u32 v%d, s%d, v%d' % (t0, sT, t0))
        P('s_mov_b32 s%d, Lcode_end-Lcode_pc-16' % sT2)
        P('v_min_u32 v%d, s%d, v%d' % (t0, sT2, t0))
        P('global_load_dwordx4 %s, v%d, %s' % (vr(vJunk, 4), t0, sr(sPC, 2)), 'pref')
        P('v_and_b32 v%d, 63, v0' % vLane)
        P('v_lshrrev_b32 v%d, 6, v0' % t1)
        P('v_lshlrev_b32 v%d, 4, v%d' % (vL16, vLane))
        P('v_readfirstlane_b32 s%d, v%d' % (sW, t1))
        sR = self.sR = self.s('r'); sJ = self.sJ = self.s('j'); sR3 = self.sR3 = self.s('R3'); sC3 = self.sC3 = self.s('c3')
        P('s_bfe_u32 s%d, s2, 0x20001' % sT)
        P('s_lshr_b32 s%d, s%d, 3' % (sT2, sL))
        P('s_lshl2_add_u32 s%d, s%d, s%d' % (sR, sT, sT2))
        P('s_lshr_b32 s%d, s%d, 2' % (sT2, sL))
        P('s_lshl3_add_u32 s%d, s%d, s%d' % (sR3, sT, sT2))
        P('s_and_b32 s%d, s2, 1' % sT)
        P('s_and_b32 s%d, s%d, 7' % (sT2, sL))
        P('s_lshl3_add_u32 s%d, s%d, s%d' % (sJ, sT, sT2))
        P('s_and_b32 s%d, s%d, 3' % (sT2, sL))
        P('s_lshl2_add_u32 s%d, s%d, s%d' % (sC3, sT, sT2))
        vG = self.vG = self.v('g'); vR4 = self.vR4 = self.v('r4'); vC4 = self.vC4 = self.v('c4')
        vHF = self.vHF = self.v('hf'); vT32 = self.vT32 = self.v('t32')
        P('v_lshrrev_b32 v%d, 5, v%d' % (vHF, vLane))
        P('v_and_b32 v%d, 31, v%d' % (vT32, vLane))
        sKQ = self.s('kq')
        P('s_and_b32 s%d, s2, 7' % sKQ)
        vEU = self.v('eu')
        P('v_lshrrev_b32 v%d, 3, v%d' % (t1, vLane))
        P('v_and_b32 v%d, 7, v%d' % (t2, vLane))
        P('s_mul_i32 s%d, s%d, %d' % (sT, sKQ, 80 * 3840))
        P('s_lshl_b32 s%d, s%d, 7' % (sT2, sL))
        P('s_add_u32 s%d, s%d, s%d' % (sT, sT, sT2))
        P('s_cmp_lt_u32 s2, 240')
        P('s_cselect_b32 s%d, s%d, 0x%x' % (sT, sT, OOB))
        P('v_mul_u32_u24 v%d, 3840, v%d' % (vEU, t1))
        P('v_lshl_add_u32 v%d, v%d, 4, v%d' % (vEU, t2, vEU))
        P('v_add_u32 v%d, s%d, v%d' % (vEU, sT, vEU))
        vX = self.v('xd', 4)
        P('v_lshrrev_b32 v%d, 1, v%d' % (t3, t1))
        P('v_xor_b32 v%d, v%d, v%d' % (t3, t3, t2))
        P('s_lshl2_add_u32 s%d, s%d, s%d' % (sT, sR, sW))
        P('s_mul_i32 s%d, s%d, %d' % (sT, sT, 32 * 1280))
        P('v_mul_u32_u24 v%d, 1280, v%d' % (vX, t1))
        P('v_lshl_add_u32 v%d, v%d, 4, v%d' % (vX, t3, vX))
        P('v_add_u32 v%d, s%d, v%d' % (vX, sT, vX))
        P('v_xor_b32 v%d, 64, v%d' % (vX + 1, vX))
        P('v_add_u32 v%d, %d, v%d' % (vX + 1, 8 * 1280, vX + 1))
        P('v_add_u32 v%d, %d, v%d' % (vX + 2, 16 * 1280, vX))
        P('v_add_u32 v%d, %d, v%d' % (vX + 3, 16 * 1280, vX + 1))
        vW1 = self.v('w1d', 3)
        P('s_mul_i32 s%d, s%d, %d' % (sT, sW, 16 * 3072))
        P('s_mul_i32 s%d, s%d, 192' % (sT2, sJ))
        P('s_add_u32 s%d, s%d, s%d' % (sT, sT, sT2))
        for i in range(3):
            P('v_add_u32 v%d, %d, v%d' % (t1, 64 * i, vLane))
            P('v_mul_u32_u24 v%d, 43691, v%d' % (t2, t1))
            P('v_lshrrev_b32 v%d, 19, v%d' % (t2, t2))
            P('v_mul_u32_u24 v%d, %d, v%d' % (t2, 3072 - 192, t2))
            P('v_lshl_add_u32 v%d, v%d, 4, v%d' % (t2, t1, t2))
            P('v_add_u32 v%d, s%d, v%d' % (vW1 + i, sT, t2))
        vSA = self.v('sa'); vSX = V.at('sx', 96, 10); sSR = self.s('srow')
        P('s_lshl4_add_u32 s%d, s%d, s%d' % (sSR, sR, sJ))
        P('s_lshl2_add_u32 s%d, s%d, s%d' % (sSR, sSR, sW))
        P('s_lshl_b32 s%d, s%d, 1' % (sSR, sSR))
        P('s_mul_i32 s%d, s%d, 1280' % (sT, sSR))
        P('v_mul_u32_u24 v%d, 1280, v%d' % (vSA, vHF))
        P('v_mad_u32_u24 v%d, v%d, 40, v%d' % (vSA, vT32, vSA))
        P('s_lshl_b32 s%d, s2, 10' % sT2)
        P('v_add_u32 v%d, s%d, v0' % (t3, sT2))
        P('v_lshlrev_b32 v%d, 8, v%d' % (t3, t3))
        sM = self.sM = self.s('m'); sSO = self.sSO = self.s('so')
        sMX = self.s('mx'); sMW = self.s('mw')
        P('s_lshl_b32 s%d, s%d, 10' % (sM, sW))
        P('s_mul_i32 s%d, s%d, %d' % (sSO, sW, 8 * 3840))
        P('s_lshl_b32 s%d, s%d, 12' % (sMX, sW))
        P('s_mul_i32 s%d, s%d, 3072' % (sMW, sW))
        P.wait_lgkm()
        self.srd(sDB, 256)
        P('s_or_b32 s%d, s%d, 1' % (sRT, sRT))
        P('v_mov_b32 v%d, s%d' % (t2, sRT))
        self.srd(sWQ, 640 * 3840)
        P('buffer_store_dword v%d, v%d, %s, 0 offen sc1' % (t2, t3, sr(sDB, 4)), 'nonce')
        S.release('rt')
        self.srd(sX, 2048 * 1280)
        for i in range(3):
            P('s_add_u32 m0, s%d, %d' % (sM, L_EU + 4096 * i))
            if i == 2:
                P('s_cmp_lt_u32 s%d, 2' % sW)
                P('s_cselect_b32 s%d, s%d, 0x%x' % (sSO, sSO, SOOB))
            P('buffer_load_dwordx4 v%d, %s, s%d offen lds' % (vEU, sr(sWQ, 4), sSO), 'eu')
            if i < 2:
                P('s_add_u32 s%d, s%d, %d' % (sSO, sSO, 32 * 3840))
        P('buffer_load_dwordx4 %s, v%d, %s, s%d offen' % (vr(vSX, 4), vSA, sr(sX, 4), sT))
        P('buffer_load_dwordx4 %s, v%d, %s, s%d offen offset:16' % (vr(vSX + 4, 4), vSA, sr(sX, 4), sT))
        P('buffer_load_dwordx2 %s, v%d, %s, s%d offen offset:32' % (vr(vSX + 8, 2), vSA, sr(sX, 4), sT))
        self.srd(sW1, 640 * 3072)
        V.release('eu')
        sLS = self.sLS = self.s('ls')

        def stage_dma(s):
            Q = Prog()
            slot = s % NSLOT
            Q('s_movk_i32 s%d, %d' % (sLS, s * 128))
            for u in range(4):
                Q('s_add_u32 m0, s%d, %d' % (sMX, slot * SLOT + u * 1024))
                Q('buffer_load_dwordx4 v%d, %s, s%d offen lds' % (vX + u, sr(sX, 4), sLS), 'st%d' % s)
            Q('s_mov_b32 s%d, %d' % (sLS, s * 64 * 3072))
            for i in range(3):
                Q('s_add_u32 m0, s%d, %d' % (sMW, slot * SLOT + 16384 + i * 1024))
                Q('buffer_load_dwordx4 v%d, %s, s%d offen lds' % (vW1 + i, sr(sW1, 4), sLS), 'st%d' % s)
                Q.items[-1].gap = 94
            return Q
        self.stage_dma = stage_dma
        self.md.t = 1000
        for it in P.items:
            if getattr(it, 'kind', '') in ('dma', 'vload'):
                self.md.issue(it)
        self.seq(stage_dma(0))
        self.stamp()

        F = Prog()
        P0, self.P = self.P, F
        if self.o.get('wsmb'):
            F('s_add_u32 s%d, s%d, 0x%x' % (sWS, sWS, self.o['wsmb'] << 20))
            F('s_addc_u32 s%d, s%d, 0' % (sWS + 1, sWS + 1))
        for b, sz in ((sWS, WS_SIZE), (sWP, 32 * 800), (self.sW2, 1536 * 1280), (self.sWO, 640 * 1280), (self.sOUT, 2048 * 1280)):
            self.srd(b, sz)
        self.P = P0
        vWL = self.v('wl', 2)
        F('s_mul_i32 s%d, s%d, 1600' % (sT, sJ))
        F('v_lshlrev_b32 v%d, 2, v0' % t1)
        F('buffer_load_dword v%d, v%d, %s, s%d offen' % (vWL, t1, sr(sWP, 4), sT)); F.items[-1].gap = 20
        F('buffer_load_dword v%d, v%d, %s, s%d offen offset:800' % (vWL + 1, t1, sr(sWP, 4), sT)); F.items[-1].gap = 20
        vE = V.at('e', 108, 12)
        for i in range(4):
            F('v_mov_b32 v%d, 0' % (vE + i))
        F('v_lshlrev_b32 v%d, 4, v0' % t1)
        F('v_add_u32 v%d, %d, v%d' % (t1, L_WT, t1))
        F('ds_write_b128 v%d, %s' % (t1, vr(vE, 4)))
        F('v_lshrrev_b32 v%d, 4, v%d' % (vG, vLane))
        F('v_bfe_u32 v%d, v%d, 2, 2' % (vR4, vLane))
        F('v_and_b32 v%d, 3, v%d' % (vC4, vLane))
        vSEL = self.vSEL = self.v('sel', 4)
        sONE = self.s('ones')
        F('s_mov_b32 s%d, 0x3f803f80' % sONE)
        F('v_xor_b32 v%d, v%d, v%d' % (t1, vG, vR4))
        F('v_and_b32 v%d, 1, v%d' % (t1, t1))
        F('v_cmp_eq_u32 vcc, 0, v%d' % t1)
        F('v_mov_b32 v%d, s%d' % (t2, sONE))
        for i in range(4):
            F('v_cndmask_b32 v%d, 0, v%d, vcc' % (vSEL + i, t2))
        vES = self.v('es'); vES2 = self.v('es2'); vEC = self.v('ec'); vER = self.v('er')
        sSec = self.s('sec')
        F('s_mul_i32 s%d, s%d, 205' % (sSec, sL))
        F('s_lshr_b32 s%d, s%d, 11' % (sSec, sSec))
        F('s_mul_i32 s%d, s%d, 10' % (sT, sSec))
        F('s_sub_u32 s%d, s%d, s%d' % (sT, sL, sT))
        F('s_lshl_b32 s%d, s%d, 6' % (sT, sT))
        F('s_lshl4_add_u32 s%d, s%d, s%d' % (sT, sW, sT))
        F('s_mul_i32 s%d, s%d, 40' % (sT2, sSec))
        F('s_sub_u32 s%d, s%d, 40' % (sT2, sT2))
        F('s_cmp_eq_u32 s%d, 0' % sSec)
        F('s_cselect_b32 s%d, 80, s%d' % (sT2, sT2))
        F('v_and_b32 v%d, 15, v%d' % (t1, vLane))
        F('v_add_u32 v%d, s%d, v%d' % (t1, sT, t1))
        F('v_mul_u32_u24 v%d, 1639, v%d' % (t2, t1))
        F('v_lshrrev_b32 v%d, 16, v%d' % (t2, t2))
        F('v_mul_u32_u24 v%d, 40, v%d' % (t3, t2))
        F('v_sub_u32 v%d, v%d, v%d' % (t1, t1, t3))
        F('v_add_u32 v%d, s%d, v%d' % (t1, sT2, t1))
        F('v_mul_u32_u24 v%d, %d, v%d' % (t2, WQ_J, t2))
        F('v_lshrrev_b32 v%d, 5, v%d' % (t3, t1))
        F('v_mul_u32_u24 v%d, %d, v%d' % (t3, TILE, t3))
        F('v_add_u32 v%d, v%d, v%d' % (t2, t2, t3))
        F('v_and_b32 v%d, 31, v%d' % (t1, t1))
        F('v_lshl_add_u32 v%d, v%d, 4, v%d' % (t2, t1, t2))
        F('s_cmp_lt_u32 s2, 240')
        F('s_cselect_b32 s%d, %d, 0x%x' % (sT, WQ_OFF, OOB))
        F('v_add_u32 v%d, s%d, v%d' % (t2, sT, t2))
        F('s_lshr_b32 s%d, s%d, 2' % (sT, sKQ))
        F('s_lshl_b32 s%d, s%d, 9' % (sT, sT))
        F('s_and_b32 s%d, s%d, 3' % (sT2, sKQ))
        F('s_lshl2_add_u32 s%d, s%d, s%d' % (sT, sT2, sT))
        F('s_add_u32 s%d, s%d, %d' % (sT, sT, 40 * 1024))
        F('v_add_u32 v%d, s%d, v%d' % (vEC, sT, t2))
        F('v_cmp_gt_u32 vcc, 16, v%d' % vLane)
        F('v_mov_b32 v%d, 0x%x' % (t3, OOB))
        F('v_cndmask_b32 v%d, v%d, v%d, vcc' % (vEC, t3, vEC))
        F('s_mul_i32 s%d, s%d, 5120' % (sT, sKQ))
        F('v_and_b32 v%d, 1, v%d' % (t1, vG))
        F('v_lshl_add_u32 v%d, v%d, 9, v%d' % (t2, t1, t2))
        F('v_lshl_add_u32 v%d, v%d, 10, v%d' % (t2, vHF, t2))
        F('v_add_u32 v%d, s%d, v%d' % (vES, sT, t2))
        F('v_cmp_gt_u32 vcc, 32, v%d' % vLane)
        F('v_add_u32 v%d, 4096, v%d' % (vES2, vES))
        F('v_cndmask_b32 v%d, v%d, v%d, vcc' % (vES2, t3, vES2))
        F('v_lshl_add_u32 v%d, v%d, 3, v%d' % (t1, vG, vR4))
        F('v_lshlrev_b32 v%d, 7, v%d' % (t1, t1))
        F('v_lshl_add_u32 v%d, v%d, 3, v%d' % (t1, vC4, t1))
        F('s_lshl_b32 s%d, s%d, 5' % (sT, sW))
        F('s_add_u32 s%d, s%d, %d' % (sT, sT, L_EU))
        F('v_add_u32 v%d, s%d, v%d' % (vER, sT, t1))
        S.release('sec', 'kq')
        vWA = self.v('wa', 2)
        F('v_mul_u32_u24 v%d, 6554, v0' % t1)
        F('v_lshrrev_b32 v%d, 16, v%d' % (t1, t1))
        F('v_mul_u32_u24 v%d, 10, v%d' % (t2, t1))
        F('v_sub_u32 v%d, v0, v%d' % (t2, t2))
        F('v_cmp_le_u32 vcc, 5, v%d' % t2)
        F('v_cndmask_b32 v%d, 0, 1, vcc' % t3)
        F('v_lshlrev_b32 v%d, 6, v%d' % (t1, t1))
        F('v_lshl_add_u32 v%d, v%d, 3, v%d' % (t1, t3, t1))
        F('v_mul_u32_u24 v%d, 5, v%d' % (t3, t3))
        F('v_sub_u32 v%d, v%d, v%d' % (t2, t2, t3))
        F('v_lshrrev_b32 v%d, 1, v%d' % (t3, t2))
        F('v_lshl_add_u32 v%d, v%d, 4, v%d' % (t1, t3, t1))
        F('v_and_b32 v%d, 1, v%d' % (t2, t2))
        F('v_lshl_add_u32 v%d, v%d, 2, v%d' % (t1, t2, t1))
        F('v_add_u32 v%d, %d, v%d' % (t1, L_WT, t1))
        F('v_cmp_gt_u32 vcc, 200, v0')
        F('v_mov_b32 v%d, %d' % (t2, L_DUMMY - 2304))
        F('v_cndmask_b32 v%d, v%d, v%d, vcc' % (vWA, t2, t1))
        F('v_mov_b32 v%d, %d' % (t2, L_DUMMY))
        F('v_cndmask_b32 v%d, v%d, v%d, vcc' % (vWA + 1, t2, t1))
        vXR = self.vXR = V.at('kb', 68, 12); vWR = self.vWR = self.v('wr', 3); vWC = self.vWC = self.v('wc', 3)
        F('v_bfe_u32 v%d, v%d, 1, 3' % (t1, vLane))
        F('v_xor_b32 v%d, v%d, v%d' % (t1, t1, vHF))
        F('v_lshlrev_b32 v%d, 4, v%d' % (t1, t1))
        F('v_lshl_add_u32 v%d, v%d, 7, v%d' % (t1, vT32, t1))
        F('v_add_u32 v%d, s%d, v%d' % (vXR, sMX, t1))
        for u in range(1, 4):
            F('v_xor_b32 v%d, %d, v%d' % (vXR + u, 32 * u, vXR))
        F('v_lshl_add_u32 v%d, v%d, 3, v%d' % (t1, vHF, vR4))
        F('v_mul_u32_u24 v%d, 192, v%d' % (t1, t1))
        F('v_and_b32 v%d, 1, v%d' % (t2, vG))
        F('v_lshl_add_u32 v%d, v%d, 5, v%d' % (t1, t2, t1))
        F('v_lshl_add_u32 v%d, v%d, 3, v%d' % (t1, vC4, t1))
        F('v_add_u32 v%d, 16384, v%d' % (vWR, t1))
        F('v_add_u32 v%d, s%d, v%d' % (vWC, sMW, vWR))
        for b in (1, 2):
            for u in range(4):
                F('v_add_u32 v%d, %d, v%d' % (vXR + 4 * b + u, 2 * SLOT * b, vXR + u))
            F('v_add_u32 v%d, %d, v%d' % (vWR + b, 2 * SLOT * b, vWR))
            F('v_add_u32 v%d, %d, v%d' % (vWC + b, 2 * SLOT * b, vWC))
        F.wait_vm('eu')
        F.wait_lgkm()
        self.stamp(F, 1)
        F('s_barrier')
        for p in range(3):
            for run in range(2):
                F('ds_read_b64_tr_b16 %s, v%d offset:%d' % (vr(vE + 4 * p + 2 * run, 2), vER, p * 4096 + run * 512))
        vST = self.vST = self.v('stat', 4)
        F('v_mov_b32 v%d, 0' % (vST + 3))
        F('buffer_load_dword v%d, v%d, %s, 0 offen sc1' % (self.vNONCE, vST + 3, sr(sDB, 4))); F.items[-1].gap = 10
        vSF = V.at('sf', 120, 20)
        F('v_dot2_f32_bf16 v%d, v%d, s%d, 0' % (t1, vSX, sONE))
        F('v_dot2_f32_bf16 v%d, v%d, s%d, 0' % (t2, vSX + 1, sONE))
        for i in range(2, 10):
            F('v_dot2_f32_bf16 v%d, v%d, s%d, v%d' % (t1 + (i & 1), vSX + i, sONE, t1 + (i & 1)))
        for p in range(3):
            a = vES if p < 2 else vES2
            F('buffer_store_dwordx4 %s, v%d, %s, 0 offen offset:%d sc1' %
              (vr(vE + 4 * p, 4), a, sr(sWS, 4), 2048 if p == 1 else 0), 'eus')
        for i in range(10):
            F('v_lshlrev_b32 v%d, 16, v%d' % (vSF + 2 * i, vSX + i))
            F('v_and_b32 v%d, 0xffff0000, v%d' % (vSF + 2 * i + 1, vSX + i))
        F('v_add_f32 v%d, v%d, v%d' % (t1, t1, t2))
        self.red32(F, t1, t2)
        F('v_mul_f32 v%d, 0x3acccccd, v%d' % (t1, t1))
        for i in range(20):
            F('v_sub_f32 v%d, v%d, v%d' % (vSF + i, vSF + i, t1))
        F('v_mul_f32 v%d, v%d, v%d' % (t2, vSF, vSF))
        F('v_mul_f32 v%d, v%d, v%d' % (t3, vSF + 1, vSF + 1))
        for i in range(2, 20):
            F('v_fmac_f32 v%d, v%d, v%d' % (t2 + (i & 1), vSF + i, vSF + i))
        F('v_add_f32 v%d, v%d, v%d' % (t2, t2, t3))
        self.red32(F, t2, t3)
        F('v_mul_f32 v%d, 0x3acccccd, v%d' % (t2, t2))
        self.rbf(F, t2)
        F('v_add_f32 v%d, 0x3727c5ac, v%d' % (t2, t2))
        self.rbf(F, t2)
        F('v_sqrt_f32 v%d, v%d' % (t2, t2))
        F('v_cvt_pk_bf16_f32 v%d, -v%d, v%d' % (vST, t1, t2))
        F('s_lshl_b32 s%d, s%d, 3' % (sT, sSR))
        F('s_add_u32 s%d, s%d, %d' % (sT, sT, ST_OFF))
        F('v_lshlrev_b32 v%d, 24, v%d' % (t3, vT32))
        F('v_lshl_add_u32 v%d, v%d, 3, v%d' % (t3, vHF, t3))
        F('v_add_u32 v%d, s%d, v%d' % (vST + 2, sT, t3))
        F('v_dot2_f32_bf16 v%d, v%d, s%d, 0' % (t1, vE, sONE))
        F('v_dot2_f32_bf16 v%d, v%d, s%d, 0' % (t2, vE + 1, sONE))
        for i in range(2, 12):
            F('v_dot2_f32_bf16 v%d, v%d, s%d, v%d' % (t1 + (i & 1), vE + i, sONE, t1 + (i & 1)))
        F('ds_write_b32 v%d, v%d' % (vWA + 1, vWL))
        F('ds_write_b32 v%d, v%d offset:%d' % (vWA, vWL + 1, 2048 + 256))
        F('v_add_f32 v%d, v%d, v%d' % (t2, t1, t2))
        self.xswap_sum(F, t2, t3)
        self.xswap_sum(F, t2, t3, swap='v_permlane16_swap_b32')
        self.hilo(F, t2, t3, t2)
        F('buffer_store_dword v%d, v%d, %s, 0 offen sc1' % (t2, vEC, sr(sWS, 4)), 'eus'); F.items[-1].gap = 10
        L = Prog()
        for s in range(1, 4):
            L.extend(stage_dma(s))
        self.sched(Prog(), L, F, 'prolog', slack=2)
        V.release('e', 'es', 'es2', 'ec', 'er', 'wl', 'wa', 'sf', 'sx', 'sa', 'junk')
        S.release('WPHI', 'WQKV', 'ones', 'srow', 'l')
        self.stamp()

    def nonce_check(self, P):
        G1.Gen.nonce_check(self, P, self.sDB, self.vST + 3)
```

```python
from gen2a import *


class GenB(GenA):
    def lane0(self, Q, dst, s):
        Q('v_lshlrev_b32 v%d, 24, v%d' % (dst, self.vLane))
        Q('v_add_u32 v%d, s%d, v%d' % (dst, s, dst))

    def tile_dma(self, T, lds):
        Q = Prog()
        sLS, sTB, sMB, sWS = self.sLS, self.sTB, self.sMB, self.sWS
        va = self.vL16 if T < 3 else self.vLP
        for grp in range(3):
            Q('s_add_u32 s%d, s%d, %d' % (sLS, sTB, T * TILE + grp * 4096))
            Q('s_add_u32 m0, s%d, %d' % (sMB, lds + grp * 4096))
            for i in range(4 if grp < 2 else 2):
                Q('buffer_load_dwordx4 v%d, %s, s%d offen offset:%d sc1 lds' % (va, sr(sWS, 4), sLS, i * 1024), 'tile%d' % T)
        Q('s_add_u32 s%d, s%d, %d' % (sLS, self.sTB0, T * TILE + 40960))
        Q('s_cmp_eq_u32 s%d, %d' % (self.sW, T))
        Q('s_cselect_b32 s%d, s%d, 0x%x' % (sLS, sLS, SOOB))
        Q('s_cselect_b32 m0, %d, s%d' % (lds + 40960, self.sDUM))
        Q('buffer_load_dwordx4 v%d, %s, s%d offen sc1 lds' % (va, sr(sWS, 4), sLS), 'tile%d' % T)
        Q.items[-1].gap = 20
        return Q

    def pass12(self):
        S, V = self.S, self.V
        sW, sR, sJ, sT, sT2, sM, sWS = self.sW, self.sR, self.sJ, self.sT, self.sT2, self.sM, self.sWS
        t1, t2, t3 = self.t1, self.t2, self.t3
        vLane, vL16, vG, vR4, vC4, vHF, vT32 = self.vLane, self.vL16, self.vG, self.vR4, self.vC4, self.vHF, self.vT32
        vXR, vWR, vWC, vSEL, vF, vPL, vPA = self.vXR, self.vWR, self.vWC, self.vSEL, self.vF, self.vPL, self.vPA
        O = self.o
        vQ = self.vQ = V.at('accQ', 96, 64)
        vH = self.vH = V.at('accH', 208, 48)
        vWP = self.vWP = V.at('wphi', 80, 16)
        NWF = 6
        vW2 = V.at('wf2', 184, 4 * NWF)
        vWF = vQ + 16
        vCF = V.at('ph', 160, 24)
        vCS = vCF + 12
        vRS = self.vRS = self.v('rstd'); vSD = self.v('sd'); vC1 = self.v('c1')
        vNM = self.v('negm', 4); vNH = self.v('negmh', 4)
        vRB = self.v('rb'); vRC = self.v('rc')
        self.vLP = self.v('lp'); self.sDUM = self.s('dum')
        M, L, F = Prog(), Prog(), Prog()

        def rdx(ks):
            s, u = divmod(ks, 4); sl = s % NSLOT
            M('ds_read_b128 %s, v%d offset:%d' % (ar(4 * ks, 4), vXR + 4 * (sl >> 1) + u, (sl & 1) * SLOT))

        def rdw(ks, T):
            s, u = divmod(ks, 4); sl = s % NSLOT
            for run in range(2):
                M('ds_read_b64_tr_b16 %s, v%d offset:%d' % (vr(vWF + 12 * (ks % 3) + 4 * T + 2 * run, 2), vWR + (sl >> 1),
                                                           (sl & 1) * SLOT + (16 * u + 4 * run) * 192 + T * 64))

        def rdc(s, T):
            sl = s % NSLOT
            for run in range(2):
                M('ds_read_b64_tr_b16 %s, v%d offset:%d' % (vr(vCF + 4 * T + 2 * run, 2), vWC + (sl >> 1),
                                                           (sl & 1) * SLOT + 4 * run * 192 + T * 64))

        def rd2(n):
            T, ks = divmod(n, 41)
            a, off = [(vL16, L_A), (vRB, 0), (vRC, 0), (vL16, L_A)][T]
            M('ds_read_b128 %s, v%d offset:%d' % (vr(vW2 + 4 * (n % NWF), 4), a, off + ks * 1024))

        M('v_lshl_add_u32 v%d, v%d, 2, v%d' % (vRB, vHF, vR4))
        M('v_lshlrev_b32 v%d, 6, v%d' % (vRB, vRB))
        M('v_and_b32 v%d, 1, v%d' % (vRC, vG))
        M('v_lshl_add_u32 v%d, v%d, 5, v%d' % (vRB, vRC, vRB))
        M('v_lshl_add_u32 v%d, v%d, 3, v%d' % (vRB, vC4, vRB))
        M('v_add_u32 v%d, %d, v%d' % (vRB, L_WT, vRB))
        M.wait_vm('st0')
        M.wait_lgkm()
        M('s_barrier')
        M.mark('B0')
        self.stamp(M, 1)
        for ks in range(2):
            rdx(ks)
            for T in range(3):
                rdw(ks, T)
        for ks in range(40):
            s, u = divmod(ks, 4)
            for T in range(3):
                c = '0' if ks == 0 else vr(vH + 16 * T, 16)
                M('v_mfma_f32_32x32x16_bf16 %s, %s, %s, %s' % (vr(vH + 16 * T, 16), vr(vWF + 12 * (ks % 3) + 4 * T, 4), ar(4 * ks, 4), c))
                if T == 0 and u == 2 and s < 9:
                    if s + 1 >= 4:
                        M.need('sti%d' % (s + 1))
                    M.wait_vm('st%d' % (s + 1), *(['eus'] if s == O.get('f1b', 2) - 1 else []))
                    M('s_barrier')
                    M.mark('B%d' % (s + 1))
                    self.stamp(M, 1)
                if T == 0 and ks == 39:
                    M.need('ct'); M.need('tl0')
                    self.stamp(M, 1)
                    M.wait_vm('tile0')
                    M.wait_lgkm()
                    M('s_barrier')
                    M.mark('BF')
                    self.stamp(M, 1)
                    self.stamp(M)
                    for n in range(NWF - 1):
                        rd2(n)
                    for TT in range(3):
                        M('ds_read_b128 %s, v%d offset:%d' % (vr(vCF + 4 * TT, 4), vCS + 2, TT * 512))
                if ks + 2 < 40:
                    if T == 0:
                        rdx(ks + 2); rdw(ks + 2, 0)
                    elif T == 1:
                        rdw(ks + 2, 1); rdw(ks + 2, 2)
                if ks == 0:
                    rdc(0, T)
                elif u == 3 and s < 9:
                    rdc(s + 1, T)
                if ks == 2 and T < 2:
                    for win in range(2):
                        for run in range(2):
                            M('ds_read_b64_tr_b16 %s, v%d offset:%d' %
                              (vr(vWP + 8 * T + 4 * win + 2 * run, 2), vRB, T * 2048 + (16 * win + 8 * run) * 64))
            if u == 1:
                for T in range(3):
                    c = '0' if s == 0 else vr(vCS + 4 * T, 4)
                    M('v_mfma_f32_16x16x32_bf16 %s, %s, %s, %s' % (vr(vCS + 4 * T, 4), vr(vSEL, 4), vr(vCF + 4 * T, 4), c))
                if s == 9:
                    M.mark('cs')
            if ks == 4:
                M('v_add_u32 v%d, %d, v%d' % (vRB, L_B, vL16))
                M('v_add_u32 v%d, %d, v%d' % (vRC, L_C, vL16))
        KVPOS = O.get('kvpos', 163)
        for n in range(164):
            T, ks = divmod(n, 41)
            b = ar(4 * ks, 4) if ks < 40 else vr(vNM, 4)
            c = '0' if ks == 0 else vr(vQ + 16 * T, 16)
            if n == 123:
                M.need('silu')
            if n == 2:
                M.need('stats')
                for TT in range(3):
                    M('v_mfma_f32_32x32x16_bf16 %s, %s, %s, %s' % (vr(vH + 16 * TT, 16), vr(vCF + 4 * TT, 4), vr(vNH, 4), vr(vH + 16 * TT, 16)))
                M.mark('corr')
            M('v_mfma_f32_32x32x16_bf16 %s, %s, %s, %s' % (vr(vQ + 16 * T, 16), vr(vW2 + 4 * (n % NWF), 4), b, c))
            if ks == 40:
                M.mark('T%d' % T)
                self.stamp(M)
            if ks == 3 and T in (1, 2):
                M('s_barrier')
                M.mark('BX%d' % T)
            if n + NWF - 1 < 164:
                if (n + NWF - 1) % 41 == 0:
                    M.need('tl%d' % (T + 1))
                    M.wait_vm('tile%d' % (T + 1))
                    M('s_barrier')
                rd2(n + NWF - 1)

        self.sTB = self.s('tb'); self.sTB0 = self.s('tb0'); self.sMB = self.s('mb')
        L.extend(self.stage_dma(4)); L.mark('sti4')
        for s in range(5, 10):
            L.need('B%d' % (s - 3))
            if s == 9:
                L.need('f1i')
            L.extend(self.stage_dma(s)); L.mark('sti%d' % s)
        vUA = self.V.alloc('ua', 5, 1)
        sSel = self.s('sel', 4); sMU = self.s('mu')
        L.need('ua')
        for i in range(5):
            L('s_add_u32 m0, s%d, %d' % (sMU, L_ST + i * 1024))
            L('buffer_load_dwordx4 v%d, %s, 0 offen lds' % (vUA + i, sr(sSel, 4)), 'w2u')
            L.items[-1].gap = 50
        L.mark('w2i')
        L.need('B8'); L.need('f1ok')
        L.extend(self.tile_dma(0, L_A)); L.mark('tl0')
        L.need('B9')
        L.extend(self.tile_dma(1, L_B)); L.mark('tl1')
        L.need('BF')
        L.extend(self.tile_dma(2, L_C)); L.mark('tl2')
        L.need('BX1')
        L.extend(self.tile_dma(3, L_A)); L.mark('tl3')

        F('s_mul_i32 s%d, s%d, %d' % (self.sTB0, sJ, WQ_J))
        F('s_mul_i32 s%d, s%d, 10240' % (self.sMB, sW))
        F('s_add_u32 s%d, s%d, s%d' % (self.sTB, self.sTB0, self.sMB))
        F('v_mov_b32 v%d, 0x%x' % (t3, OOB))
        F('v_cmp_gt_u32 vcc, 24, v%d' % vT32)
        F('v_cndmask_b32 v%d, v%d, v%d, vcc' % (self.vLP, t3, vL16))
        F('s_mov_b32 s%d, %d' % (self.sDUM, L_DUMMY))
        sU = self.s('u'); sKS = self.s('ks')
        F('s_lshl_b32 s%d, s%d, 8' % (sU, sW))
        F('s_add_u32 s%d, s%d, s2' % (sU, sU))
        F('s_lshr_b32 s%d, s%d, 3' % (sKS, sU))
        F('s_mul_i32 s%d, s%d, 5120' % (sMU, sW))
        F('s_cmp_lt_u32 s%d, 48' % sKS)
        for i in range(4):
            F('s_cselect_b32 s%d, s%d, s%d' % (sSel + i, self.sW2 + i, self.sWO + i))
        a, b, c, d, e = vUA, vUA + 1, vUA + 2, vUA + 3, vUA + 4
        F('v_bfe_u32 v%d, v%d, 3, 2' % (a, vLane))
        F('v_bfe_u32 v%d, v%d, 2, 1' % (b, vLane))
        F('s_sub_u32 s%d, s%d, 48' % (sT, sKS))
        F('s_lshl_b32 s%d, s%d, 2' % (sT, sT))
        F('s_and_b32 s%d, s%d, 0xff' % (sT, sT))
        F('v_add_u32 v%d, s%d, v%d' % (c, sT, a))
        F('v_mul_u32_u24 v%d, 205, v%d' % (d, c))
        F('v_lshrrev_b32 v%d, 10, v%d' % (d, d))
        F('v_mul_u32_u24 v%d, 5, v%d' % (e, d))
        F('v_sub_u32 v%d, v%d, v%d' % (c, c, e))
        F('v_lshrrev_b32 v%d, 1, v%d' % (e, c))
        F('v_mul_u32_u24 v%d, 20, v%d' % (e, e))
        F('v_and_b32 v%d, 1, v%d' % (t1, c))
        F('v_lshl_add_u32 v%d, v%d, 3, v%d' % (e, t1, e))
        F('v_lshl_add_u32 v%d, v%d, 2, v%d' % (e, b, e))
        F('v_mad_u32_u24 v%d, v%d, 20, 16' % (t1, b))
        F('v_cmp_eq_u32 vcc, 4, v%d' % c)
        F('v_cndmask_b32 v%d, v%d, v%d, vcc' % (e, e, t1))
        F('v_mad_u32_u24 v%d, v%d, 40, v%d' % (e, d, e))
        F('v_lshrrev_b32 v%d, 1, v%d' % (c, a))
        F('v_and_b32 v%d, 1, v%d' % (a, a))
        F('v_lshlrev_b32 v%d, 4, v%d' % (c, c))
        F('v_lshl_add_u32 v%d, v%d, 2, v%d' % (c, a, c))
        F('v_lshl_add_u32 v%d, v%d, 3, v%d' % (c, b, c))
        F('s_lshl_b32 s%d, s%d, 5' % (sT, sKS))
        F('v_add_u32 v%d, s%d, v%d' % (c, sT, c))
        F('s_cmp_lt_u32 s%d, 48' % sKS)
        F('s_cselect_b64 vcc, -1, 0')
        F('v_cndmask_b32 v%d, v%d, v%d, vcc' % (c, e, c))
        F('v_add_u32 v%d, v%d, v%d' % (c, c, vC4))
        F('s_and_b32 s%d, s%d, 7' % (sT, sU))
        F('s_mul_i32 s%d, s%d, 160' % (sT, sT))
        F('s_cmp_lt_u32 s%d, 544' % sU)
        F('s_cselect_b32 s%d, s%d, 0x%x' % (sT, sT, OOB))
        F('v_mul_u32_u24 v%d, 1280, v%d' % (t2, c))
        F('v_add_u32 v%d, s%d, v%d' % (t2, sT, t2))
        vUB = self.V.alloc('ub', 5, 1)
        for i in range(5):
            F('v_add_u32 v%d, %d, v%d' % (t1, 64 * i, vLane))
            F('v_mul_u32_u24 v%d, 6554, v%d' % (t3, t1))
            F('v_lshrrev_b32 v%d, 16, v%d' % (t3, t3))
            F('v_mul_u32_u24 v%d, 10, v%d' % (vUB + i, t3))
            F('v_sub_u32 v%d, v%d, v%d' % (vUB + i, t1, vUB + i))
            F('v_lshlrev_b32 v%d, 2, v%d' % (t3, t3))
            F('ds_bpermute_b32 v%d, v%d, v%d' % (vUA + i, t3, t2))
        for i in range(5):
            F('v_lshl_add_u32 v%d, v%d, 4, v%d' % (vUA + i, vUB + i, vUA + i))
        F.mark('ua')
        F.need('B%d' % O.get('f1b', 2))
        self.nonce_check(F)
        F('v_mov_b32 v%d, v%d' % (self.vST + 1, self.vNONCE))
        F('buffer_store_dwordx2 %s, v%d, %s, 0 offen sc1' % (vr(self.vST, 2), self.vST + 2, sr(sWS, 4)), 'sts'); F.items[-1].gap = 10
        F('s_lshl_b32 s%d, s2, 2' % sT)
        F('s_add_u32 s%d, s%d, %d' % (sT, sT, F1_OFF))
        F('v_lshlrev_b32 v%d, 24, v0' % vF)
        F('v_add_u32 v%d, s%d, v%d' % (vF, sT, vF))
        self.flag_store(F, vF)
        F('v_min_u32 v%d, 59, v%d' % (vPA, vLane))
        F('v_lshlrev_b32 v%d, 4, v%d' % (vPA, vPA))
        F('v_add_u32 v%d, %d, v%d' % (vPA, F1_OFF, vPA))
        vSP = self.v('sp', 2); vSQ = self.v('sq')
        F('s_lshl2_add_u32 s%d, s%d, s%d' % (sT, sR, sW))
        F('s_lshl_b32 s%d, s%d, 8' % (sT, sT))
        F('s_add_u32 s%d, s%d, %d' % (sT, sT, ST_OFF))
        F('v_lshl_add_u32 v%d, v%d, 3, s%d' % (vSQ, vT32, sT))
        ta, tb = vUB, vUB + 1
        F('v_lshl_add_u32 v%d, v%d, 3, v%d' % (ta, vG, vR4))
        F('v_mul_u32_u24 v%d, 160, v%d' % (ta, ta))
        F('v_mad_u32_u24 v%d, v%d, 40, v%d' % (ta, vC4, ta))
        F('s_add_u32 s%d, s%d, %d' % (sT, sMU, L_ST))
        F('v_add_u32 v%d, s%d, v%d' % (ta, sT, ta))
        F('s_and_b32 s%d, s%d, 7' % (sT, sU))
        F('s_mul_i32 s%d, s%d, %d' % (sT2, sT, W2_C))
        F('s_mul_i32 s%d, s%d, 5120' % (sM, sKS))
        F('s_add_u32 s%d, s%d, s%d' % (sM, sM, sT2))
        F('s_add_u32 s%d, s%d, %d' % (sM, sM, W2_OFF))
        F('s_lshl_b32 s%d, s%d, 7' % (sT, sT))
        F('s_add_u32 s%d, s%d, s%d' % (sT, sT, sKS))
        F('s_lshl_b32 s%d, s%d, 2' % (sT, sT))
        F('s_add_u32 s%d, s%d, %d' % (sT, sT, F2_OFF))
        F('s_cmp_lt_u32 s%d, 544' % sU)
        F('s_cselect_b32 s%d, s%d, 0x%x' % (sM, sM, SOOB))
        F('s_cselect_b32 s%d, s%d, 0x%x' % (sT, sT, SOOB))
        self.lane0(F, vF, sT)
        F('v_add_u32 v%d, 4096, v%d' % (tb, vL16))
        F.need('B6')
        self.poll_issue(F, vPL, 4, vPA, 'f1'); F.items[-1].gap = 20
        F('buffer_load_dwordx2 %s, v%d, %s, 0 offen sc1' % (vr(vSP, 2), vSQ, sr(sWS, 4)), 'sp'); F.items[-1].gap = 10
        F.mark('f1i')
        self.poll_check(F, vPL, 4, vPA, 1)
        F.mark('f1ok')
        self.poll_check2(F, vSP, vSQ)
        F('v_and_b32 v%d, 0xffff0000, v%d' % (vSD, vSP))
        F('v_rcp_f32 v%d, v%d' % (vRS, vSD))
        F('v_lshlrev_b32 v%d, 16, v%d' % (t1, vSP))
        F('v_cvt_pk_bf16_f32 v%d, v%d, v%d' % (vNM, t1, t1))
        F('v_mul_f32 v%d, 0.5, v%d' % (t1, t1))
        F('v_cvt_pk_bf16_f32 v%d, v%d, v%d' % (vNH, t1, t1))
        F('v_mul_f32 v%d, 0x%x, v%d' % (vC1, LOG2E | 0x80000000, vRS))
        for i in range(1, 4):
            F('v_mov_b32 v%d, v%d' % (vNM + i, vNM))
            F('v_mov_b32 v%d, v%d' % (vNH + i, vNH))
        F.mark('stats')
        vU = vW2
        F.need('w2i')
        F.wait_vm('w2u')
        for ft in range(5):
            for run in range(2):
                F('ds_read_b64_tr_b16 %s, v%d offset:%d' % (vr(vU + 4 * ft + 2 * run, 2), ta, run * 640 + ft * 8))
        for ft in range(5):
            F('buffer_store_dwordx4 %s, v%d, %s, s%d offen offset:%d sc1' %
              (vr(vU + 4 * ft, 4), vL16 if ft < 4 else tb, sr(sWS, 4), sM, (ft & 3) * 1024), 'w2s')
            F.items[-1].gap = 50
        F('v_lshlrev_b32 v%d, 4, v%d' % (t1, vT32))
        F('v_add_u32 v%d, %d, v%d' % (t1, L_CT, t1))
        F('s_lshl_b32 s%d, s%d, 2' % (sT, sW))
        F('v_add_u32 v%d, s%d, v%d' % (t2, sT, t1))
        F.need('cs')
        for T in range(3):
            self.hilo(F, vCS + 4 * T, t3, vCS + 4 * T + 1)
            F('ds_write_b32 v%d, v%d offset:%d' % (t2, vCS + 4 * T + 1, T * 512))
        F('v_mov_b32 v%d, v%d' % (vCS + 2, t1))
        F.mark('ct')
        self.ctx = dict(M=M, L=L, F=F, vSD=vSD, vC1=vC1, vW2=vW2)

    def poll_check2(self, P, vdst, vaddr):
        self.nlab += 1
        L = 'Lpoll%d' % self.nlab
        c = 'v_cmp_ne_u32 vcc, s%d, v%d' % (self.sNONCE, vdst + 1)
        P(c)
        P('s_cbranch_vccnz %s' % L)
        P('%s_ret:' % L)
        txt = ['%s:' % L, '    s_mov_b32 s%d, 0x20000' % self.sCNT, '%s_loop:' % L, '    s_nop 7',
               '    buffer_load_dwordx2 %s, v%d, %s, 0 offen sc1' % (vr(vdst, 2), vaddr, sr(self.sWS, 4)),
               '    s_waitcnt vmcnt(0)', '    ' + c, '    s_nop 7', '    s_cbranch_vccz %s_done' % L,
               '    s_sub_u32 s%d, s%d, 1' % (self.sCNT, self.sCNT),
               '    s_cmp_lg_u32 s%d, 0' % self.sCNT,
               '    s_cbranch_scc1 %s_loop' % L,
               '%s_done:' % L, '    s_nop 7', '    s_branch %s_ret' % L]
        self.ool.append('\n'.join(txt))
```

```python
from gen2a import *


def phase3(self, E):
    globals().update({k: v for k, v in E.items() if k not in ('E',)})
    S, V, O = self.S, self.V, self.o
    mf, where = self.p3['mf'], self.p3['where']
    vKI = self.v('ki')
    F('v_cmp_eq_u32 vcc, 24, v%d' % vT32)
    F('v_cndmask_b32 v%d, v%d, 21, vcc' % (t1, vT32))
    F('v_mad_u32_u24 v%d, v%d, 22, v%d' % (t2, vHF, t1))
    F('v_cmp_gt_u32 vcc, 22, v%d' % t1)
    F('v_cmp_ne_u32 s[%d:%d], 21, v%d' % (sPC, sPC + 1, vT32))
    F('s_and_b64 vcc, vcc, s[%d:%d]' % (sPC, sPC + 1))
    F('v_mov_b32 v%d, 0x%x' % (t3, OOB >> 4))
    F('v_cndmask_b32 v%d, v%d, v%d, vcc' % (vKI, t3, t2))
    sKB = self.s('kb')
    F('s_lshl1_add_u32 s%d, s%d, s%d' % (sKB, sJ, sHH))
    F('s_lshl4_add_u32 s%d, s%d, s%d' % (sT2, sKB, sR))
    F('s_mul_i32 s%d, s%d, 1792' % (sM, sT2))
    F('s_add_u32 s%d, s%d, %d' % (sM, sM, KV_OFF))
    F('s_bitcmp1_b32 s%d, 0' % sW)
    F('s_cselect_b32 s%d, 0x%x, s%d' % (sSO, SOOB, sM))
    F('s_cselect_b32 s%d, s%d, 0x%x' % (sM, sM, SOOB))
    vK16 = self.v('k16'); vK8 = self.v('k8')
    F('v_lshlrev_b32 v%d, 4, v%d' % (vK16, vKI))
    F('v_lshlrev_b32 v%d, 3, v%d' % (vK8, vKI))
    F('s_and_b32 s%d, s%d, 1' % (sT, sW))
    F('s_lshl1_add_u32 s%d, s%d, s%d' % (sT2, sT2, sT))
    F('s_lshl_b32 s%d, s%d, 2' % (sT2, sT2))
    F('s_add_u32 s%d, s%d, %d' % (sT2, sT2, FK_OFF))
    self.lane0(F, vF, sT2)
    F('s_lshl_b32 s%d, s%d, 5' % (sT2, sKB))
    F('s_lshl4_add_u32 s%d, s%d, s%d' % (sT2, sT, sT2))
    F('v_and_b32 v%d, 15, v%d' % (t1, vLane))
    F('v_add_u32 v%d, s%d, v%d' % (t1, sT2, t1))
    F('v_lshlrev_b32 v%d, 2, v%d' % (t1, t1))
    F('v_add_u32 v%d, %d, v%d' % (vPA, FK_OFF, t1))
    V.release('ki')
    F.need('kvd')
    V.release('rb', 'rc', 'negm', 'lp', 'ad')
    vKF = vQ + 32
    vPQ = vQ
    for i in range(8):
        F('v_cvt_pk_bf16_f32 v%d, v%d, v%d' % (vKF + i, vKD + 2 * i, vKD + 2 * i + 1))
    F('buffer_store_dwordx4 %s, v%d, %s, s%d offen sc1' % (vr(vKF, 4), vK16, sr(sWS, 4), sSO), 'kvs')
    F('buffer_store_dwordx4 %s, v%d, %s, s%d offen offset:704 sc1' % (vr(vKF + 4, 4), vK16, sr(sWS, 4), sSO), 'kvs')
    F('buffer_store_dwordx2 %s, v%d, %s, s%d offen offset:1408 sc1' % (vr(vKF, 2), vK8, sr(sWS, 4), sM), 'kvs')
    for it in F.items[-3:]:
        it.gap = 20
    phi_pre(F, vPQ, [(vQ + 40, 8), (vQ + 48, 8), (vQ + 56, 4)], True, [None, None, None])
    if O.get('kvf', 0) == 0:
        F.wait_vm('kvs'); self.flag_store(F, vF); F.items[-1].gap = 10
    softmax(F, vPQ, vPH)
    if O.get('kvf', 0) == 1:
        F.wait_vm('kvs'); self.flag_store(F, vF); F.items[-1].gap = 10
    if O.get('fki', 1) == 0:
        self.poll_issue(F, vPL, 1, vPA, 'fk'); F.items[-1].gap = 10
    softmax(F, vPQ + 16, vPH + 12)
    if O.get('fki', 1) == 1:
        self.poll_issue(F, vPL, 1, vPA, 'fk'); F.items[-1].gap = 10
    for hh in range(2):
        F('v_mov_b32 v%d, 0' % (vPH + 12 * hh + 10))
        F('v_mov_b32 v%d, 0' % (vPH + 12 * hh + 11))
    V.release('accQ', 'sm', 'kb', 'ta', 'rs2', 'rstd', 'wphi')
    vKP = V.at('kp', 80, 80); vSU = V.at('su', 60, 20)
    F('s_lshl_b32 s%d, s%d, 4' % (sT2, sKB))
    F('s_lshl3_add_u32 s%d, s%d, s%d' % (sT2, sT, sT2))
    F('s_mul_i32 s%d, s%d, 1792' % (sT2, sT2))
    F('s_add_u32 s%d, s%d, %d' % (sT2, sT2, KV_OFF))
    sLO = self.s('lo'); sHI = self.s('hi')
    F('s_mov_b32 s%d, 0x3f80' % sLO)
    F('s_mov_b32 s%d, 0x3f800000' % sHI)
    vOA = self.v('oa', 3)
    F('s_mul_i32 s%d, s%d, 5' % (sM, sJ))
    for n, add in enumerate((0, 2, 4)):
        F('v_add_u32 v%d, s%d, v%d' % (t1, sM, vHF))
        if add:
            F('v_add_u32 v%d, %d, v%d' % (t1, add, t1))
        F('v_lshrrev_b32 v%d, 2, v%d' % (t2, t1))
        F('v_and_b32 v%d, 3, v%d' % (t1, t1))
        F('v_lshl_add_u32 v%d, v%d, 12, v%d' % (t2, t2, vTK))
        F('v_lshl_add_u32 v%d, v%d, 8, v%d' % (vOA + n, t1, t2))
        if add == 4:
            F('v_lshl_add_u32 v%d, v%d, 31, v%d' % (vOA + n, vHF, vOA + n))
    self.poll_check(F, vPL, 1, vPA, 4)
    self.stamp(F)
    for p in range(8):
        b = vKP + 10 * p
        F('buffer_load_dwordx4 %s, v%d, %s, s%d offen sc1' % (vr(b, 4), vK16, sr(sWS, 4), sT2)); F.items[-1].gap = 55
        F('buffer_load_dwordx4 %s, v%d, %s, s%d offen offset:704 sc1' % (vr(b + 4, 4), vK16, sr(sWS, 4), sT2)); F.items[-1].gap = 55
        F('buffer_load_dwordx2 %s, v%d, %s, s%d offen offset:1408 sc1' % (vr(b + 8, 2), vK8, sr(sWS, 4), sT2)); F.items[-1].gap = 30
        if p < 7:
            F('s_add_u32 s%d, s%d, 1792' % (sT2, sT2))
    V.release('k16', 'k8')
    F('s_mul_i32 s%d, s%d, 5120' % (sT2, sW))
    F('s_add_u32 s%d, s%d, %d' % (sT2, sT2, L_KVS))
    F('v_add_u32 v%d, s%d, v%d' % (t1, sT2, vL16))
    F('v_add_u32 v%d, %d, v%d' % (t2, L_KVS, vL16))
    F('s_add_u32 s%d, s%d, %d' % (sM, sHB, 48 * 4096))
    F('s_add_u32 s%d, s%d, %d' % (sT2, sFH, FO_OFF))
    self.lane0(F, vF, sT2)
    F('s_add_u32 s%d, s%d, %d' % (sT2, sFC, FO_OFF // 4))
    F('v_and_b32 v%d, 7, v%d' % (t3, vLane))
    F('v_add_u32 v%d, s%d, v%d' % (t3, sT2, t3))
    F('v_lshlrev_b32 v%d, 2, v%d' % (vPA, t3))
    for p in range(8):
        for i in range(10):
            for h, sc in ((0, sLO), (1, sHI)):
                c = '0' if p == 0 else 'v%d' % (vSU + 2 * i + h)
                F('v_dot2_f32_bf16 v%d, v%d, s%d, %s' % (vSU + 2 * i + h, vKP + 10 * p + i, sc, c))
    S.release('lo', 'hi')
    for i in range(5):
        F('ds_write_b128 v%d, %s offset:%d' % (t1, vr(vSU + 4 * i, 4), i * 1024))
    F.wait_lgkm()
    F('s_barrier')
    for ww in range(4):
        for i in range(5):
            F('ds_read_b128 %s, v%d offset:%d' % (vr(vKP + 20 * ww + 4 * i, 4), t2, ww * 5120 + i * 1024))
    kt = [vKP + 20, vKP + 60]; od = [vKP, vKP + 40]; vKT = vSU
    for hh in range(2):
        a, b = vKP + 40 * hh, vKP + 40 * hh + 20
        for i in range(0, 20, 2):
            F('v_pk_add_f32 %s, %s, %s' % (vr(a + i, 2), vr(a + i, 2), vr(b + i, 2)))
        for i in range(10):
            F('v_cvt_pk_bf16_f32 v%d, v%d, v%d' % (kt[hh] + i, a + 2 * i, a + 2 * i + 1))
        F('v_mov_b32 v%d, 0' % (kt[hh] + 10))
        F('v_mov_b32 v%d, 0' % (kt[hh] + 11))
        for ks in range(3):
            c = '0' if ks == 0 else vr(od[hh], 16)
            F('v_mfma_f32_32x32x16_bf16 %s, %s, %s, %s' % (vr(od[hh], 16), vr(kt[hh] + 4 * ks, 4), vr(vPH + 12 * hh + 4 * ks, 4), c))
    F('v_cmp_eq_u32 vcc, 0, v%d' % vHF)
    vDN = self.v('dn', 4)
    for hh in range(2):
        d = od[hh]
        F('v_cndmask_b32 v%d, v%d, v%d, vcc' % (vDN + 2 * hh, d + 8, d + 12))
        F('v_add_f32 v%d, 0x358637bd, v%d' % (vDN + 2 * hh, vDN + 2 * hh))
        F('v_rcp_f32 v%d, v%d' % (vDN + 2 * hh, vDN + 2 * hh))
        for i in range(0, 12, 2):
            F('v_pk_mul_f32 %s, %s, %s op_sel_hi:[1,0]' % (vr(d + i, 2), vr(d + i, 2), vr(vDN + 2 * hh, 2)))
        for i in range(4):
            F('v_cvt_pk_bf16_f32 v%d, v%d, v%d' % (vKT + 4 * hh + i, d + 2 * i, d + 2 * i + 1))
        for i in range(2):
            F('v_cvt_pk_bf16_f32 v%d, v%d, v%d' % (vKT + 8 + 2 * hh + i, d + 8 + 2 * i, d + 9 + 2 * i))
        F('buffer_store_dwordx4 %s, v%d, %s, s%d offen sc1' % (vr(vKT + 4 * hh, 4), vOA + hh, sr(sWS, 4), sM), 'ost')
    F('buffer_store_dwordx4 %s, v%d, %s, s%d offen sc1' % (vr(vKT + 8, 4), vOA + 2, sr(sWS, 4), sM), 'ost')
    self.stamp(F)
    V.release('kp', 'oa', 'dn', 'ph', 'tk')
    vEA = self.v('ea', 6); vER = self.v('er', 2); vXO = self.v('xo'); vXR = self.v('xres', 10)
    vS3 = V.at('s3', 140, 20); vRD = V.at('rd', 80, 60)
    for v in range(3):
        F('s_add_u32 s%d, s%d, %d' % (sT, sW, v + 1))
        F('s_and_b32 s%d, s%d, 3' % (sT, sT))
        F('s_mul_i32 s%d, s%d, 15360' % (sT, sT))
        F('s_add_u32 s%d, s%d, %d' % (sT, sT, L_EX1 + v * 5120))
        F('v_add_u32 v%d, s%d, v%d' % (vEA + v, sT, vL16))
        F('v_add_u32 v%d, %d, v%d' % (vEA + 3 + v, L_EX2 - L_EX1, vEA + v))
    F('s_mul_i32 s%d, s%d, 15360' % (sT, sW))
    F('v_add_u32 v%d, s%d, v%d' % (vER, sT, vL16))
    F('v_add_u32 v%d, %d, v%d' % (vER + 1, L_EX2 - L_EX1, vER))
    F('s_lshl2_add_u32 s%d, s%d, s%d' % (sT2, sR3, sW))
    F('s_mul_i32 s%d, s%d, %d' % (sT2, sT2, 16 * 1280))
    F('s_mul_i32 s%d, s%d, 160' % (sT, sC3))
    F('s_add_u32 s%d, s%d, s%d' % (sT2, sT2, sT))
    F('v_and_b32 v%d, 15, v%d' % (t1, vLane))
    F('v_mul_u32_u24 v%d, 1280, v%d' % (t1, t1))
    F('v_mad_u32_u24 v%d, v%d, 40, v%d' % (t1, vG, t1))
    F('v_add_u32 v%d, s%d, v%d' % (vXO, sT2, t1))
    F.wait_vm('ost')
    self.flag_store(F, vF); F.items[-1].gap = 10
    V.release('su')
    F.need(O.get('fo_at', 'lW14_0'))
    self.poll_issue(F, vPL, 1, vPA, 'fo'); F.items[-1].gap = 10
    F('buffer_load_dwordx4 %s, v%d, %s, 0 offen' % (vr(vXR, 4), vXO, sr(self.sX, 4)))
    F('buffer_load_dwordx4 %s, v%d, %s, 0 offen offset:16' % (vr(vXR + 4, 4), vXO, sr(self.sX, 4)))
    F('buffer_load_dwordx2 %s, v%d, %s, 0 offen offset:32' % (vr(vXR + 8, 2), vXO, sr(self.sX, 4)))
    self.poll_check(F, vPL, 1, vPA, 5)
    F.mark('fook')
    self.stamp(F)

    def exch(x, abase, own, mk):
        for v in range(3):
            F.need(mk(v))
            for ft in range(5):
                F('ds_write_b128 v%d, %s offset:%d' % (vEA + 3 * x + v, ar(abase + 20 * v + 4 * ft, 4), ft * 1024))
                F.items[-1].cost = 16
        F.wait_lgkm()
        F('s_barrier')
        for sl in range(3):
            for ft in range(5):
                F('ds_read_b128 %s, v%d offset:%d' % (vr(vRD + 20 * sl + 4 * ft, 4), vER + x, sl * 5120 + ft * 1024))
        for i in range(0, 20, 2):
            F('v_pk_add_f32 %s, %s, %s' % (vr(vRD + i, 2), vr(vRD + i, 2), vr(vRD + 20 + i, 2)))
        for i in range(0, 20, 2):
            F('v_pk_add_f32 %s, %s, %s' % (vr(vRD + i, 2), vr(vRD + i, 2), vr(vRD + 40 + i, 2)))
        F.need(mk(3))
        for i in range(0, 20, 2):
            F('v_pk_add_f32 %s, %s, %s' % (vr(own + i, 2), vr(own + i, 2), vr(vRD + i, 2)))

    exch(0, 0, vO2, lambda v: 'm%d' % (220 + 5 * v + 4))
    vGT = vRD + 20
    F('s_mov_b32 s%d, 0x%x' % (sT2, LOG2E | 0x80000000))
    for i in range(20):
        F('v_mul_f32 v%d, s%d, v%d' % (vGT + i, sT2, vO2 + i))
    for i in range(20):
        F('v_exp_f32 v%d, v%d' % (vGT + i, vGT + i))
    for i in range(0, 20, 2):
        F('v_pk_add_f32 %s, %s, 1.0 op_sel_hi:[1,0]' % (vr(vGT + i, 2), vr(vGT + i, 2)))
    for i in range(20):
        F('v_rcp_f32 v%d, v%d' % (vGT + i, vGT + i))
    for i in range(0, 20, 2):
        F('v_pk_mul_f32 %s, %s, %s' % (vr(vO2 + i, 2), vr(vGT + i, 2), vr(vO2 + i, 2)))
    vXF = V.at('xf', 160, 20)
    for i in range(10):
        F('v_lshlrev_b32 v%d, 16, v%d' % (vXF + 2 * i, vXR + i))
        F('v_and_b32 v%d, 0xffff0000, v%d' % (vXF + 2 * i + 1, vXR + i))
    exch(1, 60, vS3, lambda v: 'm%d' % (240 + 25 * v + 24))
    self.stamp(F)
    for i in range(0, 20, 2):
        F('v_pk_fma_f32 %s, %s, %s, %s' % (vr(vXF + i, 2), vr(vS3 + i, 2), vr(vO2 + i, 2), vr(vXF + i, 2)))
    for i in range(10):
        F('v_cvt_pk_bf16_f32 v%d, v%d, v%d' % (vXR + i, vXF + 2 * i, vXF + 2 * i + 1))
    fl = {0: '', 1: ' sc1', 2: ' nt', 3: ' sc0 sc1'}[O.get('ost', 0)]
    F('buffer_store_dwordx4 %s, v%d, %s, 0 offen%s' % (vr(vXR, 4), vXO, sr(self.sOUT, 4), fl))
    F('buffer_store_dwordx4 %s, v%d, %s, 0 offen offset:16%s' % (vr(vXR + 4, 4), vXO, sr(self.sOUT, 4), fl))
    F('buffer_store_dwordx2 %s, v%d, %s, 0 offen offset:32%s' % (vr(vXR + 8, 2), vXO, sr(self.sOUT, 4), fl))
    for i, (st, v, ft) in enumerate(mf):
        M.need('lW%d_%d' % (st, ft)); M.need('lA%d_%d' % (st, v))
        if st < 12:
            d = accH(v, ft)
        else:
            d = ar(60 + 20 * v + 4 * ft, 4) if v < 3 else vr(vS3 + 4 * ft, 4)
        c = '0' if st in (0, 12) else d
        M('v_mfma_f32_16x16x32_bf16 %s, %s, %s, %s' % (d, where[('W', st, ft)], where[('A', st, v)], c))
        M.mark('m%d' % i)
        if i in (119, 239):
            self.stamp(M)
    self.sched(M, L, F, 'main', slack=O.get('slack', 1))
    mk = self.md.marks
    print('  marks:', ' '.join('%s=%d' % (k, mk[k]) for k in ('B0', 'B5', 'B9', 'BF', 'T0', 'T1', 'T2', 'T3', 'silu', 'kvw', 'kvd', 'f2ok', 'fhok', 'm119', 'm239', 'fook', 'm339')))
```

```python
from gen2b import *


class Gen2(GenB):
    def build(self):
        self.prologue()
        self.pass12()
        S, V, O = self.S, self.V, self.o
        sW, sR, sJ, sT, sT2, sM, sWS, sSO = self.sW, self.sR, self.sJ, self.sT, self.sT2, self.sM, self.sWS, self.sSO
        sR3, sC3, sLS, sPC = self.sR3, self.sC3, self.sLS, self.sPC
        t1, t2, t3 = self.t1, self.t2, self.t3
        vLane, vL16, vG, vR4, vC4, vHF, vT32 = self.vLane, self.vL16, self.vG, self.vR4, self.vC4, self.vHF, self.vT32
        vF, vPL, vPA, vQ, vH, vWP, vRS = self.vF, self.vPL, self.vPA, self.vQ, self.vH, self.vWP, self.vRS
        M, L, F = self.ctx['M'], self.ctx['L'], self.ctx['F']
        vSD, vC1 = self.ctx['vSD'], self.ctx['vC1']
        F.need('BF')
        V.release('xd', 'w1d', 'wr', 'wc', 'sel', 'ua', 'ub', 'sp', 'sq', 'stat')
        if self.ts != 3:
            S.release('DBG')
        S.release('mx', 'mw', 'W1', 'sel', 'mu', 'u', 'ks', 'W2', 'WO')
        vTK = self.v('tk'); vHA = self.v('ha')
        sHB = self.s('hb'); sFH = self.s('fh'); sFC = self.s('fc')
        F('s_lshr_b32 s%d, s%d, 1' % (sT, sW))
        F('s_lshl1_add_u32 s%d, s%d, s%d' % (sHB, sR, sT))
        F('s_lshl4_add_u32 s%d, s%d, s%d' % (sFH, sHB, sJ))
        F('s_mul_i32 s%d, s%d, %d' % (sHB, sHB, HO_R))
        F('s_and_b32 s%d, s%d, 1' % (sT, sW))
        F('s_lshl1_add_u32 s%d, s%d, s%d' % (sFH, sFH, sT))
        F('s_lshl_b32 s%d, s%d, 2' % (sFH, sFH))
        F('s_lshl_b32 s%d, s%d, 11' % (sT, sT))
        F('s_add_u32 s%d, s%d, s%d' % (sHB, sHB, sT))
        F('s_add_u32 s%d, s%d, %d' % (sHB, sHB, HO_OFF))
        F('v_and_b32 v%d, 15, v%d' % (t2, vLane))
        F('v_lshlrev_b32 v%d, 4, v%d' % (t2, t2))
        F('v_bfe_u32 v%d, v%d, 4, 1' % (t3, vLane))
        F('v_lshl_add_u32 v%d, v%d, 10, v%d' % (vTK, t3, t2))
        F('v_lshl_add_u32 v%d, v%d, 8, v%d' % (vHA, vHF, vTK))
        F('s_mul_i32 s%d, s%d, %d' % (sT, sJ, 3 * 4096))
        F('s_add_u32 s%d, s%d, s%d' % (sSO, sHB, sT))
        sWB = [self.s('wbh'), self.s('wbo')]; sAB = [self.s('abh'), self.s('abo')]
        v4k = self.v('v4k'); vAV = self.v('av', 4)
        F('s_mul_i32 s%d, s%d, %d' % (sT, sC3, W2_C))
        F('s_mul_i32 s%d, s%d, %d' % (sT2, sW, 12 * 5120))
        F('s_add_u32 s%d, s%d, s%d' % (sWB[0], sT, sT2))
        F('s_mul_i32 s%d, s%d, %d' % (sT2, sW, 5 * 5120))
        F('s_add_u32 s%d, s%d, s%d' % (sWB[1], sT, sT2))
        F('s_mul_i32 s%d, s%d, %d' % (sT, sR3, HO_R))
        F('s_mul_i32 s%d, s%d, %d' % (sT2, sW, 12 * 4096))
        F('s_add_u32 s%d, s%d, s%d' % (sAB[0], sT, sT2))
        F('s_mul_i32 s%d, s%d, %d' % (sT2, sW, 5 * 4096))
        F('s_add_u32 s%d, s%d, s%d' % (sAB[1], sT, sT2))
        F('v_add_u32 v%d, 4096, v%d' % (v4k, vL16))
        for v in range(4):
            F('s_add_u32 s%d, s%d, %d' % (sT, sW, v + 1))
            F('s_and_b32 s%d, s%d, 3' % (sT, sT))
            F('s_lshl_b32 s%d, s%d, 10' % (sT, sT))
            F('v_add_u32 v%d, s%d, v%d' % (vAV + v, sT, vL16))
        F('s_mul_i32 s%d, s%d, 12' % (sT2, sW))
        F('s_lshl_b32 s%d, s%d, 7' % (sM, sC3))
        F('s_add_u32 s%d, s%d, s%d' % (sT2, sT2, sM))
        F('v_min_u32 v%d, 16, v%d' % (t1, vLane))
        F('v_add_u32 v%d, s%d, v%d' % (t2, sT2, t1))
        F('s_mul_i32 s%d, s%d, 5' % (sT2, sW))
        F('s_add_u32 s%d, s%d, s%d' % (sT2, sT2, sM))
        F('s_add_u32 s%d, s%d, %d' % (sT2, sT2, 48 - 12))
        F('v_add_u32 v%d, s%d, v%d' % (t3, sT2, t1))
        F('v_cmp_gt_u32 vcc, 12, v%d' % t1)
        F('v_cndmask_b32 v%d, v%d, v%d, vcc' % (t2, t3, t2))
        F('v_lshlrev_b32 v%d, 2, v%d' % (t2, t2))
        F('v_add_u32 v%d, %d, v%d' % (vPA, F2_OFF, t2))
        F('s_lshl_b32 s%d, s%d, 5' % (sFC, sR3))
        F('s_lshl3_add_u32 s%d, s%d, s%d' % (sFC, sW, sFC))
        F.wait_vm('w2s')
        self.flag_store(F, vF); F.items[-1].gap = 10
        F.need('corr')
        vKB = 68; vPH = 160
        vE = vKB; vPK = vQ + 56
        for T in range(3):
            for ip in range(2):
                a = vH + 16 * T + 8 * ip
                pk = vPK + 4 * ip
                for i in range(8):
                    F('v_mul_f32 v%d, v%d, v%d' % (vE + i, vC1, a + i))
                for i in range(8):
                    F('v_exp_f32 v%d, v%d' % (vE + i, vE + i))
                for i in range(8):
                    F('v_fma_f32 v%d, v%d, v%d, v%d' % (vE + i, vE + i, vSD, vSD))
                for i in range(8):
                    F('v_rcp_f32 v%d, v%d' % (vE + i, vE + i))
                for i in range(8):
                    F('v_mul_f32 v%d, v%d, v%d' % (a + i, a + i, vE + i))
                for i in range(4):
                    F('v_cvt_pk_bf16_f32 v%d, v%d, v%d' % (pk + i, a + 2 * i, a + 2 * i + 1))
                F('buffer_store_dwordx4 %s, v%d, %s, s%d offen offset:%d sc1' % (vr(pk, 4), vHA, sr(sWS, 4), sSO, ip * 512), 'hst')
            if T < 2:
                F('s_add_u32 s%d, s%d, 4096' % (sSO, sSO))
            if T == O.get('f2i', 0):
                self.poll_issue(F, vPL, 1, vPA, 'f2'); F.items[-1].gap = 10
            if T == O.get('f2c', 1):
                self.poll_check(F, vPL, 1, vPA, 2)
                F.mark('f2ok')
        F.mark('silu')
        V.release('ha', 'sd', 'c1', 'negmh')
        F('s_add_u32 s%d, s%d, %d' % (sT, sFH, FH_OFF))
        self.lane0(F, vF, sT)
        F('s_add_u32 s%d, s%d, %d' % (sT2, sFC, FH_OFF // 4))
        F('v_and_b32 v%d, 7, v%d' % (t1, vLane))
        F('v_add_u32 v%d, s%d, v%d' % (t1, sT2, t1))
        F('v_lshlrev_b32 v%d, 2, v%d' % (vPA, t1))
        sL2E = self.s('l2e')
        vSM = self.V.alloc('sm', 5, 1); vTA = self.v('ta'); vRS2 = self.v('rs2', 2); vAD = self.V.alloc('ad', 6, 1)
        F('s_mov_b32 s%d, 0x%x' % (sL2E, LOG2E))
        F('v_mov_b32 v%d, v%d' % (vRS2, vRS))
        F('s_mul_i32 s%d, s%d, %d' % (sT, sW, 32 * TSTR))
        F('s_add_u32 s%d, s%d, %d' % (sT, sT, L_B))
        F('v_mul_u32_u24 v%d, %d, v%d' % (vTA, TSTR, vT32))
        F('v_add_u32 v%d, s%d, v%d' % (vTA, sT, vTA))

        def pack(Q, dst, src, n, pk):
            for i in range(0, n, 2):
                if pk:
                    Q('v_pk_mul_f32 %s, %s, %s op_sel_hi:[1,0]' % (vr(src + i, 2), vr(src + i, 2), vr(vRS2, 2)))
                else:
                    Q('v_mul_f32 v%d, v%d, v%d' % (src + i, vRS, src + i))
                    Q('v_mul_f32 v%d, v%d, v%d' % (src + i + 1, vRS, src + i + 1))
            for i in range(0, n, 2):
                Q('v_cvt_pk_bf16_f32 v%d, v%d, v%d' % (dst + i // 2, src + i, src + i + 1))

        def softmax(Q, pq, out):
            mx, mn, sp, sn = vSM, vSM + 1, vSM + 2, vSM + 3
            ep, en = vKB, pq
            Q('v_max3_f32 v%d, v%d, v%d, v%d' % (mx, pq, pq + 1, pq + 2))
            Q('v_min3_f32 v%d, v%d, v%d, v%d' % (mn, pq, pq + 1, pq + 2))
            for i in (3, 5, 7):
                Q('v_max3_f32 v%d, v%d, v%d, v%d' % (mx, mx, pq + i, pq + i + 1))
                Q('v_min3_f32 v%d, v%d, v%d, v%d' % (mn, mn, pq + i, pq + i + 1))
            Q('v_max_f32 v%d, v%d, v%d' % (mx, mx, pq + 9))
            Q('v_min_f32 v%d, v%d, v%d' % (mn, mn, pq + 9))
            Q('v_mov_b32 v%d, v%d' % (sp, mx))
            Q('v_mov_b32 v%d, v%d' % (sn, mn))
            Q('s_nop 0')
            Q('v_permlane32_swap_b32 v%d, v%d' % (mx, sp))
            Q('v_permlane32_swap_b32 v%d, v%d' % (mn, sn))
            Q('v_max_f32 v%d, v%d, v%d' % (mx, mx, sp))
            Q('v_min_f32 v%d, v%d, v%d' % (mn, mn, sn))
            Q('v_mul_f32 v%d, s%d, v%d' % (mx, sL2E, mx))
            Q('v_mul_f32 v%d, s%d, v%d' % (mn, sL2E, mn))
            for i in range(10):
                Q('v_fma_f32 v%d, v%d, s%d, -v%d' % (ep + i, pq + i, sL2E, mx))
                Q('v_fma_f32 v%d, -v%d, s%d, v%d' % (en + i, pq + i, sL2E, mn))
            for i in range(10):
                Q('v_exp_f32 v%d, v%d' % (ep + i, ep + i))
                Q('v_exp_f32 v%d, v%d' % (en + i, en + i))
            Q('v_add_f32 v%d, v%d, v%d' % (sp, ep, ep + 1))
            Q('v_add_f32 v%d, v%d, v%d' % (sn, en, en + 1))
            for i in range(2, 10):
                Q('v_add_f32 v%d, v%d, v%d' % (sp, sp, ep + i))
                Q('v_add_f32 v%d, v%d, v%d' % (sn, sn, en + i))
            Q('v_mov_b32 v%d, v%d' % (mx, sp))
            Q('v_mov_b32 v%d, v%d' % (mn, sn))
            Q('s_nop 0')
            Q('v_permlane32_swap_b32 v%d, v%d' % (sp, mx))
            Q('v_permlane32_swap_b32 v%d, v%d' % (sn, mn))
            Q('v_add_f32 v%d, v%d, v%d' % (sp, sp, mx))
            Q('v_add_f32 v%d, v%d, v%d' % (sn, sn, mn))
            Q('v_rcp_f32 v%d, v%d' % (sp, sp))
            Q('v_rcp_f32 v%d, v%d' % (sn, sn))
            for i in range(10):
                Q('v_mul_f32 v%d, v%d, v%d' % (ep + i, sp, ep + i))
                Q('v_mul_f32 v%d, v%d, v%d' % (en + i, sn, en + i))
            for i in range(4):
                Q('v_cvt_pk_bf16_f32 v%d, v%d, v%d' % (out + i, ep + 2 * i, ep + 2 * i + 1))
                Q('v_cvt_pk_bf16_f32 v%d, v%d, v%d' % (out + 4 + i, en + 2 * i, en + 2 * i + 1))
            Q('v_cvt_pk_bf16_f32 v%d, v%d, v%d' % (out + 8, ep + 8, ep + 9))
            Q('v_cvt_pk_bf16_f32 v%d, v%d, v%d' % (out + 9, en + 8, en + 9))

        def phi_pre(Q, vPQ, wins, pk, needs):
            for wi, (src, n) in enumerate(wins):
                if needs[wi]:
                    Q.need(needs[wi])
                pack(Q, vKB + 4 * wi, src, n, pk)
                for i in range(n // 2, 4):
                    Q('v_mov_b32 v%d, 0' % (vKB + 4 * wi + i))
                if wi:
                    hh = wi - 1
                    for win in range(2):
                        c = '0' if win == 0 else vr(vPQ + 16 * hh, 16)
                        Q('v_mfma_f32_32x32x16_bf16 %s, %s, %s, %s' %
                          (vr(vPQ + 16 * hh, 16), vr(vWP + 8 * hh + 4 * win, 4), vr(vKB + 4 * (hh + win), 4), c))

        vPQ = vH
        phi_pre(F, vPQ, [(vQ, 8), (vQ + 8, 8), (vQ + 16, 4)], False, ['T0', None, 'T1'])
        F.wait_vm('hst')
        self.flag_store(F, vF); F.items[-1].gap = 10
        F('v_lshl_add_u32 v%d, v%d, 3, v%d' % (vSM + 4, vHF, vTA))
        for hh in range(2):
            softmax(F, vPQ + 16 * hh, vPH + 12 * hh)
            F.need('BX2')
            for i in range(5):
                F('ds_write_b64 v%d, %s offset:%d' % (vSM + 4, vr(vPH + 12 * hh + 2 * i, 2), hh * 80 + 16 * i))
            if hh == O.get('fhi', 1):
                self.poll_issue(F, vPL, 1, vPA, 'fh'); F.items[-1].gap = 10
        vVA = vAD
        deltas = {16: vVA, 32: vVA + 1, -8: vVA + 2, 8: vVA + 3}
        for dl, rg in deltas.items():
            F('v_mad_i32_i24 v%d, v%d, %d, v%d' % (rg, vHF, dl, vTA))
        vw = [(10, 0, 16), (12, 8, 16), (14, 32, 32), (16, 80, -8), (18, 88, 8)]
        for n, (q, off, dl) in enumerate(vw):
            if n == 3:
                F.need('T2')
            src = vQ + 16 * (q >> 3) + 4 * ((q & 7) >> 1)
            pack(F, vKB + 2 * n, src, 4, False)
            F('ds_write_b64 v%d, %s offset:%d' % (deltas[dl], vr(vKB + 2 * n, 2), 160 + off))
        F('v_mov_b32 v%d, 0x3f80' % (vKB + 10))
        F('v_mov_b32 v%d, 0' % (vKB + 11))
        for hh in range(2):
            F('ds_write_b64 v%d, %s offset:%d' % (deltas[8], vr(vKB + 10, 2), 160 + 64 * hh + 40))
        vKA = vAD + 4; vKV = vAD + 5
        F('v_lshl_add_u32 v%d, v%d, 3, v%d' % (t1, vHF, vR4))
        F('v_mul_u32_u24 v%d, %d, v%d' % (t1, TSTR, t1))
        F('v_and_b32 v%d, 1, v%d' % (t2, vG))
        F('v_lshl_add_u32 v%d, v%d, 5, v%d' % (t1, t2, t1))
        F('v_lshl_add_u32 v%d, v%d, 3, v%d' % (t1, vC4, t1))
        sHH = self.s('hh')
        F('s_lshr_b32 s%d, s%d, 1' % (sHH, sW))
        F('s_mul_i32 s%d, s%d, 80' % (sT2, sHH))
        F('s_bitcmp1_b32 s%d, 0' % sW)
        F('s_cselect_b32 s%d, %d, %d' % (sM, 64, 0))
        F('s_add_u32 s%d, s%d, s%d' % (sT2, sT2, sM))
        F('s_add_u32 s%d, s%d, %d' % (sT2, sT2, L_B))
        F('v_add_u32 v%d, s%d, v%d' % (vKA, sT2, t1))
        F('s_lshl_b32 s%d, s%d, 6' % (sT2, sHH))
        F('s_add_u32 s%d, s%d, %d' % (sT2, sT2, L_B + 160))
        F('v_add_u32 v%d, s%d, v%d' % (vKV, sT2, t1))
        F.mark('kvw')
        self.poll_check(F, vPL, 1, vPA, 3)
        F.mark('fhok')
        KV = Prog()
        KV.need('kvw')
        KV.wait_lgkm()
        KV('s_barrier')
        for ks in range(8):
            for base, o in ((vKA, 0), (vKV, 4)):
                for run in range(2):
                    KV('ds_read_b64_tr_b16 %s, v%d offset:%d' % (ar(8 * ks + o + 2 * run, 2), base, (16 * ks + 4 * run) * TSTR))
        idx = [i for i, it in enumerate(M.items) if it.kind == 'mfma']
        back = O.get('kvback', 8)
        tail = M.items[idx[-back] + 1:]
        M.items = M.items[:idx[-back] + 1] + KV.items[:3]
        rest = KV.items[3:]
        per = -(-len(rest) // back)
        M.items += rest[:per]; rest = rest[per:]
        for it in tail:
            M.items.append(it)
            if it.kind == 'mfma':
                M.items += rest[:per]; rest = rest[per:]
        M.items += rest
        vKD = vQ
        for ks in range(8):
            c = '0' if ks == 0 else vr(vKD, 16)
            M('v_mfma_f32_32x32x16_bf16 %s, %s, %s, %s' % (vr(vKD, 16), ar(8 * ks, 4), ar(8 * ks + 4, 4), c))
        M.mark('kvd')
        self.stamp(M)

        vO2 = self.ctx['vW2']
        accH = lambda v, ft: ar(20 * v + 4 * ft, 4) if v < 3 else vr(vO2 + 4 * ft, 4)
        slots = [[ar(b, 4), None, True] for b in range(160, 256, 4)]
        slots += [[vr(vH + 4 * i, 4), 'kvw', True] for i in range(12)]
        slots += [[ar(b, 4), 'T3', True] for b in range(120, 160, 4)]
        slots += [[ar(b, 4), 'T3', False] for b in range(64, 120, 4)]
        order = []
        NPRE = O.get('npre', 4)
        for st in range(NPRE):
            order += [('W', st, i) for i in range(5)]
        for st in range(NPRE):
            order += [('A', st, i) for i in range(4)]
        for st in range(NPRE, 12):
            order += [('W', st, i) for i in range(5)] + [('A', st, i) for i in range(4)]
        for st in range(12, 17):
            order += [('W', st, i) for i in range(5)]
        for v in range(4):
            order += [('A', st, v) for st in range(12, 17)]
        mf = [(st, v, ft) for st in range(12) for v in range(4) for ft in range(5)]
        mf += [(st, v, ft) for v in range(4) for st in range(12, 17) for ft in range(5)]
        last = {}
        for i, (st, v, ft) in enumerate(mf):
            last[('W', st, ft)] = i; last[('A', st, v)] = i
        rank = {None: -3, 'kvw': -2, 'T3': -1}
        freeat = [rank[s[1]] for s in slots]
        where = {}
        sbase = None
        L.need('f2ok')
        for ld in order:
            k, st, i = ld
            cand = [x for x in range(len(slots)) if st < 12 or slots[x][2]]
            x = min(cand, key=lambda x: (freeat[x], slots[x][2] and st >= 6, x))
            if freeat[x] >= 0:
                L.need('m%d' % freeat[x])
            elif slots[x][1]:
                L.need(slots[x][1])
            if k == 'A' and st == 0 and i == 0:
                L.need('fhok')
            if k == 'A' and st == 12 and i == 0:
                L.need('fook')
            freeat[x] = last[ld]
            where[ld] = slots[x][0]
            o = st >= 12
            if sbase != (k, st):
                if k == 'W':
                    L('s_add_u32 s%d, s%d, %d' % (sLS, sWB[o], W2_OFF + (48 + st - 12 if o else st) * 5120))
                else:
                    L('s_add_u32 s%d, s%d, %d' % (sLS, sAB[o], HO_OFF + (48 + st - 12 if o else st) * 4096))
                sbase = (k, st)
            if k == 'W':
                L('buffer_load_dwordx4 %s, v%d, %s, s%d offen offset:%d sc1' % (where[ld], vL16 if i < 4 else v4k, sr(sWS, 4), sLS, (i & 3) * 1024))
            else:
                L('buffer_load_dwordx4 %s, v%d, %s, s%d offen sc1' % (where[ld], vAV + i, sr(sWS, 4), sLS))
            L.mark('l%s%d_%d' % ld)
        self.p3 = dict(mf=mf, where=where)
        E = dict(locals()); E.pop('self')
        self.phase3(E)
        return self.finish()


from gen2c import phase3
Gen2.phase3 = phase3


def generate(ts=0, opts=None):
    g = Gen2(ts=ts, opts=opts)
    lines = g.build()
    if ts:
        for i, o in enumerate(g.ool):
            h, r = o.split('\n', 1)
            g.ool[i] = h + '\n    s_or_b32 s%d, s%d, %d\n' % (g.sTS + 34, g.sTS + 34, 1 << i) + r
        lines = [l for x in lines for l in ([x, '    s_mov_b32 s%d, 0' % (g.sTS + 34)] if 's_getpc' in x and False else [x])]
    return HEADER % (LDS_BYTES, NAME, NAME, NAME) + '\n'.join(lines) + '\n' + '\n'.join(g.ool) + FOOTER % NAME


if __name__ == '__main__':
    import argparse
    ap = argparse.ArgumentParser()
    ap.add_argument('-o', default='cdna_kernels/%s.s' % NAME)
    ap.add_argument('--ts', type=int, default=0)
    ap.add_argument('--check', action='store_true')
    ap.add_argument('--opt', action='append', default=[])
    a = ap.parse_args()
    asmgen.CHECK = a.check
    opts = {k: int(v) for k, v in (x.split('=') for x in a.opt)}
    open(a.o, 'w').write(generate(ts=a.ts, opts=opts))
    print('wrote', a.o)
```

```python
import sys, os
sys.path.insert(0, os.path.dirname(os.path.abspath(__file__)))
import asmgen
from asmgen import Prog, finalize, schedule, Model
import gen as G1
from gen import Regs, vr, ar, sr, NAME, HEADER, FOOTER
from gen import WQ_OFF, WQ_J, W2_OFF, W2_C, HO_OFF, HO_R, KV_OFF, F1_OFF, F2_OFF, FH_OFF, FO_OFF, FK_OFF
from gen import ST_OFF, TS_OFF, WS_SIZE, OOB, SOOB, LOG2E, LDS_BYTES

NSLOT = 5
SLOT = 28672
L_EU = 143360
L_WT = 155648
L_CT = 159744
L_DUMMY = 161280
L_ST = 143360
TILE = 41 * 1024
L_A, L_B, L_C = 0, TILE, 2 * TILE
TSTR = 328
L_KVS = L_C
L_EX1 = 0
L_EX2 = 61440


class GenA(G1.Gen):
    def seq(self, Q):
        self.P.extend(schedule(self.md, Prog(), None, Q))

    def sched(self, M, L=None, F=None, name='', **kw):
        t0 = self.md.t
        if asmgen.CHECK:
            print('phase', name)
        self.P.extend(schedule(self.md, M, L, F, **kw))
        print('  model %-8s %6d -> %6d' % (name, t0, self.md.t))

    def hilo(self, Q, a, t, dst):
        Q('v_cvt_pk_bf16_f32 v%d, v%d, v%d' % (t, a, a))
        Q('v_lshlrev_b32 v%d, 16, v%d' % (t, t))
        Q('v_sub_f32 v%d, v%d, v%d' % (t, a, t))
        Q('v_cvt_pk_bf16_f32 v%d, v%d, v%d' % (dst, a, t))

    def red32(self, Q, a, t):
        for n in (8, 4, 2, 1):
            Q('v_add_f32_dpp v%d, v%d, v%d row_ror:%d row_mask:0xf bank_mask:0xf' % (a, a, a, n))
        self.xswap_sum(Q, a, t, swap='v_permlane16_swap_b32')

    def rbf(self, Q, a):
        Q('v_cvt_pk_bf16_f32 v%d, v%d, v%d' % (a, a, a))
        Q('v_lshlrev_b32 v%d, 16, v%d' % (a, a))

    def prologue(self):
        P, S, V = self.P, self.S, self.V
        self.md = Model()
        S.at('karg', 0, 2); S.at('wg', 2, 1); V.at('tid', 0, 1)
        P('s_cmp_ge_u32 s2, 256')
        P('s_cbranch_scc1 Lend')
        sX = self.sX = self.srd_load('X', 0); sWQ = self.srd_load('WQKV', 8); sW1 = self.srd_load('W1', 40)
        sDB = self.sDB = self.srd_load('DBG', 64)
        sWS = self.sWS = self.srd_load('WS', 72)
        sWP = self.srd_load('WPHI', 16); self.sW2 = self.srd_load('W2', 48)
        self.sWO = self.srd_load('WO', 24); self.sOUT = self.srd_load('OUT', 56)
        sRT = self.s('rt', 2)
        P('s_memrealtime %s' % sr(sRT, 2))
        if self.ts:
            self.sTS = self.s('ts', 36)
            P('s_mov_b32 s%d, 0' % (self.sTS + 34))
        self.stamp(grp=9)
        sPC = self.sPC = self.s('pc', 2)
        P('s_getpc_b64 %s' % sr(sPC, 2))
        vLane = self.vLane = self.v('lane'); vL16 = self.vL16 = self.v('l16')
        vJunk = self.v('junk', 4)
        t0 = self.vT0 = self.v('t0')
        t1 = self.t1 = self.v('t1'); t2 = self.t2 = self.v('t2'); t3 = self.t3 = self.v('t3')
        self.vNONCE = self.v('nonce'); self.vF = self.v('fa')
        self.vPL = self.v('pl', 4); self.vPA = self.v('pa')
        sL = self.s('l'); sW = self.sW = self.s('w'); sT = self.sT = self.s('st'); sT2 = self.sT2 = self.s('st2')
        self.sNONCE = self.s('nonce'); self.sCNT = self.s('cnt')
        P('s_lshr_b32 s%d, s2, 3' % sL)
        P('s_lshl_b32 s%d, s%d, 12' % (sT, sL))
        P('v_lshlrev_b32 v%d, 4, v0' % t0)
        P('v_add_u32 v%d, s%d, v%d' % (t0, sT, t0))
        P('s_mov_b32 s%d, Lcode_end-Lcode_pc-16' % sT2)
        P('v_min_u32 v%d, s%d, v%d' % (t0, sT2, t0))
        P('global_load_dwordx4 %s, v%d, %s' % (vr(vJunk, 4), t0, sr(sPC, 2)), 'pref')
        P('v_and_b32 v%d, 63, v0' % vLane)
        P('v_lshrrev_b32 v%d, 6, v0' % t1)
        P('v_lshlrev_b32 v%d, 4, v%d' % (vL16, vLane))
        P('v_readfirstlane_b32 s%d, v%d' % (sW, t1))
        sR = self.sR = self.s('r'); sJ = self.sJ = self.s('j'); sR3 = self.sR3 = self.s('R3'); sC3 = self.sC3 = self.s('c3')
        P('s_bfe_u32 s%d, s2, 0x20001' % sT)
        P('s_lshr_b32 s%d, s%d, 3' % (sT2, sL))
        P('s_lshl2_add_u32 s%d, s%d, s%d' % (sR, sT, sT2))
        P('s_lshr_b32 s%d, s%d, 2' % (sT2, sL))
        P('s_lshl3_add_u32 s%d, s%d, s%d' % (sR3, sT, sT2))
        P('s_and_b32 s%d, s2, 1' % sT)
        P('s_and_b32 s%d, s%d, 7' % (sT2, sL))
        P('s_lshl3_add_u32 s%d, s%d, s%d' % (sJ, sT, sT2))
        P('s_and_b32 s%d, s%d, 3' % (sT2, sL))
        P('s_lshl2_add_u32 s%d, s%d, s%d' % (sC3, sT, sT2))
        vG = self.vG = self.v('g'); vR4 = self.vR4 = self.v('r4'); vC4 = self.vC4 = self.v('c4')
        vHF = self.vHF = self.v('hf'); vT32 = self.vT32 = self.v('t32')
        P('v_lshrrev_b32 v%d, 5, v%d' % (vHF, vLane))
        P('v_and_b32 v%d, 31, v%d' % (vT32, vLane))
        sKQ = self.s('kq')
        P('s_and_b32 s%d, s2, 7' % sKQ)
        vEU = self.v('eu')
        P('v_lshrrev_b32 v%d, 3, v%d' % (t1, vLane))
        P('v_and_b32 v%d, 7, v%d' % (t2, vLane))
        P('s_mul_i32 s%d, s%d, %d' % (sT, sKQ, 80 * 3840))
        P('s_lshl_b32 s%d, s%d, 7' % (sT2, sL))
        P('s_add_u32 s%d, s%d, s%d' % (sT, sT, sT2))
        P('s_cmp_lt_u32 s2, 240')
        P('s_cselect_b32 s%d, s%d, 0x%x' % (sT, sT, OOB))
        P('v_mul_u32_u24 v%d, 3840, v%d' % (vEU, t1))
        P('v_lshl_add_u32 v%d, v%d, 4, v%d' % (vEU, t2, vEU))
        P('v_add_u32 v%d, s%d, v%d' % (vEU, sT, vEU))
        vX = self.v('xd', 4)
        P('v_lshrrev_b32 v%d, 1, v%d' % (t3, t1))
        P('v_xor_b32 v%d, v%d, v%d' % (t3, t3, t2))
        P('s_lshl2_add_u32 s%d, s%d, s%d' % (sT, sR, sW))
        P('s_mul_i32 s%d, s%d, %d' % (sT, sT, 32 * 1280))
        P('v_mul_u32_u24 v%d, 1280, v%d' % (vX, t1))
        P('v_lshl_add_u32 v%d, v%d, 4, v%d' % (vX, t3, vX))
        P('v_add_u32 v%d, s%d, v%d' % (vX, sT, vX))
        P('v_xor_b32 v%d, 64, v%d' % (vX + 1, vX))
        P('v_add_u32 v%d, %d, v%d' % (vX + 1, 8 * 1280, vX + 1))
        P('v_add_u32 v%d, %d, v%d' % (vX + 2, 16 * 1280, vX))
        P('v_add_u32 v%d, %d, v%d' % (vX + 3, 16 * 1280, vX + 1))
        vW1 = self.v('w1d', 3)
        P('s_mul_i32 s%d, s%d, %d' % (sT, sW, 16 * 3072))
        P('s_mul_i32 s%d, s%d, 192' % (sT2, sJ))
        P('s_add_u32 s%d, s%d, s%d' % (sT, sT, sT2))
        for i in range(3):
            P('v_add_u32 v%d, %d, v%d' % (t1, 64 * i, vLane))
            P('v_mul_u32_u24 v%d, 43691, v%d' % (t2, t1))
            P('v_lshrrev_b32 v%d, 19, v%d' % (t2, t2))
            P('v_mul_u32_u24 v%d, %d, v%d' % (t2, 3072 - 192, t2))
            P('v_lshl_add_u32 v%d, v%d, 4, v%d' % (t2, t1, t2))
            P('v_add_u32 v%d, s%d, v%d' % (vW1 + i, sT, t2))
        vSA = self.v('sa'); vSX = V.at('sx', 96, 10); sSR = self.s('srow')
        P('s_lshl4_add_u32 s%d, s%d, s%d' % (sSR, sR, sJ))
        P('s_lshl2_add_u32 s%d, s%d, s%d' % (sSR, sSR, sW))
        P('s_lshl_b32 s%d, s%d, 1' % (sSR, sSR))
        P('s_mul_i32 s%d, s%d, 1280' % (sT, sSR))
        P('v_mul_u32_u24 v%d, 1280, v%d' % (vSA, vHF))
        P('v_mad_u32_u24 v%d, v%d, 40, v%d' % (vSA, vT32, vSA))
        P('s_lshl_b32 s%d, s2, 10' % sT2)
        P('v_add_u32 v%d, s%d, v0' % (t3, sT2))
        P('v_lshlrev_b32 v%d, 8, v%d' % (t3, t3))
        sM = self.sM = self.s('m'); sSO = self.sSO = self.s('so')
        sMX = self.s('mx'); sMW = self.s('mw')
        P('s_lshl_b32 s%d, s%d, 10' % (sM, sW))
        P('s_mul_i32 s%d, s%d, %d' % (sSO, sW, 8 * 3840))
        P('s_lshl_b32 s%d, s%d, 12' % (sMX, sW))
        P('s_mul_i32 s%d, s%d, 3072' % (sMW, sW))
        P.wait_lgkm()
        self.srd(sDB, 256)
        P('s_or_b32 s%d, s%d, 1' % (sRT, sRT))
        P('v_mov_b32 v%d, s%d' % (t2, sRT))
        self.srd(sWQ, 640 * 3840)
        P('buffer_store_dword v%d, v%d, %s, 0 offen sc1' % (t2, t3, sr(sDB, 4)), 'nonce')
        S.release('rt')
        self.srd(sX, 2048 * 1280)
        for i in range(3):
            P('s_add_u32 m0, s%d, %d' % (sM, L_EU + 4096 * i))
            if i == 2:
                P('s_cmp_lt_u32 s%d, 2' % sW)
                P('s_cselect_b32 s%d, s%d, 0x%x' % (sSO, sSO, SOOB))
            P('buffer_load_dwordx4 v%d, %s, s%d offen lds' % (vEU, sr(sWQ, 4), sSO), 'eu')
            if i < 2:
                P('s_add_u32 s%d, s%d, %d' % (sSO, sSO, 32 * 3840))
        P('buffer_load_dwordx4 %s, v%d, %s, s%d offen' % (vr(vSX, 4), vSA, sr(sX, 4), sT))
        P('buffer_load_dwordx4 %s, v%d, %s, s%d offen offset:16' % (vr(vSX + 4, 4), vSA, sr(sX, 4), sT))
        P('buffer_load_dwordx2 %s, v%d, %s, s%d offen offset:32' % (vr(vSX + 8, 2), vSA, sr(sX, 4), sT))
        self.srd(sW1, 640 * 3072)
        V.release('eu')
        sLS = self.sLS = self.s('ls')

        def stage_dma(s):
            Q = Prog()
            slot = s % NSLOT
            Q('s_movk_i32 s%d, %d' % (sLS, s * 128))
            for u in range(4):
                Q('s_add_u32 m0, s%d, %d' % (sMX, slot * SLOT + u * 1024))
                Q('buffer_load_dwordx4 v%d, %s, s%d offen lds' % (vX + u, sr(sX, 4), sLS), 'st%d' % s)
            Q('s_mov_b32 s%d, %d' % (sLS, s * 64 * 3072))
            for i in range(3):
                Q('s_add_u32 m0, s%d, %d' % (sMW, slot * SLOT + 16384 + i * 1024))
                Q('buffer_load_dwordx4 v%d, %s, s%d offen lds' % (vW1 + i, sr(sW1, 4), sLS), 'st%d' % s)
                Q.items[-1].gap = 94
            return Q
        self.stage_dma = stage_dma
        self.md.t = 1000
        for it in P.items:
            if getattr(it, 'kind', '') in ('dma', 'vload'):
                self.md.issue(it)
        self.seq(stage_dma(0))
        self.stamp()

        F = Prog()
        P0, self.P = self.P, F
        if self.o.get('wsmb'):
            F('s_add_u32 s%d, s%d, 0x%x' % (sWS, sWS, self.o['wsmb'] << 20))
            F('s_addc_u32 s%d, s%d, 0' % (sWS + 1, sWS + 1))
        for b, sz in ((sWS, WS_SIZE), (sWP, 32 * 800), (self.sW2, 1536 * 1280), (self.sWO, 640 * 1280), (self.sOUT, 2048 * 1280)):
            self.srd(b, sz)
        self.P = P0
        if self.o.get('touch'):
            F('v_lshlrev_b32 v%d, 18, v0' % t1)
            F('v_add_u32 v%d, %d, v%d' % (t1, 0x3ff80, t1))
            F('buffer_load_dword v%d, v%d, %s, 0 offen' % (vJunk, t1, sr(sWS, 4)))
        vWL = self.v('wl', 2)
        F('s_mul_i32 s%d, s%d, 1600' % (sT, sJ))
        F('v_lshlrev_b32 v%d, 2, v0' % t1)
        F('buffer_load_dword v%d, v%d, %s, s%d offen' % (vWL, t1, sr(sWP, 4), sT)); F.items[-1].gap = 20
        F('buffer_load_dword v%d, v%d, %s, s%d offen offset:800' % (vWL + 1, t1, sr(sWP, 4), sT)); F.items[-1].gap = 20
        vE = V.at('e', 108, 12)
        for i in range(4):
            F('v_mov_b32 v%d, 0' % (vE + i))
        F('v_lshlrev_b32 v%d, 4, v0' % t1)
        F('v_add_u32 v%d, %d, v%d' % (t1, L_WT, t1))
        F('ds_write_b128 v%d, %s' % (t1, vr(vE, 4)))
        F('v_lshrrev_b32 v%d, 4, v%d' % (vG, vLane))
        F('v_bfe_u32 v%d, v%d, 2, 2' % (vR4, vLane))
        F('v_and_b32 v%d, 3, v%d' % (vC4, vLane))
        vSEL = self.vSEL = self.v('sel', 4)
        sONE = self.s('ones')
        F('s_mov_b32 s%d, 0x3f803f80' % sONE)
        F('v_xor_b32 v%d, v%d, v%d' % (t1, vG, vR4))
        F('v_and_b32 v%d, 1, v%d' % (t1, t1))
        F('v_cmp_eq_u32 vcc, 0, v%d' % t1)
        F('v_mov_b32 v%d, s%d' % (t2, sONE))
        for i in range(4):
            F('v_cndmask_b32 v%d, 0, v%d, vcc' % (vSEL + i, t2))
        vES = self.v('es'); vES2 = self.v('es2'); vEC = self.v('ec'); vER = self.v('er')
        sSec = self.s('sec')
        F('s_mul_i32 s%d, s%d, 205' % (sSec, sL))
        F('s_lshr_b32 s%d, s%d, 11' % (sSec, sSec))
        F('s_mul_i32 s%d, s%d, 10' % (sT, sSec))
        F('s_sub_u32 s%d, s%d, s%d' % (sT, sL, sT))
        F('s_lshl_b32 s%d, s%d, 6' % (sT, sT))
        F('s_lshl4_add_u32 s%d, s%d, s%d' % (sT, sW, sT))
        F('s_mul_i32 s%d, s%d, 40' % (sT2, sSec))
        F('s_sub_u32 s%d, s%d, 40' % (sT2, sT2))
        F('s_cmp_eq_u32 s%d, 0' % sSec)
        F('s_cselect_b32 s%d, 80, s%d' % (sT2, sT2))
        F('v_and_b32 v%d, 15, v%d' % (t1, vLane))
        F('v_add_u32 v%d, s%d, v%d' % (t1, sT, t1))
        F('v_mul_u32_u24 v%d, 1639, v%d' % (t2, t1))
        F('v_lshrrev_b32 v%d, 16, v%d' % (t2, t2))
        F('v_mul_u32_u24 v%d, 40, v%d' % (t3, t2))
        F('v_sub_u32 v%d, v%d, v%d' % (t1, t1, t3))
        F('v_add_u32 v%d, s%d, v%d' % (t1, sT2, t1))
        F('v_mul_u32_u24 v%d, %d, v%d' % (t2, WQ_J, t2))
        F('v_lshrrev_b32 v%d, 5, v%d' % (t3, t1))
        F('v_mul_u32_u24 v%d, %d, v%d' % (t3, TILE, t3))
        F('v_add_u32 v%d, v%d, v%d' % (t2, t2, t3))
        F('v_and_b32 v%d, 31, v%d' % (t1, t1))
        F('v_lshl_add_u32 v%d, v%d, 4, v%d' % (t2, t1, t2))
        F('s_cmp_lt_u32 s2, 240')
        F('s_cselect_b32 s%d, %d, 0x%x' % (sT, WQ_OFF, OOB))
        F('v_add_u32 v%d, s%d, v%d' % (t2, sT, t2))
        F('s_lshr_b32 s%d, s%d, 2' % (sT, sKQ))
        F('s_lshl_b32 s%d, s%d, 9' % (sT, sT))
        F('s_and_b32 s%d, s%d, 3' % (sT2, sKQ))
        F('s_lshl2_add_u32 s%d, s%d, s%d' % (sT, sT2, sT))
        F('s_add_u32 s%d, s%d, %d' % (sT, sT, 40 * 1024))
        F('v_add_u32 v%d, s%d, v%d' % (vEC, sT, t2))
        F('v_cmp_gt_u32 vcc, 16, v%d' % vLane)
        F('v_mov_b32 v%d, 0x%x' % (t3, OOB))
        F('v_cndmask_b32 v%d, v%d, v%d, vcc' % (vEC, t3, vEC))
        F('s_mul_i32 s%d, s%d, 5120' % (sT, sKQ))
        F('v_and_b32 v%d, 1, v%d' % (t1, vG))
        F('v_lshl_add_u32 v%d, v%d, 9, v%d' % (t2, t1, t2))
        F('v_lshl_add_u32 v%d, v%d, 10, v%d' % (t2, vHF, t2))
        F('v_add_u32 v%d, s%d, v%d' % (vES, sT, t2))
        F('v_cmp_gt_u32 vcc, 32, v%d' % vLane)
        F('v_add_u32 v%d, 4096, v%d' % (vES2, vES))
        F('v_cndmask_b32 v%d, v%d, v%d, vcc' % (vES2, t3, vES2))
        F('v_lshl_add_u32 v%d, v%d, 3, v%d' % (t1, vG, vR4))
        F('v_lshlrev_b32 v%d, 7, v%d' % (t1, t1))
        F('v_lshl_add_u32 v%d, v%d, 3, v%d' % (t1, vC4, t1))
        F('s_lshl_b32 s%d, s%d, 5' % (sT, sW))
        F('s_add_u32 s%d, s%d, %d' % (sT, sT, L_EU))
        F('v_add_u32 v%d, s%d, v%d' % (vER, sT, t1))
        S.release('sec', 'kq')
        vWA = self.v('wa', 2)
        F('v_mul_u32_u24 v%d, 6554, v0' % t1)
        F('v_lshrrev_b32 v%d, 16, v%d' % (t1, t1))
        F('v_mul_u32_u24 v%d, 10, v%d' % (t2, t1))
        F('v_sub_u32 v%d, v0, v%d' % (t2, t2))
        F('v_cmp_le_u32 vcc, 5, v%d' % t2)
        F('v_cndmask_b32 v%d, 0, 1, vcc' % t3)
        F('v_lshlrev_b32 v%d, 6, v%d' % (t1, t1))
        F('v_lshl_add_u32 v%d, v%d, 3, v%d' % (t1, t3, t1))
        F('v_mul_u32_u24 v%d, 5, v%d' % (t3, t3))
        F('v_sub_u32 v%d, v%d, v%d' % (t2, t2, t3))
        F('v_lshrrev_b32 v%d, 1, v%d' % (t3, t2))
        F('v_lshl_add_u32 v%d, v%d, 4, v%d' % (t1, t3, t1))
        F('v_and_b32 v%d, 1, v%d' % (t2, t2))
        F('v_lshl_add_u32 v%d, v%d, 2, v%d' % (t1, t2, t1))
        F('v_add_u32 v%d, %d, v%d' % (t1, L_WT, t1))
        F('v_cmp_gt_u32 vcc, 200, v0')
        F('v_mov_b32 v%d, %d' % (t2, L_DUMMY - 2304))
        F('v_cndmask_b32 v%d, v%d, v%d, vcc' % (vWA, t2, t1))
        F('v_mov_b32 v%d, %d' % (t2, L_DUMMY))
        F('v_cndmask_b32 v%d, v%d, v%d, vcc' % (vWA + 1, t2, t1))
        vXR = self.vXR = V.at('kb', 68, 12); vWR = self.vWR = self.v('wr', 3); vWC = self.vWC = self.v('wc', 3)
        F('v_bfe_u32 v%d, v%d, 1, 3' % (t1, vLane))
        F('v_xor_b32 v%d, v%d, v%d' % (t1, t1, vHF))
        F('v_lshlrev_b32 v%d, 4, v%d' % (t1, t1))
        F('v_lshl_add_u32 v%d, v%d, 7, v%d' % (t1, vT32, t1))
        F('v_add_u32 v%d, s%d, v%d' % (vXR, sMX, t1))
        for u in range(1, 4):
            F('v_xor_b32 v%d, %d, v%d' % (vXR + u, 32 * u, vXR))
        F('v_lshl_add_u32 v%d, v%d, 3, v%d' % (t1, vHF, vR4))
        F('v_mul_u32_u24 v%d, 192, v%d' % (t1, t1))
        F('v_and_b32 v%d, 1, v%d' % (t2, vG))
        F('v_lshl_add_u32 v%d, v%d, 5, v%d' % (t1, t2, t1))
        F('v_lshl_add_u32 v%d, v%d, 3, v%d' % (t1, vC4, t1))
        F('v_add_u32 v%d, 16384, v%d' % (vWR, t1))
        F('v_add_u32 v%d, s%d, v%d' % (vWC, sMW, vWR))
        for b in (1, 2):
            for u in range(4):
                F('v_add_u32 v%d, %d, v%d' % (vXR + 4 * b + u, 2 * SLOT * b, vXR + u))
            F('v_add_u32 v%d, %d, v%d' % (vWR + b, 2 * SLOT * b, vWR))
            F('v_add_u32 v%d, %d, v%d' % (vWC + b, 2 * SLOT * b, vWC))
        F.wait_vm('eu')
        F.wait_lgkm()
        self.stamp(F, 1)
        F('s_barrier')
        for p in range(3):
            for run in range(2):
                F('ds_read_b64_tr_b16 %s, v%d offset:%d' % (vr(vE + 4 * p + 2 * run, 2), vER, p * 4096 + run * 512))
        vST = self.vST = self.v('stat', 4)
        F('v_mov_b32 v%d, 0' % (vST + 3))
        F('buffer_load_dword v%d, v%d, %s, 0 offen sc1' % (self.vNONCE, vST + 3, sr(sDB, 4))); F.items[-1].gap = 10
        vSF = V.at('sf', 120, 20)
        F('v_dot2_f32_bf16 v%d, v%d, s%d, 0' % (t1, vSX, sONE))
        F('v_dot2_f32_bf16 v%d, v%d, s%d, 0' % (t2, vSX + 1, sONE))
        for i in range(2, 10):
            F('v_dot2_f32_bf16 v%d, v%d, s%d, v%d' % (t1 + (i & 1), vSX + i, sONE, t1 + (i & 1)))
        for p in range(3):
            a = vES if p < 2 else vES2
            F('buffer_store_dwordx4 %s, v%d, %s, 0 offen offset:%d sc1' %
              (vr(vE + 4 * p, 4), a, sr(sWS, 4), 2048 if p == 1 else 0), 'eus')
        for i in range(10):
            F('v_lshlrev_b32 v%d, 16, v%d' % (vSF + 2 * i, vSX + i))
            F('v_and_b32 v%d, 0xffff0000, v%d' % (vSF + 2 * i + 1, vSX + i))
        F('v_add_f32 v%d, v%d, v%d' % (t1, t1, t2))
        self.red32(F, t1, t2)
        F('v_mul_f32 v%d, 0x3acccccd, v%d' % (t1, t1))
        for i in range(20):
            F('v_sub_f32 v%d, v%d, v%d' % (vSF + i, vSF + i, t1))
        F('v_mul_f32 v%d, v%d, v%d' % (t2, vSF, vSF))
        F('v_mul_f32 v%d, v%d, v%d' % (t3, vSF + 1, vSF + 1))
        for i in range(2, 20):
            F('v_fmac_f32 v%d, v%d, v%d' % (t2 + (i & 1), vSF + i, vSF + i))
        F('v_add_f32 v%d, v%d, v%d' % (t2, t2, t3))
        self.red32(F, t2, t3)
        F('v_mul_f32 v%d, 0x3acccccd, v%d' % (t2, t2))
        self.rbf(F, t2)
        F('v_add_f32 v%d, 0x3727c5ac, v%d' % (t2, t2))
        self.rbf(F, t2)
        F('v_sqrt_f32 v%d, v%d' % (t2, t2))
        F('v_cvt_pk_bf16_f32 v%d, -v%d, v%d' % (vST, t1, t2))
        F('s_lshl_b32 s%d, s%d, 3' % (sT, sSR))
        F('s_add_u32 s%d, s%d, %d' % (sT, sT, ST_OFF))
        F('v_lshlrev_b32 v%d, 24, v%d' % (t3, vT32))
        F('v_lshl_add_u32 v%d, v%d, 3, v%d' % (t3, vHF, t3))
        F('v_add_u32 v%d, s%d, v%d' % (vST + 2, sT, t3))
        F('v_dot2_f32_bf16 v%d, v%d, s%d, 0' % (t1, vE, sONE))
        F('v_dot2_f32_bf16 v%d, v%d, s%d, 0' % (t2, vE + 1, sONE))
        for i in range(2, 12):
            F('v_dot2_f32_bf16 v%d, v%d, s%d, v%d' % (t1 + (i & 1), vE + i, sONE, t1 + (i & 1)))
        F('ds_write_b32 v%d, v%d' % (vWA + 1, vWL))
        F('ds_write_b32 v%d, v%d offset:%d' % (vWA, vWL + 1, 2048 + 256))
        F('v_add_f32 v%d, v%d, v%d' % (t2, t1, t2))
        self.xswap_sum(F, t2, t3)
        self.xswap_sum(F, t2, t3, swap='v_permlane16_swap_b32')
        self.hilo(F, t2, t3, t2)
        F('buffer_store_dword v%d, v%d, %s, 0 offen sc1' % (t2, vEC, sr(sWS, 4)), 'eus'); F.items[-1].gap = 10
        L = Prog()
        for s in range(1, 4):
            L.extend(stage_dma(s))
        self.sched(Prog(), L, F, 'prolog', slack=2)
        V.release('e', 'es', 'es2', 'ec', 'er', 'wl', 'wa', 'sf', 'sx', 'sa', 'junk')
        S.release('WPHI', 'WQKV', 'ones', 'srow', 'l')
        self.stamp()

    def nonce_check(self, P):
        G1.Gen.nonce_check(self, P, self.sDB, self.vST + 3)
```

```python
from gen2a import *


def phase3(self, E):
    globals().update({k: v for k, v in E.items() if k not in ('E',)})
    S, V, O = self.S, self.V, self.o
    mf, where = self.p3['mf'], self.p3['where']
    vKI = self.v('ki')
    F('v_cmp_eq_u32 vcc, 24, v%d' % vT32)
    F('v_cndmask_b32 v%d, v%d, 21, vcc' % (t1, vT32))
    F('v_mad_u32_u24 v%d, v%d, 22, v%d' % (t2, vHF, t1))
    F('v_cmp_gt_u32 vcc, 22, v%d' % t1)
    F('v_cmp_ne_u32 s[%d:%d], 21, v%d' % (sPC, sPC + 1, vT32))
    F('s_and_b64 vcc, vcc, s[%d:%d]' % (sPC, sPC + 1))
    F('v_mov_b32 v%d, 0x%x' % (t3, OOB >> 4))
    F('v_cndmask_b32 v%d, v%d, v%d, vcc' % (vKI, t3, t2))
    sKB = self.s('kb')
    F('s_lshl1_add_u32 s%d, s%d, s%d' % (sKB, sJ, sHH))
    F('s_lshl4_add_u32 s%d, s%d, s%d' % (sT2, sKB, sR))
    F('s_mul_i32 s%d, s%d, 1792' % (sM, sT2))
    F('s_add_u32 s%d, s%d, %d' % (sM, sM, KV_OFF))
    F('s_bitcmp1_b32 s%d, 0' % sW)
    F('s_cselect_b32 s%d, 0x%x, s%d' % (sSO, SOOB, sM))
    F('s_cselect_b32 s%d, s%d, 0x%x' % (sM, sM, SOOB))
    vK16 = self.v('k16'); vK8 = self.v('k8')
    F('v_lshlrev_b32 v%d, 4, v%d' % (vK16, vKI))
    F('v_lshlrev_b32 v%d, 3, v%d' % (vK8, vKI))
    F('s_and_b32 s%d, s%d, 1' % (sT, sW))
    F('s_lshl1_add_u32 s%d, s%d, s%d' % (sT2, sT2, sT))
    F('s_lshl_b32 s%d, s%d, 2' % (sT2, sT2))
    F('s_add_u32 s%d, s%d, %d' % (sT2, sT2, FK_OFF))
    self.lane0(F, vF, sT2)
    F('s_lshl_b32 s%d, s%d, 5' % (sT2, sKB))
    F('s_lshl4_add_u32 s%d, s%d, s%d' % (sT2, sT, sT2))
    F('v_and_b32 v%d, 15, v%d' % (t1, vLane))
    F('v_add_u32 v%d, s%d, v%d' % (t1, sT2, t1))
    F('v_lshlrev_b32 v%d, 2, v%d' % (t1, t1))
    F('v_add_u32 v%d, %d, v%d' % (vPA, FK_OFF, t1))
    V.release('ki')
    F.need('kvd')
    V.release('rb', 'rc', 'negm', 'lp', 'ad')
    vKF = vQ + 32
    vPQ = vQ
    for i in range(8):
        F('v_cvt_pk_bf16_f32 v%d, v%d, v%d' % (vKF + i, vKD + 2 * i, vKD + 2 * i + 1))
    F('buffer_store_dwordx4 %s, v%d, %s, s%d offen sc1' % (vr(vKF, 4), vK16, sr(sWS, 4), sSO), 'kvs')
    F('buffer_store_dwordx4 %s, v%d, %s, s%d offen offset:704 sc1' % (vr(vKF + 4, 4), vK16, sr(sWS, 4), sSO), 'kvs')
    F('buffer_store_dwordx2 %s, v%d, %s, s%d offen offset:1408 sc1' % (vr(vKF, 2), vK8, sr(sWS, 4), sM), 'kvs')
    for it in F.items[-3:]:
        it.gap = 20
    self.stamp(F, 2)
    hook(7)
    phi_pre(F, vPQ, [(vQ + 40, 8), (vQ + 48, 8), (vQ + 56, 4)], True, [None, None, None])
    hook(8)
    if O.get('kvf', 0) == 0:
        F.wait_vm('kvs'); self.stamp(F, 2); self.flag_store(F, vF); F.items[-1].gap = 10
    softmax(F, vPQ, vPH)
    hook(9)
    if O.get('kvf', 0) == 1:
        F.wait_vm('kvs'); self.stamp(F, 2); self.flag_store(F, vF); F.items[-1].gap = 10
    if O.get('fki', 1) == 0:
        self.poll_issue(F, vPL, 1, vPA, 'fk'); F.items[-1].gap = 10; self.stamp(F, 2)
    softmax(F, vPQ + 16, vPH + 12)
    if O.get('fki', 1) == 1:
        self.poll_issue(F, vPL, 1, vPA, 'fk'); F.items[-1].gap = 10; self.stamp(F, 2)
    for hh in range(2):
        F('v_mov_b32 v%d, 0' % (vPH + 12 * hh + 10))
        F('v_mov_b32 v%d, 0' % (vPH + 12 * hh + 11))
    V.release('accQ', 'sm', 'kb', 'ta', 'rs2', 'rstd', 'wphi')
    vKP = V.at('kp', 80, 80); vSU = V.at('su', 60, 20)
    F('s_lshl_b32 s%d, s%d, 4' % (sT2, sKB))
    F('s_lshl3_add_u32 s%d, s%d, s%d' % (sT2, sT, sT2))
    F('s_mul_i32 s%d, s%d, 1792' % (sT2, sT2))
    F('s_add_u32 s%d, s%d, %d' % (sT2, sT2, KV_OFF))
    sLO = self.s('lo'); sHI = self.s('hi')
    F('s_mov_b32 s%d, 0x3f80' % sLO)
    F('s_mov_b32 s%d, 0x3f800000' % sHI)
    vOA = self.v('oa', 3)
    F('s_mul_i32 s%d, s%d, 5' % (sM, sJ))
    for n, add in enumerate((0, 2, 4)):
        F('v_add_u32 v%d, s%d, v%d' % (t1, sM, vHF))
        if add:
            F('v_add_u32 v%d, %d, v%d' % (t1, add, t1))
        F('v_lshrrev_b32 v%d, 2, v%d' % (t2, t1))
        F('v_and_b32 v%d, 3, v%d' % (t1, t1))
        F('v_lshl_add_u32 v%d, v%d, 12, v%d' % (t2, t2, vTK))
        F('v_lshl_add_u32 v%d, v%d, 8, v%d' % (vOA + n, t1, t2))
        if add == 4:
            F('v_lshl_add_u32 v%d, v%d, 31, v%d' % (vOA + n, vHF, vOA + n))
    self.poll_check(F, vPL, 1, vPA, 4)
    self.stamp(F, 2)
    self.stamp(F)
    for p in range(8):
        b = vKP + 10 * p
        F('buffer_load_dwordx4 %s, v%d, %s, s%d offen sc1' % (vr(b, 4), vK16, sr(sWS, 4), sT2)); F.items[-1].gap = 55
        F('buffer_load_dwordx4 %s, v%d, %s, s%d offen offset:704 sc1' % (vr(b + 4, 4), vK16, sr(sWS, 4), sT2)); F.items[-1].gap = 55
        F('buffer_load_dwordx2 %s, v%d, %s, s%d offen offset:1408 sc1' % (vr(b + 8, 2), vK8, sr(sWS, 4), sT2)); F.items[-1].gap = 30
        if p < 7:
            F('s_add_u32 s%d, s%d, 1792' % (sT2, sT2))
    V.release('k16', 'k8')
    F('s_mul_i32 s%d, s%d, 5120' % (sT2, sW))
    F('s_add_u32 s%d, s%d, %d' % (sT2, sT2, L_KVS))
    F('v_add_u32 v%d, s%d, v%d' % (t1, sT2, vL16))
    F('v_add_u32 v%d, %d, v%d' % (t2, L_KVS, vL16))
    F('s_add_u32 s%d, s%d, %d' % (sM, sHB, 48 * 4096))
    F('s_add_u32 s%d, s%d, %d' % (sT2, sFH, FO_OFF))
    self.lane0(F, vF, sT2)
    F('s_add_u32 s%d, s%d, %d' % (sT2, sFC, FO_OFF // 4))
    F('v_and_b32 v%d, 7, v%d' % (t3, vLane))
    F('v_add_u32 v%d, s%d, v%d' % (t3, sT2, t3))
    F('v_lshlrev_b32 v%d, 2, v%d' % (vPA, t3))
    for p in range(8):
        for i in range(10):
            for h, sc in ((0, sLO), (1, sHI)):
                c = '0' if p == 0 else 'v%d' % (vSU + 2 * i + h)
                F('v_dot2_f32_bf16 v%d, v%d, s%d, %s' % (vSU + 2 * i + h, vKP + 10 * p + i, sc, c))
    S.release('lo', 'hi')
    self.stamp(F, 2)
    for i in range(5):
        F('ds_write_b128 v%d, %s offset:%d' % (t1, vr(vSU + 4 * i, 4), i * 1024))
    F.wait_lgkm()
    F('s_barrier')
    for ww in range(4):
        for i in range(5):
            F('ds_read_b128 %s, v%d offset:%d' % (vr(vKP + 20 * ww + 4 * i, 4), t2, ww * 5120 + i * 1024))
    kt = [vKP + 20, vKP + 60]; od = [vKP, vKP + 40]; vKT = vSU
    for hh in range(2):
        a, b = vKP + 40 * hh, vKP + 40 * hh + 20
        for i in range(0, 20, 2):
            F('v_pk_add_f32 %s, %s, %s' % (vr(a + i, 2), vr(a + i, 2), vr(b + i, 2)))
        for i in range(10):
            F('v_cvt_pk_bf16_f32 v%d, v%d, v%d' % (kt[hh] + i, a + 2 * i, a + 2 * i + 1))
        F('v_mov_b32 v%d, 0' % (kt[hh] + 10))
        F('v_mov_b32 v%d, 0' % (kt[hh] + 11))
        for ks in range(3):
            c = '0' if ks == 0 else vr(od[hh], 16)
            F('v_mfma_f32_32x32x16_bf16 %s, %s, %s, %s' % (vr(od[hh], 16), vr(kt[hh] + 4 * ks, 4), vr(vPH + 12 * hh + 4 * ks, 4), c))
    F('v_cmp_eq_u32 vcc, 0, v%d' % vHF)
    vDN = self.v('dn', 4)
    for hh in range(2):
        d = od[hh]
        F('v_cndmask_b32 v%d, v%d, v%d, vcc' % (vDN + 2 * hh, d + 8, d + 12))
        F('v_add_f32 v%d, 0x358637bd, v%d' % (vDN + 2 * hh, vDN + 2 * hh))
        F('v_rcp_f32 v%d, v%d' % (vDN + 2 * hh, vDN + 2 * hh))
        for i in range(0, 12, 2):
            F('v_pk_mul_f32 %s, %s, %s op_sel_hi:[1,0]' % (vr(d + i, 2), vr(d + i, 2), vr(vDN + 2 * hh, 2)))
        for i in range(4):
            F('v_cvt_pk_bf16_f32 v%d, v%d, v%d' % (vKT + 4 * hh + i, d + 2 * i, d + 2 * i + 1))
        for i in range(2):
            F('v_cvt_pk_bf16_f32 v%d, v%d, v%d' % (vKT + 8 + 2 * hh + i, d + 8 + 2 * i, d + 9 + 2 * i))
        F('buffer_store_dwordx4 %s, v%d, %s, s%d offen sc1' % (vr(vKT + 4 * hh, 4), vOA + hh, sr(sWS, 4), sM), 'ost')
    F('buffer_store_dwordx4 %s, v%d, %s, s%d offen sc1' % (vr(vKT + 8, 4), vOA + 2, sr(sWS, 4), sM), 'ost')
    self.stamp(F)
    self.stamp(F, 2)
    V.release('kp', 'oa', 'dn', 'ph', 'tk')
    vEA = self.v('ea', 6); vER = self.v('er', 2); vXO = self.v('xo'); vXR = self.v('xres', 10)
    vS3 = V.at('s3', 140, 20); vRD = V.at('rd', 80, 60)
    for v in range(3):
        F('s_add_u32 s%d, s%d, %d' % (sT, sW, v + 1))
        F('s_and_b32 s%d, s%d, 3' % (sT, sT))
        F('s_mul_i32 s%d, s%d, 15360' % (sT, sT))
        F('s_add_u32 s%d, s%d, %d' % (sT, sT, L_EX1 + v * 5120))
        F('v_add_u32 v%d, s%d, v%d' % (vEA + v, sT, vL16))
        F('v_add_u32 v%d, %d, v%d' % (vEA + 3 + v, L_EX2 - L_EX1, vEA + v))
    F('s_mul_i32 s%d, s%d, 15360' % (sT, sW))
    F('v_add_u32 v%d, s%d, v%d' % (vER, sT, vL16))
    F('v_add_u32 v%d, %d, v%d' % (vER + 1, L_EX2 - L_EX1, vER))
    F('s_lshl2_add_u32 s%d, s%d, s%d' % (sT2, sR3, sW))
    F('s_mul_i32 s%d, s%d, %d' % (sT2, sT2, 16 * 1280))
    F('s_mul_i32 s%d, s%d, 160' % (sT, sC3))
    F('s_add_u32 s%d, s%d, s%d' % (sT2, sT2, sT))
    F('v_and_b32 v%d, 15, v%d' % (t1, vLane))
    F('v_mul_u32_u24 v%d, 1280, v%d' % (t1, t1))
    F('v_mad_u32_u24 v%d, v%d, 40, v%d' % (t1, vG, t1))
    F('v_add_u32 v%d, s%d, v%d' % (vXO, sT2, t1))
    F.wait_vm('ost')
    self.stamp(F, 2)
    self.flag_store(F, vF); F.items[-1].gap = 10
    V.release('su')
    F.need(O.get('fo_at', 'lW14_0'))
    self.poll_issue(F, vPL, 1, vPA, 'fo'); F.items[-1].gap = 10; self.stamp(F, 2)
    F('buffer_load_dwordx4 %s, v%d, %s, 0 offen' % (vr(vXR, 4), vXO, sr(self.sX, 4)))
    F('buffer_load_dwordx4 %s, v%d, %s, 0 offen offset:16' % (vr(vXR + 4, 4), vXO, sr(self.sX, 4)))
    F('buffer_load_dwordx2 %s, v%d, %s, 0 offen offset:32' % (vr(vXR + 8, 2), vXO, sr(self.sX, 4)))
    self.poll_check(F, vPL, 1, vPA, 5)
    F.mark('fook')
    self.stamp(F, 2)
    self.stamp(F)

    def exch(x, abase, own, mk):
        for v in range(3):
            F.need(mk(v))
            for ft in range(5):
                F('ds_write_b128 v%d, %s offset:%d' % (vEA + 3 * x + v, ar(abase + 20 * v + 4 * ft, 4), ft * 1024))
                F.items[-1].cost = 16
        F.wait_lgkm()
        F('s_barrier')
        for sl in range(3):
            for ft in range(5):
                F('ds_read_b128 %s, v%d offset:%d' % (vr(vRD + 20 * sl + 4 * ft, 4), vER + x, sl * 5120 + ft * 1024))
        for i in range(0, 20, 2):
            F('v_pk_add_f32 %s, %s, %s' % (vr(vRD + i, 2), vr(vRD + i, 2), vr(vRD + 20 + i, 2)))
        for i in range(0, 20, 2):
            F('v_pk_add_f32 %s, %s, %s' % (vr(vRD + i, 2), vr(vRD + i, 2), vr(vRD + 40 + i, 2)))
        F.need(mk(3))
        for i in range(0, 20, 2):
            F('v_pk_add_f32 %s, %s, %s' % (vr(own + i, 2), vr(own + i, 2), vr(vRD + i, 2)))

    exch(0, 0, vO2, lambda v: 'm%d' % (220 + 5 * v + 4))
    vGT = vRD + 20
    F('s_mov_b32 s%d, 0x%x' % (sT2, LOG2E | 0x80000000))
    for i in range(20):
        F('v_mul_f32 v%d, s%d, v%d' % (vGT + i, sT2, vO2 + i))
    for i in range(20):
        F('v_exp_f32 v%d, v%d' % (vGT + i, vGT + i))
    for i in range(0, 20, 2):
        F('v_pk_add_f32 %s, %s, 1.0 op_sel_hi:[1,0]' % (vr(vGT + i, 2), vr(vGT + i, 2)))
    for i in range(20):
        F('v_rcp_f32 v%d, v%d' % (vGT + i, vGT + i))
    for i in range(0, 20, 2):
        F('v_pk_mul_f32 %s, %s, %s' % (vr(vO2 + i, 2), vr(vGT + i, 2), vr(vO2 + i, 2)))
    vXF = V.at('xf', 160, 20)
    for i in range(10):
        F('v_lshlrev_b32 v%d, 16, v%d' % (vXF + 2 * i, vXR + i))
        F('v_and_b32 v%d, 0xffff0000, v%d' % (vXF + 2 * i + 1, vXR + i))
    exch(1, 60, vS3, lambda v: 'm%d' % (240 + 25 * v + 24))
    self.stamp(F)
    for i in range(0, 20, 2):
        F('v_pk_fma_f32 %s, %s, %s, %s' % (vr(vXF + i, 2), vr(vS3 + i, 2), vr(vO2 + i, 2), vr(vXF + i, 2)))
    for i in range(10):
        F('v_cvt_pk_bf16_f32 v%d, v%d, v%d' % (vXR + i, vXF + 2 * i, vXF + 2 * i + 1))
    fl = {0: '', 1: ' sc1', 2: ' nt', 3: ' sc0 sc1'}[O.get('ost', 0)]
    F('buffer_store_dwordx4 %s, v%d, %s, 0 offen%s' % (vr(vXR, 4), vXO, sr(self.sOUT, 4), fl))
    F('buffer_store_dwordx4 %s, v%d, %s, 0 offen offset:16%s' % (vr(vXR + 4, 4), vXO, sr(self.sOUT, 4), fl))
    F('buffer_store_dwordx2 %s, v%d, %s, 0 offen offset:32%s' % (vr(vXR + 8, 2), vXO, sr(self.sOUT, 4), fl))
    for i, (st, v, ft) in enumerate(mf):
        M.need('lW%d_%d' % (st, ft)); M.need('lA%d_%d' % (st, v))
        if st < 12:
            d = accH(v, ft)
        else:
            d = ar(60 + 20 * v + 4 * ft, 4) if v < 3 else vr(vS3 + 4 * ft, 4)
        c = '0' if st in (0, 12) else d
        M('v_mfma_f32_16x16x32_bf16 %s, %s, %s, %s' % (d, where[('W', st, ft)], where[('A', st, v)], c))
        M.mark('m%d' % i)
        if i in (119, 239):
            self.stamp(M)
    self.sched(M, L, F, 'main', slack=O.get('slack', 1))
    mk = self.md.marks
    print('  marks:', ' '.join('%s=%d' % (k, mk[k]) for k in ('B0', 'B5', 'B9', 'BF', 'T0', 'T1', 'T2', 'T3', 'silu', 'kvw', 'kvd', 'f2ok', 'fhok', 'm119', 'm239', 'fook', 'm339')))
```

```python
from gen2b import *


class Gen2(GenB):
    def build(self):
        self.prologue()
        self.pass12()
        S, V, O = self.S, self.V, self.o
        sW, sR, sJ, sT, sT2, sM, sWS, sSO = self.sW, self.sR, self.sJ, self.sT, self.sT2, self.sM, self.sWS, self.sSO
        sR3, sC3, sLS, sPC = self.sR3, self.sC3, self.sLS, self.sPC
        t1, t2, t3 = self.t1, self.t2, self.t3
        vLane, vL16, vG, vR4, vC4, vHF, vT32 = self.vLane, self.vL16, self.vG, self.vR4, self.vC4, self.vHF, self.vT32
        vF, vPL, vPA, vQ, vH, vWP, vRS = self.vF, self.vPL, self.vPA, self.vQ, self.vH, self.vWP, self.vRS
        M, L, F = self.ctx['M'], self.ctx['L'], self.ctx['F']
        vSD, vC1 = self.ctx['vSD'], self.ctx['vC1']
        F.need('BF')
        V.release('xd', 'w1d', 'wr', 'wc', 'sel', 'ua', 'ub', 'sp', 'sq', 'stat')
        if self.ts != 3:
            S.release('DBG')
        S.release('mx', 'mw', 'W1', 'sel', 'mu', 'u', 'ks', 'W2', 'WO')
        vTK = self.v('tk'); vHA = self.v('ha')
        sHB = self.s('hb'); sFH = self.s('fh'); sFC = self.s('fc')
        F('s_lshr_b32 s%d, s%d, 1' % (sT, sW))
        F('s_lshl1_add_u32 s%d, s%d, s%d' % (sHB, sR, sT))
        F('s_lshl4_add_u32 s%d, s%d, s%d' % (sFH, sHB, sJ))
        F('s_mul_i32 s%d, s%d, %d' % (sHB, sHB, HO_R))
        F('s_and_b32 s%d, s%d, 1' % (sT, sW))
        F('s_lshl1_add_u32 s%d, s%d, s%d' % (sFH, sFH, sT))
        F('s_lshl_b32 s%d, s%d, 2' % (sFH, sFH))
        F('s_lshl_b32 s%d, s%d, 11' % (sT, sT))
        F('s_add_u32 s%d, s%d, s%d' % (sHB, sHB, sT))
        F('s_add_u32 s%d, s%d, %d' % (sHB, sHB, HO_OFF))
        F('v_and_b32 v%d, 15, v%d' % (t2, vLane))
        F('v_lshlrev_b32 v%d, 4, v%d' % (t2, t2))
        F('v_bfe_u32 v%d, v%d, 4, 1' % (t3, vLane))
        F('v_lshl_add_u32 v%d, v%d, 10, v%d' % (vTK, t3, t2))
        F('v_lshl_add_u32 v%d, v%d, 8, v%d' % (vHA, vHF, vTK))
        F('s_mul_i32 s%d, s%d, %d' % (sT, sJ, 3 * 4096))
        F('s_add_u32 s%d, s%d, s%d' % (sSO, sHB, sT))
        sWB = [self.s('wbh'), self.s('wbo')]; sAB = [self.s('abh'), self.s('abo')]
        v4k = self.v('v4k'); vAV = self.v('av', 4)
        F('s_mul_i32 s%d, s%d, %d' % (sT, sC3, W2_C))
        F('s_mul_i32 s%d, s%d, %d' % (sT2, sW, 12 * 5120))
        F('s_add_u32 s%d, s%d, s%d' % (sWB[0], sT, sT2))
        F('s_mul_i32 s%d, s%d, %d' % (sT2, sW, 5 * 5120))
        F('s_add_u32 s%d, s%d, s%d' % (sWB[1], sT, sT2))
        F('s_mul_i32 s%d, s%d, %d' % (sT, sR3, HO_R))
        F('s_mul_i32 s%d, s%d, %d' % (sT2, sW, 12 * 4096))
        F('s_add_u32 s%d, s%d, s%d' % (sAB[0], sT, sT2))
        F('s_mul_i32 s%d, s%d, %d' % (sT2, sW, 5 * 4096))
        F('s_add_u32 s%d, s%d, s%d' % (sAB[1], sT, sT2))
        F('v_add_u32 v%d, 4096, v%d' % (v4k, vL16))
        for v in range(4):
            F('s_add_u32 s%d, s%d, %d' % (sT, sW, v + 1))
            F('s_and_b32 s%d, s%d, 3' % (sT, sT))
            F('s_lshl_b32 s%d, s%d, 10' % (sT, sT))
            F('v_add_u32 v%d, s%d, v%d' % (vAV + v, sT, vL16))
        F('s_mul_i32 s%d, s%d, 12' % (sT2, sW))
        F('s_lshl_b32 s%d, s%d, 7' % (sM, sC3))
        F('s_add_u32 s%d, s%d, s%d' % (sT2, sT2, sM))
        F('v_min_u32 v%d, 16, v%d' % (t1, vLane))
        F('v_add_u32 v%d, s%d, v%d' % (t2, sT2, t1))
        F('s_mul_i32 s%d, s%d, 5' % (sT2, sW))
        F('s_add_u32 s%d, s%d, s%d' % (sT2, sT2, sM))
        F('s_add_u32 s%d, s%d, %d' % (sT2, sT2, 48 - 12))
        F('v_add_u32 v%d, s%d, v%d' % (t3, sT2, t1))
        F('v_cmp_gt_u32 vcc, 12, v%d' % t1)
        F('v_cndmask_b32 v%d, v%d, v%d, vcc' % (t2, t3, t2))
        F('v_lshlrev_b32 v%d, 2, v%d' % (t2, t2))
        F('v_add_u32 v%d, %d, v%d' % (vPA, F2_OFF, t2))
        F('s_lshl_b32 s%d, s%d, 5' % (sFC, sR3))
        F('s_lshl3_add_u32 s%d, s%d, s%d' % (sFC, sW, sFC))
        self.stamp(F, 2)
        F.wait_vm('w2s')
        self.stamp(F, 2)
        self.flag_store(F, vF); F.items[-1].gap = 10
        vPA2 = self.v('pa2'); vPL2 = self.v('pl2')
        def hook(pos):
            if pos == O.get('f2c', 4):
                if pos == O.get('f2i', 2):
                    self.poll_issue(F, vPL, 1, vPA, 'f2'); F.items[-1].gap = 10
                self.poll_check(F, vPL, 1, vPA, 2)
                F.mark('f2ok')
            elif pos == O.get('f2i', 2):
                self.poll_issue(F, vPL, 1, vPA, 'f2'); F.items[-1].gap = 10
            if pos == O.get('hf', 5):
                F.wait_vm('hst')
                self.stamp(F, 2)
                self.flag_store(F, vF); F.items[-1].gap = 10
            if pos == O.get('fhi', 6):
                self.poll_issue(F, vPL2, 1, vPA2, 'fh'); F.items[-1].gap = 10
            if pos == O.get('fhc', 7):
                self.poll_check(F, vPL2, 1, vPA2, 3)
                F.mark('fhok')
        F.need('corr')
        vKB = 68; vPH = 160
        vE = vKB; vPK = vQ + 56
        for T in range(3):
            for ip in range(2):
                a = vH + 16 * T + 8 * ip
                pk = vPK + 4 * ip
                for i in range(8):
                    F('v_mul_f32 v%d, v%d, v%d' % (vE + i, vC1, a + i))
                for i in range(8):
                    F('v_exp_f32 v%d, v%d' % (vE + i, vE + i))
                for i in range(8):
                    F('v_fma_f32 v%d, v%d, v%d, v%d' % (vE + i, vE + i, vSD, vSD))
                for i in range(8):
                    F('v_rcp_f32 v%d, v%d' % (vE + i, vE + i))
                for i in range(8):
                    F('v_mul_f32 v%d, v%d, v%d' % (a + i, a + i, vE + i))
                for i in range(4):
                    F('v_cvt_pk_bf16_f32 v%d, v%d, v%d' % (pk + i, a + 2 * i, a + 2 * i + 1))
                F('buffer_store_dwordx4 %s, v%d, %s, s%d offen offset:%d sc1' % (vr(pk, 4), vHA, sr(sWS, 4), sSO, ip * 512), 'hst')
            if T < 2:
                F('s_add_u32 s%d, s%d, 4096' % (sSO, sSO))
            hook(T)
        F.mark('silu')
        self.stamp(F, 2)
        V.release('ha', 'sd', 'c1', 'negmh')
        F('s_add_u32 s%d, s%d, %d' % (sT, sFH, FH_OFF))
        self.lane0(F, vF, sT)
        F('s_add_u32 s%d, s%d, %d' % (sT2, sFC, FH_OFF // 4))
        F('v_and_b32 v%d, 7, v%d' % (t1, vLane))
        F('v_add_u32 v%d, s%d, v%d' % (t1, sT2, t1))
        F('v_lshlrev_b32 v%d, 2, v%d' % (vPA2, t1))
        sL2E = self.s('l2e')
        vSM = self.V.alloc('sm', 5, 1); vTA = self.v('ta'); vRS2 = self.v('rs2', 2); vAD = self.V.alloc('ad', 6, 1)
        F('s_mov_b32 s%d, 0x%x' % (sL2E, LOG2E))
        F('v_mov_b32 v%d, v%d' % (vRS2, vRS))
        F('s_mul_i32 s%d, s%d, %d' % (sT, sW, 32 * TSTR))
        F('s_add_u32 s%d, s%d, %d' % (sT, sT, L_B))
        F('v_mul_u32_u24 v%d, %d, v%d' % (vTA, TSTR, vT32))
        F('v_add_u32 v%d, s%d, v%d' % (vTA, sT, vTA))

        def pack(Q, dst, src, n, pk):
            for i in range(0, n, 2):
                if pk:
                    Q('v_pk_mul_f32 %s, %s, %s op_sel_hi:[1,0]' % (vr(src + i, 2), vr(src + i, 2), vr(vRS2, 2)))
                else:
                    Q('v_mul_f32 v%d, v%d, v%d' % (src + i, vRS, src + i))
                    Q('v_mul_f32 v%d, v%d, v%d' % (src + i + 1, vRS, src + i + 1))
            for i in range(0, n, 2):
                Q('v_cvt_pk_bf16_f32 v%d, v%d, v%d' % (dst + i // 2, src + i, src + i + 1))

        def softmax(Q, pq, out):
            mx, mn, sp, sn = vSM, vSM + 1, vSM + 2, vSM + 3
            ep, en = vKB, pq
            Q('v_max3_f32 v%d, v%d, v%d, v%d' % (mx, pq, pq + 1, pq + 2))
            Q('v_min3_f32 v%d, v%d, v%d, v%d' % (mn, pq, pq + 1, pq + 2))
            for i in (3, 5, 7):
                Q('v_max3_f32 v%d, v%d, v%d, v%d' % (mx, mx, pq + i, pq + i + 1))
                Q('v_min3_f32 v%d, v%d, v%d, v%d' % (mn, mn, pq + i, pq + i + 1))
            Q('v_max_f32 v%d, v%d, v%d' % (mx, mx, pq + 9))
            Q('v_min_f32 v%d, v%d, v%d' % (mn, mn, pq + 9))
            Q('v_mov_b32 v%d, v%d' % (sp, mx))
            Q('v_mov_b32 v%d, v%d' % (sn, mn))
            Q('s_nop 0')
            Q('v_permlane32_swap_b32 v%d, v%d' % (mx, sp))
            Q('v_permlane32_swap_b32 v%d, v%d' % (mn, sn))
            Q('v_max_f32 v%d, v%d, v%d' % (mx, mx, sp))
            Q('v_min_f32 v%d, v%d, v%d' % (mn, mn, sn))
            Q('v_mul_f32 v%d, s%d, v%d' % (mx, sL2E, mx))
            Q('v_mul_f32 v%d, s%d, v%d' % (mn, sL2E, mn))
            for i in range(10):
                Q('v_fma_f32 v%d, v%d, s%d, -v%d' % (ep + i, pq + i, sL2E, mx))
                Q('v_fma_f32 v%d, -v%d, s%d, v%d' % (en + i, pq + i, sL2E, mn))
            for i in range(10):
                Q('v_exp_f32 v%d, v%d' % (ep + i, ep + i))
                Q('v_exp_f32 v%d, v%d' % (en + i, en + i))
            Q('v_add_f32 v%d, v%d, v%d' % (sp, ep, ep + 1))
            Q('v_add_f32 v%d, v%d, v%d' % (sn, en, en + 1))
            for i in range(2, 10):
                Q('v_add_f32 v%d, v%d, v%d' % (sp, sp, ep + i))
                Q('v_add_f32 v%d, v%d, v%d' % (sn, sn, en + i))
            Q('v_mov_b32 v%d, v%d' % (mx, sp))
            Q('v_mov_b32 v%d, v%d' % (mn, sn))
            Q('s_nop 0')
            Q('v_permlane32_swap_b32 v%d, v%d' % (sp, mx))
            Q('v_permlane32_swap_b32 v%d, v%d' % (sn, mn))
            Q('v_add_f32 v%d, v%d, v%d' % (sp, sp, mx))
            Q('v_add_f32 v%d, v%d, v%d' % (sn, sn, mn))
            Q('v_rcp_f32 v%d, v%d' % (sp, sp))
            Q('v_rcp_f32 v%d, v%d' % (sn, sn))
            for i in range(10):
                Q('v_mul_f32 v%d, v%d, v%d' % (ep + i, sp, ep + i))
                Q('v_mul_f32 v%d, v%d, v%d' % (en + i, sn, en + i))
            for i in range(4):
                Q('v_cvt_pk_bf16_f32 v%d, v%d, v%d' % (out + i, ep + 2 * i, ep + 2 * i + 1))
                Q('v_cvt_pk_bf16_f32 v%d, v%d, v%d' % (out + 4 + i, en + 2 * i, en + 2 * i + 1))
            Q('v_cvt_pk_bf16_f32 v%d, v%d, v%d' % (out + 8, ep + 8, ep + 9))
            Q('v_cvt_pk_bf16_f32 v%d, v%d, v%d' % (out + 9, en + 8, en + 9))

        def phi_pre(Q, vPQ, wins, pk, needs):
            for wi, (src, n) in enumerate(wins):
                if needs[wi]:
                    Q.need(needs[wi])
                pack(Q, vKB + 4 * wi, src, n, pk)
                for i in range(n // 2, 4):
                    Q('v_mov_b32 v%d, 0' % (vKB + 4 * wi + i))
                if wi:
                    hh = wi - 1
                    for win in range(2):
                        c = '0' if win == 0 else vr(vPQ + 16 * hh, 16)
                        Q('v_mfma_f32_32x32x16_bf16 %s, %s, %s, %s' %
                          (vr(vPQ + 16 * hh, 16), vr(vWP + 8 * hh + 4 * win, 4), vr(vKB + 4 * (hh + win), 4), c))

        vPQ = vH
        phi_pre(F, vPQ, [(vQ, 8), (vQ + 8, 8), (vQ + 16, 4)], False, ['T0', None, 'T1'])
        hook(3)
        F('v_lshl_add_u32 v%d, v%d, 3, v%d' % (vSM + 4, vHF, vTA))
        for hh in range(2):
            softmax(F, vPQ + 16 * hh, vPH + 12 * hh)
            F.need('BX2')
            for i in range(5):
                F('ds_write_b64 v%d, %s offset:%d' % (vSM + 4, vr(vPH + 12 * hh + 2 * i, 2), hh * 80 + 16 * i))
            hook(4 + hh)
        vVA = vAD
        deltas = {16: vVA, 32: vVA + 1, -8: vVA + 2, 8: vVA + 3}
        for dl, rg in deltas.items():
            F('v_mad_i32_i24 v%d, v%d, %d, v%d' % (rg, vHF, dl, vTA))
        vw = [(10, 0, 16), (12, 8, 16), (14, 32, 32), (16, 80, -8), (18, 88, 8)]
        for n, (q, off, dl) in enumerate(vw):
            if n == 3:
                F.need('T2')
            src = vQ + 16 * (q >> 3) + 4 * ((q & 7) >> 1)
            pack(F, vKB + 2 * n, src, 4, False)
            F('ds_write_b64 v%d, %s offset:%d' % (deltas[dl], vr(vKB + 2 * n, 2), 160 + off))
        F('v_mov_b32 v%d, 0x3f80' % (vKB + 10))
        F('v_mov_b32 v%d, 0' % (vKB + 11))
        for hh in range(2):
            F('ds_write_b64 v%d, %s offset:%d' % (deltas[8], vr(vKB + 10, 2), 160 + 64 * hh + 40))
        vKA = vAD + 4; vKV = vAD + 5
        F('v_lshl_add_u32 v%d, v%d, 3, v%d' % (t1, vHF, vR4))
        F('v_mul_u32_u24 v%d, %d, v%d' % (t1, TSTR, t1))
        F('v_and_b32 v%d, 1, v%d' % (t2, vG))
        F('v_lshl_add_u32 v%d, v%d, 5, v%d' % (t1, t2, t1))
        F('v_lshl_add_u32 v%d, v%d, 3, v%d' % (t1, vC4, t1))
        sHH = self.s('hh')
        F('s_lshr_b32 s%d, s%d, 1' % (sHH, sW))
        F('s_mul_i32 s%d, s%d, 80' % (sT2, sHH))
        F('s_bitcmp1_b32 s%d, 0' % sW)
        F('s_cselect_b32 s%d, %d, %d' % (sM, 64, 0))
        F('s_add_u32 s%d, s%d, s%d' % (sT2, sT2, sM))
        F('s_add_u32 s%d, s%d, %d' % (sT2, sT2, L_B))
        F('v_add_u32 v%d, s%d, v%d' % (vKA, sT2, t1))
        F('s_lshl_b32 s%d, s%d, 6' % (sT2, sHH))
        F('s_add_u32 s%d, s%d, %d' % (sT2, sT2, L_B + 160))
        F('v_add_u32 v%d, s%d, v%d' % (vKV, sT2, t1))
        F.mark('kvw')
        hook(6)
        KV = Prog()
        KV.need('kvw')
        KV.wait_lgkm()
        KV('s_barrier')
        for ks in range(8):
            for base, o in ((vKA, 0), (vKV, 4)):
                for run in range(2):
                    KV('ds_read_b64_tr_b16 %s, v%d offset:%d' % (ar(8 * ks + o + 2 * run, 2), base, (16 * ks + 4 * run) * TSTR))
        idx = [i for i, it in enumerate(M.items) if it.kind == 'mfma']
        back = O.get('kvback', 8)
        tail = M.items[idx[-back] + 1:]
        M.items = M.items[:idx[-back] + 1] + KV.items[:3]
        rest = KV.items[3:]
        per = -(-len(rest) // back)
        M.items += rest[:per]; rest = rest[per:]
        for it in tail:
            M.items.append(it)
            if it.kind == 'mfma':
                M.items += rest[:per]; rest = rest[per:]
        M.items += rest
        vKD = vQ
        for ks in range(8):
            c = '0' if ks == 0 else vr(vKD, 16)
            M('v_mfma_f32_32x32x16_bf16 %s, %s, %s, %s' % (vr(vKD, 16), ar(8 * ks, 4), ar(8 * ks + 4, 4), c))
        M.mark('kvd')
        self.stamp(M)

        vO2 = self.ctx['vW2']
        accH = lambda v, ft: ar(20 * v + 4 * ft, 4) if v < 3 else vr(vO2 + 4 * ft, 4)
        slots = [[ar(b, 4), None, True] for b in range(160, 256, 4)]
        slots += [[vr(vH + 4 * i, 4), 'kvw', True] for i in range(12)]
        slots += [[ar(b, 4), 'T3', True] for b in range(120, 160, 4)]
        slots += [[ar(b, 4), 'T3', False] for b in range(64, 120, 4)]
        order = []
        NPRE = O.get('npre', 4)
        for st in range(NPRE):
            order += [('W', st, i) for i in range(5)]
        for st in range(NPRE):
            order += [('A', st, i) for i in range(4)]
        for st in range(NPRE, 12):
            order += [('W', st, i) for i in range(5)] + [('A', st, i) for i in range(4)]
        for st in range(12, 17):
            order += [('W', st, i) for i in range(5)]
        for v in range(4):
            order += [('A', st, v) for st in range(12, 17)]
        mf = [(st, v, ft) for st in range(12) for v in range(4) for ft in range(5)]
        mf += [(st, v, ft) for v in range(4) for st in range(12, 17) for ft in range(5)]
        last = {}
        for i, (st, v, ft) in enumerate(mf):
            last[('W', st, ft)] = i; last[('A', st, v)] = i
        rank = {None: -3, 'kvw': -2, 'T3': -1}
        freeat = [rank[s[1]] for s in slots]
        where = {}
        sbase = None
        L.need('f2ok')
        for ld in order:
            k, st, i = ld
            cand = [x for x in range(len(slots)) if st < 12 or slots[x][2]]
            x = min(cand, key=lambda x: (freeat[x], slots[x][2] and st >= 6, x))
            if freeat[x] >= 0:
                L.need('m%d' % freeat[x])
            elif slots[x][1]:
                L.need(slots[x][1])
            if k == 'A' and st == 0 and i == 0:
                L.need('fhok')
            if k == 'A' and st == 12 and i == 0:
                L.need('fook')
            freeat[x] = last[ld]
            where[ld] = slots[x][0]
            o = st >= 12
            if sbase != (k, st):
                if k == 'W':
                    L('s_add_u32 s%d, s%d, %d' % (sLS, sWB[o], W2_OFF + (48 + st - 12 if o else st) * 5120))
                else:
                    L('s_add_u32 s%d, s%d, %d' % (sLS, sAB[o], HO_OFF + (48 + st - 12 if o else st) * 4096))
                sbase = (k, st)
            if k == 'W':
                L('buffer_load_dwordx4 %s, v%d, %s, s%d offen offset:%d sc1' % (where[ld], vL16 if i < 4 else v4k, sr(sWS, 4), sLS, (i & 3) * 1024))
            else:
                L('buffer_load_dwordx4 %s, v%d, %s, s%d offen sc1' % (where[ld], vAV + i, sr(sWS, 4), sLS))
            L.mark('l%s%d_%d' % ld)
        self.p3 = dict(mf=mf, where=where)
        E = dict(locals()); E.pop('self')
        self.phase3(E)
        return self.finish()


from gen2c import phase3
Gen2.phase3 = phase3


def generate(ts=0, opts=None):
    g = Gen2(ts=ts, opts=opts)
    lines = g.build()
    if ts:
        for i, o in enumerate(g.ool):
            h, r = o.split('\n', 1)
            g.ool[i] = h + '\n    s_or_b32 s%d, s%d, %d\n' % (g.sTS + 34, g.sTS + 34, 1 << i) + r
        lines = [l for x in lines for l in ([x, '    s_mov_b32 s%d, 0' % (g.sTS + 34)] if 's_getpc' in x and False else [x])]
    return HEADER % (LDS_BYTES, NAME, NAME, NAME) + '\n'.join(lines) + '\n' + '\n'.join(g.ool) + FOOTER % NAME


if __name__ == '__main__':
    import argparse
    ap = argparse.ArgumentParser()
    ap.add_argument('-o', default='cdna_kernels/%s.s' % NAME)
    ap.add_argument('--ts', type=int, default=0)
    ap.add_argument('--check', action='store_true')
    ap.add_argument('--opt', action='append', default=[])
    a = ap.parse_args()
    asmgen.CHECK = a.check
    opts = {k: int(v) for k, v in (x.split('=') for x in a.opt)}
    open(a.o, 'w').write(generate(ts=a.ts, opts=opts))
    print('wrote', a.o)
```
